```python
import torch

def _softmax(x, axis=-1):
    return torch.softmax(x, dim=axis)

def _gelu(x):
    return torch.nn.functional.gelu(x, approximate='tanh')

def _silu(x):
    return torch.nn.functional.silu(x)

def _sigmoid(x):
    return torch.sigmoid(x)

def _layernorm(x, axis=-1, eps=1e-05):
    m = x.mean(dim=axis, keepdim=True)
    v = x.var(dim=axis, keepdim=True, unbiased=False)
    return (x - m) / torch.sqrt(v + eps)

def _scatter_add(tgt, idx, src, axis=0):
    return tgt.clone().index_add_(axis, idx, src)

def _segment_sum(src, seg, n):
    out = torch.zeros((n,) + src.shape[1:], dtype=src.dtype)
    return out.index_add_(0, seg, src)

def _pad(x, pw):
    flat = tuple((v for pair in reversed(pw) for v in pair))
    return torch.nn.functional.pad(x, flat)
kernel_name = 'recurrent_scan__memory_aug_recurrent_mem_tr__glu_gated_reglu__prompt'

def setup_inputs():

    _w = lambda a: (lambda t: t.to(torch.bfloat16) if t.is_floating_point() else t)(torch.as_tensor(a))

    def _A_setup():
        B, S, Dm = (1, 2048, 512)
        H, Dh = (32, 128)
        M, seg = (8, 32)
        seg = min(seg, S)
        S = S // seg * seg
        return {'x': _w((lambda *s: torch.randn(*s, dtype=torch.bfloat16) * 0.1)(B, S, Dm)), 'mem0': _w((lambda *s: torch.randn(*s, dtype=torch.bfloat16) * 1.6)(B, M, Dm)), 'Wq': _w((lambda *s: torch.randn(*s, dtype=torch.bfloat16) * 0.8)(Dm, H, Dh) * Dm ** (-0.5)), 'Wk': _w((lambda *s: torch.randn(*s, dtype=torch.bfloat16) * 0.8)(Dm, H, Dh) * Dm ** (-0.5)), 'Wv': _w((lambda *s: torch.randn(*s, dtype=torch.bfloat16) * 1.6)(Dm, H, Dh) * Dm ** (-0.5)), 'Wo': _w((lambda *s: torch.randn(*s, dtype=torch.bfloat16) * 1.6)(H, Dh, Dm) * (H * Dh) ** (-0.5)), 'seg_len': seg}
    _A_in = _A_setup()

    def _B_setup():
        B, S, D, F = (1, 2048, 512, 1376)
        return {'x': _w((lambda *s: torch.randn(*s, dtype=torch.bfloat16) * 0.1)(B, S, D)), 'W_gate': _w((lambda *s: torch.randn(*s, dtype=torch.bfloat16) * 0.4)(D, F) * (2.0 / D) ** 0.5), 'W_up': _w((lambda *s: torch.randn(*s, dtype=torch.bfloat16) * 0.4)(D, F) * (2.0 / D) ** 0.5), 'W_down': _w((lambda *s: torch.randn(*s, dtype=torch.bfloat16) * 0.4)(F, D) * (1.0 / F) ** 0.5)}
    _B_in = _B_setup()
    return {'A_x': _A_in['x'], 'A_mem0': _A_in['mem0'], 'A_Wq': _A_in['Wq'], 'A_Wk': _A_in['Wk'], 'A_Wv': _A_in['Wv'], 'A_Wo': _A_in['Wo'], 'A_seg_len': _A_in['seg_len'], 'B_x': _B_in['x'], 'B_W_gate': _B_in['W_gate'], 'B_W_up': _B_in['W_up'], 'B_W_down': _B_in['W_down']}

def reference(A_x, A_mem0, A_Wq, A_Wk, A_Wv, A_Wo, A_seg_len, B_x, B_W_gate, B_W_up, B_W_down):

    def _A_ref(x, mem0, Wq, Wk, Wv, Wo, seg_len):
        B, S, Dm = x.shape
        H, Dh = (Wq.shape[1], Wq.shape[2])
        M = mem0.shape[1]
        scale = Dh ** (-0.5)
        n_seg = S // seg_len
        L = M + seg_len
        idx = torch.arange(L)
        mask = (idx[:, None] < M) | (idx[:, None] >= idx[None, :])
        mem = mem0
        outs = []
        for s in range(n_seg):
            xs = x[:, s * seg_len:(s + 1) * seg_len, :].clone()
            h = torch.concatenate([mem, xs], axis=1)
            q = torch.einsum('btd,dhe->bhte', h, Wq)
            k = torch.einsum('btd,dhe->bhte', h, Wk)
            v = torch.einsum('btd,dhe->bhte', h, Wv)
            scores = torch.einsum('bhqe,bhke->bhqk', q, k) * scale
            scores = torch.where(mask[None, None], scores, -1000000000.0)
            p = _softmax(scores, axis=-1)
            o = torch.einsum('bhqk,bhke->bhqe', p, v)
            o = torch.einsum('bhte,hed->btd', o, Wo)
            mem = o[:, :M, :].clone()
            outs.append(o[:, M:, :])
        return torch.concatenate(outs, axis=1)

    def _B_ref(x, W_gate, W_up, W_down):
        gate = torch.einsum('bsd,df->bsf', x, W_gate)
        up = torch.einsum('bsd,df->bsf', x, W_up)
        gate = gate * (lambda x, dt: x.to(dt))(gate > 0, gate.dtype)
        h = gate * up
        return torch.einsum('bsf,fd->bsd', h, W_down)
    x = A_x
    xn = _layernorm(x, axis=-1)
    s = _A_ref(xn, A_mem0, A_Wq, A_Wk, A_Wv, A_Wo, A_seg_len)
    g = _silu(_B_ref(xn, B_W_gate, B_W_up, B_W_down))
    return x + s * g
```

```python
import re

REG = re.compile(r'^(-?\|?)([vas])(\d+)\|?$')
RNG = re.compile(r'^(-?)([vas])\[(\d+):(\d+)\]$')

def regs_of(op):
    op = op.strip()
    if op.startswith('abs(') or op.startswith('-abs('):
        op = op[op.index('(')+1:-1]
    m = REG.match(op)
    if m: return [(m.group(2), int(m.group(3)))]
    m = RNG.match(op)
    if m: return [(m.group(2), i) for i in range(int(m.group(3)), int(m.group(4))+1)]
    if op == 'vcc': return [('s', 106), ('s', 107)]
    if op == 'vcc_lo': return [('s', 106)]
    if op == 'vcc_hi': return [('s', 107)]
    if op in ('exec', 'exec_lo', 'exec_hi'): return [('x', 0)]
    if op == 'm0': return [('m', 0)]
    return []

TRANS = ('v_exp_', 'v_log_', 'v_rcp_', 'v_rsq_', 'v_sqrt_', 'v_sin_', 'v_cos_')

class Ins:
    __slots__ = ('text', 'mn', 'ops', 'kind', 'wr', 'rd', 'srcab', 'srcc', 'dpp', 'data', 'states', 'passes')
    def __init__(self, text):
        self.text = text
        t = text.split(';')[0].strip()
        self.data = []; self.srcab = []; self.srcc = []; self.wr = []; self.rd = []
        self.dpp = False; self.states = 1; self.passes = 0
        if not t or t.endswith(':') or t.startswith('.'):
            self.kind = 'label' if t.endswith(':') else 'none'; self.mn = t; self.ops = []; self.states = 0
            return
        p = t.split(None, 1)
        mn = self.mn = p[0]
        rest = p[1] if len(p) > 1 else ''
        rest = re.sub(r'(op_sel(_hi)?|neg_lo|neg_hi):\[[^\]]*\]', '', rest).strip()
        ops = [o.strip() for o in rest.split(',')] if rest else []
        if ops:
            last = ops[-1].split()
            mods = last[1:]
            ops[-1] = last[0]
        else:
            mods = []
        self.ops = ops
        R = lambda i: regs_of(ops[i]) if i < len(ops) else []
        if mn.startswith('v_mfma') or mn.startswith('v_smfmac'):
            self.kind = 'mfma'
            self.passes = 8 if '32x32' in mn else 4
            self.wr = R(0)
            if mn.startswith('v_smfmac'):
                self.srcab = R(1) + R(2) + R(3); self.srcc = R(0)
            else:
                self.srcab = R(1) + R(2); self.srcc = R(3)
            self.rd = self.srcab + self.srcc
        elif mn.startswith('v_'):
            self.kind = 'valu'
            self.dpp = '_dpp' in mn or any(m.startswith(('row_', 'quad_perm', 'wave_')) for m in mods)
            if mn.startswith('v_permlane') and 'swap' in mn:
                self.wr = R(0) + R(1); self.rd = R(0) + R(1)
            elif mn.startswith('v_cmpx'):
                self.wr = R(0) + [('x', 0)]; self.rd = R(1) + R(2)
            elif mn.startswith(('v_add_co', 'v_sub_co', 'v_addc_co', 'v_subb_co', 'v_mad_u64', 'v_div_scale')):
                self.wr = R(0) + R(1); self.rd = sum((R(i) for i in range(2, len(ops))), [])
            else:
                self.wr = R(0); self.rd = sum((R(i) for i in range(1, len(ops))), [])
                if mn.startswith(('v_fmac', 'v_pk_fmac', 'v_writelane', 'v_dot2c')) or self.dpp:
                    self.rd = self.rd + R(0)
        elif mn.startswith('ds_'):
            self.kind = 'ds'
            if mn.startswith('ds_read') or 'permute' in mn or 'swizzle' in mn or '_rtn' in mn:
                self.wr = R(0); self.rd = sum((R(i) for i in range(1, len(ops))), [])
            else:
                self.rd = sum((R(i) for i in range(len(ops))), [])
        elif mn.startswith(('global_', 'buffer_', 'flat_')):
            self.kind = 'vmem'
            allr = [R(i) for i in range(len(ops))]
            if mn in ('buffer_inv', 'buffer_wbl2'):
                pass
            elif '_load' in mn and 'lds' not in mods and '_lds_' not in mn:
                self.wr = allr[0]; self.rd = sum(allr[1:], [])
            elif 'atomic' in mn and 'sc0' in mods and mn.startswith('global_'):
                self.wr = allr[0]; self.rd = sum(allr[1:], [])
            else:
                self.rd = sum(allr, [])
                if 'x3' in mn or 'x4' in mn:
                    self.data = allr[1] if mn.startswith('global_') else allr[0]
                if 'lds' in mods or '_lds_' in mn: self.rd = self.rd + [('m', 0)]
        elif mn.startswith('s_'):
            self.kind = 'salu'
            if mn == 's_nop':
                self.states = int(ops[0], 0) + 1
            elif mn.startswith(('s_cmp', 's_cbranch', 's_branch', 's_waitcnt', 's_barrier', 's_sleep', 's_endpgm', 's_setprio', 's_bitcmp')):
                self.rd = sum((R(i) for i in range(len(ops))), [])
            else:
                self.wr = R(0); self.rd = sum((R(i) for i in range(1, len(ops))), [])
                if 'saveexec' in mn: self.wr = self.wr + [('x', 0)]
        else:
            raise ValueError('unknown instruction: ' + text)

def need(p, c):
    n = 0
    inter = lambda a, b: bool(set(a) & set(b))
    vg = lambda l: [r for r in l if r[0] in 'va']
    sg = lambda l: [r for r in l if r[0] == 's']
    if p.kind == 'valu':
        if c.kind == 'mfma' and inter(vg(p.wr), c.rd): n = max(n, 2)
        if c.kind == 'mfma' and ('x', 0) in p.wr: n = max(n, 4)
        if c.kind == 'valu':
            if c.dpp and inter(vg(p.wr), c.rd): n = max(n, 2)
            if c.dpp and ('x', 0) in p.wr: n = max(n, 5)
            if c.mn.startswith('v_permlane') and inter(vg(p.wr), c.rd): n = max(n, 2)
            if c.mn.startswith('v_permlane') and ('x', 0) in p.wr: n = max(n, 4)
            if c.mn.startswith(('v_readlane', 'v_readfirstlane')) and inter(vg(p.wr), c.rd): n = max(n, 1)
            if c.mn.startswith(('v_readlane', 'v_readfirstlane', 'v_writelane')) and ('x', 0) in p.wr: n = max(n, 4)
            if p.mn.startswith(TRANS) and inter(p.wr, c.rd): n = max(n, 1)
            if inter(sg(p.wr), c.rd): n = max(n, 4 if c.mn.startswith(('v_readlane', 'v_writelane', 'v_div_fmas')) else 2)
            if c.mn.startswith('v_cndmask') and len(c.ops) == 3 and ('s', 106) in p.wr: n = max(n, 2)
        if c.kind == 'vmem' and inter(sg(p.wr), c.rd): n = max(n, 5)
        if c.kind in ('vmem', 'ds', 'mfma') and p.mn.startswith(TRANS) and inter(p.wr, c.rd): n = max(n, 1)
        if c.kind == 'salu' and inter(sg(p.wr), c.rd): n = max(n, 1)
    if p.kind == 'mfma':
        big = {4: 8, 8: 12}[p.passes]
        if c.kind == 'mfma':
            if inter(p.wr, c.srcab): n = max(n, big)
            if inter(p.wr, c.srcc) and not (p.wr == c.srcc and p.mn == c.mn): n = max(n, big - 2)
            if inter(p.wr, c.wr) and not inter(p.wr, c.srcc): n = max(n, big - 2)
        elif c.kind in ('valu', 'vmem', 'ds'):
            if inter(p.wr, c.rd) or inter(p.wr, c.wr): n = max(n, big)
            if c.kind == 'valu' and inter(p.srcc, c.wr): n = max(n, {4: 3, 8: 7}[p.passes])
    if p.kind == 'vmem' and p.data and inter(p.data, c.wr): n = max(n, 2)
    if p.kind == 'salu' and ('m', 0) in p.wr and ('m', 0) in c.rd and c.kind in ('vmem', 'ds'): n = max(n, 1)
    return n

def pad_for(hist, c):
    dist = 0; miss = 0
    for p in reversed(hist):
        if dist >= 12: break
        if p.states == 0: continue
        k = need(p, c)
        if k > dist: miss = max(miss, k - dist)
        dist += p.states
    return miss

def fix_hazards(lines):
    out = []
    for t in lines:
        c = Ins(t)
        if c.states:
            m = pad_for(out[-40:], c)
            if m: out.append(Ins(f's_nop {m-1}'))
        out.append(c)
    lab = {i.mn[:-1]: k for k, i in enumerate(out) if i.kind == 'label'}
    bad = []
    for k, i in enumerate(out):
        if i.kind == 'salu' and i.mn.startswith(('s_cbranch', 's_branch')) and not i.ops[0].startswith('L_pad'):
            tgt = lab[i.ops[0]]
            hist = out[max(0, k-30):k+1]
            st = 0
            for c in out[tgt:tgt+30]:
                if c.states:
                    if pad_for(hist, c): bad.append((i.text, c.text))
                    st += c.states
                    hist = hist + [c]
                    if st >= 12 or c.mn in ('s_branch', 's_endpgm'): break
    if bad:
        raise RuntimeError('branch-path hazards: %r' % bad[:5])
    return [i.text for i in out]

class Emitter:
    def __init__(self):
        self.lines = []
        self.dsq = []
        self.vmq = []
        self.track = True
    def raw(self, t): self.lines.append(t)
    def __call__(self, text):
        for t in text.split('\n'):
            t = t.strip()
            if not t: continue
            i = Ins(t)
            if self.track and i.states and self.dsq:
                touched = set(i.rd) | set(i.wr)
                last = -1
                for k, d in enumerate(self.dsq):
                    if d & touched: last = k
                if last >= 0:
                    n = len(self.dsq) - 1 - last
                    self.lines.append(f's_waitcnt lgkmcnt({min(n,15)})')
                    self.dsq = self.dsq[last+1:] if n <= 15 else self.dsq[len(self.dsq)-15:]
            if self.track and i.states and self.vmq:
                touched = set(i.rd) | (set(i.wr) if i.kind != 'vmem' else set())
                last = -1
                for k, d in enumerate(self.vmq):
                    if d & touched: last = k
                if last >= 0:
                    n = len(self.vmq) - 1 - last
                    assert n <= 63
                    self.lines.append(f's_waitcnt vmcnt({n})')
                    self.vmq = self.vmq[last+1:]
            if i.mn == 's_waitcnt':
                m = re.search(r'vmcnt\((\d+)\)', t)
                if m:
                    n = int(m.group(1)); self.vmq = self.vmq[len(self.vmq)-n:] if n and n < len(self.vmq) else ([] if n == 0 else self.vmq)
                m = re.search(r'lgkmcnt\((\d+)\)', t)
                if m:
                    n = int(m.group(1)); self.dsq = self.dsq[len(self.dsq)-n:] if n and n < len(self.dsq) else ([] if n == 0 else self.dsq)
            if i.kind == 'ds': self.dsq.append(set(i.wr))
            if i.kind == 'vmem':
                self.vmq.append(set(i.wr))
                assert len(self.vmq) <= 63, 'vmcnt overflow'
            self.lines.append(t)
    def lgkm_for_writes(self):
        last = -1
        for k, d in enumerate(self.dsq):
            if not d: last = k
        if last >= 0:
            n = len(self.dsq) - 1 - last
            self(f's_waitcnt lgkmcnt({min(n,15)})')
    def reset(self, dsq=None, vmq=None):
        self.dsq = list(dsq or []); self.vmq = list(vmq or [])
    def assert_ds_idle(self):
        assert not self.dsq, self.dsq
    def label(self, name): self.lines.append(name + ':')

def v(a, n=1): return f'v{a}' if n == 1 else f'v[{a}:{a+n-1}]'
def a(x, n=1): return f'a{x}' if n == 1 else f'a[{x}:{x+n-1}]'
def s(x, n=1): return f's{x}' if n == 1 else f's[{x}:{x+n-1}]'
def R(r, n=1):
    return v(r, n) if r < 256 else a(r-256, n)
```

```python
import sys, math
sys.path.insert(0, 'gen')
from asmlib import *

KNAME = 'recurrent_scan__memory_aug_recurrent_mem_tr__glu_gated_reglu__prompt_kernel'
XN   = 0x0000000
FLG  = 0x0200000
F_KVX, F_OFL, F_HFL, F_PROG = FLG, FLG + 0x8000, FLG + 0x10000, FLG + 0x14000
H1   = 0x0300000
H2   = 0x0380000
STP  = 0x0390000
KV   = 0x1000000
KVM  = 0x3000000
OO   = 0x4000000
HH   = 0x5000000
WS_BYTES = 0x10000000
SENT = 0xFFBFFFBF
CSC = (128 ** -0.5) * math.log2(math.e)
import struct
def fbits(x): return struct.unpack('<I', struct.pack('<f', x))[0]

sX, sMEM, sWQ, sWK, sWV, sWO, sWG, sWU, sWD, sOUT, sDBG, sWS = 4, 6, 8, 10, 12, 14, 20, 22, 24, 26, 28, 30
sW, sXCC, sJ = 32, 33, 34
SRD_WS, SRD_A, SRD_B, SRD_X = 36, 40, 44, 48
sPLO, sPHI = 52, 53
sSPIN = 35
WSR = s(SRD_WS, 4)

class Gen:
    def __init__(self, dev=False, opts=None):
        self.e = Emitter(); self.dev = dev; self.o = opts or {}
        self.uid = 0
    def lab(self, p):
        self.uid += 1; return f'L_{p}_{self.uid}'
    def srd(self, d, ptr, nbytes):
        e = self.e
        e(f's_mov_b32 s{d}, s{ptr}\ns_and_b32 s{d+1}, s{ptr+1}, 0xffff\ns_mov_b32 s{d+2}, {nbytes:#x}\ns_mov_b32 s{d+3}, 0x20000')
    def stamp(self, idx, vt=(112,)):
        if not self.dev: return
        e = self.e; t = vt[0]
        sv = (list(e.dsq), list(e.vmq))
        e.raw('s_memrealtime s[96:97]')
        e.raw('s_waitcnt lgkmcnt(0)')
        e.raw(f's_lshl_b32 s97, s98, 8')
        e.raw(f's_lshl_b32 s99, s{sW}, 6')
        e.raw(f's_add_u32 s97, s97, s99')
        e.raw(f's_add_u32 s97, s97, {STP + idx*4}')
        e.raw(f'v_mov_b32 v{t}, s96')
        e.raw(f'buffer_store_dword v{t}, off, {WSR}, s97')
        e.raw('s_waitcnt vmcnt(0)')
        e.reset()
    def spin_check(self, fail='L_END', lim=1 << 17):
        e = self.e
        e(f's_add_u32 s{sSPIN}, s{sSPIN}, 1\ns_cmp_gt_u32 s{sSPIN}, {lim}\ns_cbranch_scc1 {fail}')
    def wait_counter(self, off, target, vt):
        e = self.e; L = self.lab('wc'); D = self.lab('wcd')
        e(f'v_mov_b32 v{vt}, {off}')
        e.label(L)
        e(f'global_load_dword v{vt+1}, v{vt}, {s(sDBG,2)} sc1')
        e('s_waitcnt vmcnt(0)')
        e(f'v_readfirstlane_b32 s54, v{vt+1}')
        e(f's_cmp_ge_u32 s54, {target}\ns_cbranch_scc1 {D}')
        self.spin_check()
        e(f's_sleep 2\ns_branch {L}')
        e.label(D)
    def wait_flags(self, voff, soff, vt, thr=None):
        e = self.e; L = self.lab('wf'); D = self.lab('wfd')
        e.label(L)
        e(f'buffer_load_dword v{vt}, v{voff}, {WSR}, {soff} offen sc1')
        e('s_waitcnt vmcnt(0)')
        if thr is None: e(f'v_cmp_eq_u32 vcc, 0, v{vt}')
        else: e(f'v_cmp_ge_u32 vcc, {thr}, v{vt}')
        e(f's_cbranch_vccz {D}')
        self.spin_check()
        e(f's_sleep 2\ns_branch {L}')
        e.label(D)
    def red_g(self, op, x, t):
        e = self.e
        e(f'v_mov_b32 v{t}, v{x}\nv_permlane16_swap_b32 v{x}, v{t}\n{op} v{x}, v{x}, v{t}')
        e(f'v_mov_b32 v{t}, v{x}\nv_permlane32_swap_b32 v{x}, v{t}\n{op} v{x}, v{x}, v{t}')
    def rbf(self, d, x):
        self.e(f'v_cvt_pk_bf16_f32 v{d}, v{x}, v{x}\nv_lshlrev_b32 v{d}, 16, v{d}')

    def prologue(self):
        e = self.e
        e('s_cmp_ge_u32 s2, 256\ns_cbranch_scc1 L_END')
        e('s_load_dwordx16 s[4:19], s[0:1], 0\ns_load_dwordx8 s[20:27], s[0:1], 64\ns_load_dwordx4 s[28:31], s[0:1], 96')
        e(f's_getreg_b32 s{sXCC}, hwreg(HW_REG_XCC_ID)\ns_and_b32 s{sXCC}, s{sXCC}, 7')
        e(f'v_lshrrev_b32 v1, 6, v0\nv_readfirstlane_b32 s{sW}, v1\nv_and_b32 v0, 63, v0')
        e(f's_mov_b32 s{sSPIN}, 0\ns_mov_b32 s{sPLO}, 0x05040100\ns_mov_b32 s{sPHI}, 0x07060302')
        e('s_waitcnt lgkmcnt(0)')
        self.srd(SRD_WS, sWS, WS_BYTES)
        e(f's_cmp_lg_u32 s{sW}, 0\ns_cbranch_scc1 L_notick')
        e(f's_lshl_b32 s54, s{sXCC}, 2\ns_add_u32 s54, s54, 128\ns_cmp_eq_u32 s{sXCC}, 0\ns_cselect_b32 s54, 0, s54')
        e(f'v_mov_b32 v2, s54\nv_mov_b32 v3, 1\nv_mov_b32 v5, 0\ns_mov_b64 exec, 1')
        e(f'global_atomic_add v4, v2, v3, {s(sDBG,2)} sc0\ns_waitcnt vmcnt(0)\nds_write_b32 v5, v4\ns_waitcnt lgkmcnt(0)\ns_mov_b64 exec, -1')
        e.label('L_notick')
        e('s_barrier\nv_mov_b32 v5, 0\nds_read_b32 v4, v5\ns_waitcnt lgkmcnt(0)')
        e(f'v_readfirstlane_b32 s{sJ}, v4')
        e('s_barrier')
        e(f's_cmp_ge_u32 s{sJ}, 32\ns_cbranch_scc1 L_END')
        if self.dev:
            e(f's_lshl_b32 s98, s{sXCC}, 5\ns_add_u32 s98, s98, s{sJ}')
            self.stamp(0)
        e(f's_cmp_eq_u32 s{sXCC}, 0\ns_cbranch_scc1 L_CHAIN')
        e(f's_sub_u32 s54, s{sXCC}, 1\ns_lshl_b32 s54, s54, 5\ns_add_u32 s{sJ}, s{sJ}, s54')

    def load_pairs(self, groups, tmp, depth, vA, vB, post=None):
        e = self.e
        n = len(groups[0][1]); T = tmp + depth * 2 * n
        def issue(k):
            srd, ents = groups[k][0], groups[k][1]
            b = tmp + (k % depth) * 2 * n
            for i, (so, _, _) in enumerate(ents):
                e(so)
                e(f'buffer_load_dword v{b+2*i}, v{vA}, {s(srd,4)}, s54 offen')
                e(f'buffer_load_dword v{b+2*i+1}, v{vB}, {s(srd,4)}, s54 offen')
        def finish(k):
            ents = groups[k][1]
            b = tmp + (k % depth) * 2 * n
            for i, (_, dE, dO) in enumerate(ents):
                for d, sel, tt in ((dE, sPLO, T), (dO, sPHI, T + 1)):
                    if d < 256: e(f'v_perm_b32 v{d}, v{b+2*i+1}, v{b+2*i}, s{sel}')
                    else: e(f'v_perm_b32 v{tt}, v{b+2*i+1}, v{b+2*i}, s{sel}\nv_accvgpr_write_b32 a{d-256}, v{tt}')
            if len(groups[k]) > 2 and groups[k][2]: groups[k][2]()
        for k in range(len(groups) + depth - 1):
            if k < len(groups): issue(k)
            if k - (depth - 1) >= 0: finish(k - (depth - 1))
            if post and k == depth - 1: post()

    def ln(self):
        e = self.e
        e(f's_cmp_ge_u32 s{sJ}, 128\ns_cbranch_scc1 L_noln')
        self.srd(SRD_X, sX, 2048 * 1024)
        e(f'v_lshlrev_b32 v1, 4, v0')
        e(f's_lshl_b32 s54, s{sJ}, 14\ns_lshl_b32 s55, s{sW}, 12\ns_add_u32 s54, s54, s55')
        for r in range(4):
            e(f'buffer_load_dwordx4 {v(16+4*r,4)}, v1, {s(SRD_X,4)}, s54 offen offset:{1024*r}')
        e(f'v_lshlrev_b32 v2, 2, v0\nv_mov_b32 v3, 0')
        e(f's_lshl_b32 s55, s{sJ}, 10\ns_lshl_b32 s56, s{sW}, 8\ns_add_u32 s55, s55, s56\ns_add_u32 s55, s55, {FLG}')
        e(f'buffer_store_dword v3, v2, {WSR}, s55 offen sc1')
        F = lambda r, i: 32 + 8 * r + i
        Dv = lambda r, i: 64 + 8 * r + i
        SM, VR, T = 96, 100, 104
        e(f's_mov_b32 s56, 0xffff0000\ns_mov_b32 s57, {fbits(1.0/512):#x}\ns_mov_b32 s58, {fbits(1e-5):#x}')
        for r in range(4):
            for i in range(4):
                e(f'v_lshlrev_b32 v{F(r,2*i)}, 16, v{16+4*r+i}\nv_and_b32 v{F(r,2*i+1)}, s56, v{16+4*r+i}')
        def red64(base):
            for sh in (1, 2, 4, 8):
                for r in range(4):
                    e(f'v_add_f32_dpp v{base+r}, v{base+r}, v{base+r} row_ror:{sh} row_mask:0xf bank_mask:0xf')
            for sw in ('16', '32'):
                for r in range(4): e(f'v_mov_b32 v{T+r}, v{base+r}')
                for r in range(4): e(f'v_permlane{sw}_swap_b32 v{base+r}, v{T+r}')
                for r in range(4): e(f'v_add_f32 v{base+r}, v{base+r}, v{T+r}')
        for r in range(4): e(f'v_add_f32 v{SM+r}, v{F(r,0)}, v{F(r,1)}')
        for i in range(2, 8):
            for r in range(4): e(f'v_add_f32 v{SM+r}, v{SM+r}, v{F(r,i)}')
        red64(SM)
        for r in range(4): e(f'v_mul_f32 v{SM+r}, s57, v{SM+r}')
        for r in range(4):
            for i in range(8): e(f'v_sub_f32 v{Dv(r,i)}, v{F(r,i)}, v{SM+r}')
        for r in range(4): e(f'v_mul_f32 v{VR+r}, v{Dv(r,0)}, v{Dv(r,0)}')
        for i in range(1, 8):
            for r in range(4): e(f'v_fmac_f32 v{VR+r}, v{Dv(r,i)}, v{Dv(r,i)}')
        red64(VR)
        for r in range(4):
            e(f'v_mul_f32 v{VR+r}, s57, v{VR+r}')
            self.rbf(VR + r, VR + r); self.rbf(SM + r, SM + r)
            e(f'v_add_f32 v{VR+r}, s58, v{VR+r}')
            self.rbf(VR + r, VR + r)
            e(f'v_sqrt_f32 v{VR+r}, v{VR+r}')
            self.rbf(VR + r, VR + r)
            e(f'v_rcp_f32 v{T+r}, v{VR+r}')
        for r in range(4):
            for i in range(8): e(f'v_sub_f32 v{F(r,i)}, v{F(r,i)}, v{SM+r}')
            for i in range(4):
                e(f'v_cvt_pk_bf16_f32 v108, v{F(r,2*i)}, v{F(r,2*i+1)}')
                e(f'v_lshlrev_b32 v{F(r,2*i)}, 16, v108\nv_and_b32 v{F(r,2*i+1)}, s56, v108')
            for i in range(8): e(f'v_mul_f32 v{Dv(r,i)}, v{F(r,i)}, v{T+r}')
            for i in range(8): e(f'v_fma_f32 v{F(r,i)}, -v{Dv(r,i)}, v{VR+r}, v{F(r,i)}')
            for i in range(8): e(f'v_fmac_f32 v{Dv(r,i)}, v{F(r,i)}, v{T+r}')
            for i in range(4): e(f'v_cvt_pk_bf16_f32 v{16+4*r+i}, v{Dv(r,2*i)}, v{Dv(r,2*i+1)}')
        e(f'v_lshlrev_b32 v2, 8, v0\ns_lshl_b32 s55, s{sW}, 6\nv_add_u32 v2, s55, v2')
        for r in range(4): e(f'ds_write_b128 v2, {v(16+4*r,4)} offset:{16*r}')
        e('s_waitcnt lgkmcnt(0)\ns_barrier')
        e(f's_lshl_b32 s55, s{sW}, 12\nv_add_u32 v2, s55, v1')
        for r in range(4): e(f'ds_read_b128 {v(16+4*r,4)}, v2 offset:{1024*r}')
        for r in range(4): e(f'buffer_store_dwordx4 {v(16+4*r,4)}, v1, {WSR}, s54 offen offset:{1024*r} sc1')
        e('s_waitcnt vmcnt(0)\ns_barrier')
        e(f's_cmp_lg_u32 s{sW}, 0\ns_cbranch_scc1 L_noln')
        e(f'v_mov_b32 v2, 192\nv_mov_b32 v3, 1\ns_mov_b64 exec, 1\nglobal_atomic_add v2, v3, {s(sDBG,2)}\ns_mov_b64 exec, -1')
        e.label('L_noln')
        e.reset(); e('s_waitcnt vmcnt(0)')

    def row_loop(self, name, sT, step, mf, nacc_desc, epilogue, flagoff):
        e = self.e
        PF, FR = 80, 64
        sSO, sBUF, sPREV = 56, 57, 58
        def pf_issue():
            e(f's_lshl_b32 s{sSO}, s61, 15\ns_lshl_b32 s55, s{sW}, 13\ns_add_u32 s{sSO}, s{sSO}, s55')
            e(f's_add_u32 s55, s{sSO}, 4096')
            for i in range(8):
                e(f'buffer_load_dwordx4 {v(PF+4*i,4)}, v1, {WSR}, s{sSO if i < 4 else 55} offen offset:{1024*(i%4)} sc1')
        e(f'v_lshlrev_b32 v1, 4, v0\ns_lshl_b32 s55, s{sW}, 13\nv_add_u32 v2, s55, v1\nv_mov_b32 v3, v1\nv_mov_b32 v4, 1')
        e(f's_mov_b32 s{sPREV}, {STP + 0xF000}')
        e(f's_mov_b32 s61, s{sT}')
        pf_issue()
        nst = self._nst
        for _ in range(nst): e(f'buffer_store_dword v4, off, {WSR}, s{sPREV}')
        e('s_barrier')
        L = f'L_{name}_loop'
        e.label(L)
        q0 = list(e.vmq)
        for i in range(8): e(f'ds_write_b128 v2, {v(PF+4*i,4)} offset:{1024*i}')
        e(f's_add_u32 s61, s{sT}, {step}\ns_min_u32 s61, s61, 63')
        e('s_waitcnt lgkmcnt(0)')
        pf_issue()
        e('s_barrier')
        rd = lambda k: (e(f'ds_read_b128 {v(FR+8*(k%2),4)}, v3 offset:{1024*k}'), e(f'ds_read_b128 {v(FR+8*(k%2)+4,4)}, v3 offset:{16384+1024*k}'))
        rd(0)
        for k in range(16):
            if k < 15: rd(k + 1)
            mf(k, FR + 8 * (k % 2), FR + 8 * (k % 2) + 4)
        e('v_xor_b32 v2, 0x8000, v2\nv_xor_b32 v3, 0x8000, v3')
        e('s_waitcnt vmcnt(8)')
        e(f'buffer_store_dword v4, off, {WSR}, s{sPREV} sc1')
        flagoff(sPREV)
        epilogue()
        e('s_waitcnt lgkmcnt(0)')
        assert len(e.vmq) == len(q0), (len(e.vmq), len(q0))
        e(f's_add_u32 s{sT}, s{sT}, {step}\ns_cmp_lt_u32 s{sT}, 64\ns_cbranch_scc1 {L}')
        e('s_waitcnt vmcnt(0)')
        e(f'buffer_store_dword v4, off, {WSR}, s{sPREV} sc1')
        e('s_barrier')
        e.reset(vmq=[set()])

    def qkv(self):
        e = self.e
        sH, sSUB, sT, sQ = 62, 63, 64, 65
        e(f's_mul_i32 s{sH}, s{sJ}, 9363\ns_lshr_b32 s{sH}, s{sH}, 16\ns_mul_i32 s54, s{sH}, 7\ns_sub_u32 s{sSUB}, s{sJ}, s54')
        self.srd(SRD_A, sWK, 1 << 22); self.srd(SRD_B, sWV, 1 << 22); self.srd(SRD_X, sWQ, 1 << 22)
        e(f'v_lshrrev_b32 v1, 4, v0\nv_lshlrev_b32 v1, 16, v1\nv_and_b32 v2, 15, v0\nv_lshlrev_b32 v2, 2, v2')
        e(f's_lshl_b32 s54, s{sH}, 8\ns_lshl_b32 s55, s{sW}, 6\ns_add_u32 s54, s54, s55\nv_add3_u32 v1, v1, v2, s54\nv_add_u32 v2, 8192, v1')
        W = lambda m, p, k: [256, 384, 128][m] + (k * 2 + p) * 4
        groups = []
        for m, srd in ((0, SRD_A), (1, SRD_B), (2, SRD_X)):
            for k2 in range(8):
                ents = []
                for k in (2 * k2, 2 * k2 + 1):
                    for i in range(4):
                        ents.append((f's_mov_b32 s54, {(32*k + 2*i) * 8192}', W(m, 0, k) + i, W(m, 1, k) + i))
                groups.append((srd, ents))
        self.load_pairs(groups, 16, 3, 1, 2)
        self.stamp(2)
        self.wait_counter(192, 128, 8)
        self.stamp(3)
        ACC = lambda m, p, t: 16 + ((m * 2 + p) * 2 + t) * 4
        def mf(k, X0, X1):
            for m in (0, 1, 2):
                for p in (0, 1):
                    for t, X in ((0, X0), (1, X1)):
                        d = v(ACC(m, p, t), 4); c = '0' if k == 0 else d
                        if m == 1: e(f'v_mfma_f32_16x16x32_bf16 {d}, {v(X,4)}, {R(W(m,p,k),4)}, {c}')
                        else: e(f'v_mfma_f32_16x16x32_bf16 {d}, {R(W(m,p,k),4)}, {v(X,4)}, {c}')
        def flagoff(sd):
            e(f's_lshl_b32 s{sd}, s{sH}, 10\ns_lshl_b32 s55, s{sW}, 8\ns_add_u32 s{sd}, s{sd}, s55\ns_lshl_b32 s55, s{sT}, 2\ns_add_u32 s{sd}, s{sd}, s55\ns_add_u32 s{sd}, s{sd}, {F_KVX}')
        def epi():
            e(f's_lshl_b32 s54, s{sT}, 19\ns_lshl_b32 s55, s{sH}, 14\ns_add_u32 s54, s54, s55\ns_lshl_b32 s55, s{sW}, 12\ns_add_u32 s54, s54, s55\ns_add_u32 s54, s54, {KV}')
            for t in (0, 1):
                o = 112 + 4 * t
                for i in range(4): e(f'v_cvt_pk_bf16_f32 v{o+i}, v{ACC(0,0,t)+i}, v{ACC(0,1,t)+i}')
                e(f'buffer_store_dwordx4 {v(o,4)}, v1, {WSR}, s54 offen offset:{1024*t} sc1')
            for p in (0, 1):
                o = 120 + 4 * p
                for t in (0, 1):
                    for hh in (0, 1): e(f'v_cvt_pk_bf16_f32 v{o+2*t+hh}, v{ACC(1,p,t)+2*hh}, v{ACC(1,p,t)+2*hh+1}')
                e(f'buffer_store_dwordx4 {v(o,4)}, v1, {WSR}, s54 offen offset:{2048+1024*p} sc1')
            for t in (0, 1):
                o = 64 + 4 * t
                for i in range(4): e(f'v_cvt_pk_bf16_f32 v{o+i}, v{ACC(2,0,t)+i}, v{ACC(2,1,t)+i}')
                e(f'ds_write_b128 v6, {v(o,4)} offset:{4096*t}')
            e('v_add_u32 v6, 8192, v6')
        e(f'v_lshlrev_b32 v6, 4, v0\ns_lshl_b32 s55, s{sW}, 10\ns_add_u32 s55, s55, 65536\nv_add_u32 v6, s55, v6')
        e(f's_mov_b32 s{sT}, s{sSUB}')
        self._nst = 5
        self.row_loop('qkv', sT, 7, mf, None, epi, flagoff)
        self.stamp(4)

    def ffn1(self):
        e = self.e
        sT, sPH = 64, 65
        e(f's_cmp_ge_u32 s{sJ}, 220\ns_cbranch_scc1 L_noffn')
        e(f's_mul_i32 s{sT}, s{sJ}, 5958\ns_lshr_b32 s{sT}, s{sT}, 16\ns_mul_i32 s54, s{sT}, 11\ns_sub_u32 s54, s{sJ}, s54')
        e(f's_lshl_b32 s{sPH}, s54, 2\ns_add_u32 s{sPH}, s{sPH}, s{sW}')
        self.srd(SRD_A, sWG, 512 * 2752); self.srd(SRD_B, sWU, 512 * 2752)
        e(f'v_lshrrev_b32 v1, 4, v0\nv_mul_u32_u24 v1, {8*2752}, v1\nv_and_b32 v2, 15, v0\nv_lshlrev_b32 v2, 2, v2')
        e(f's_lshl_b32 s54, s{sPH}, 6\nv_add3_u32 v1, v1, v2, s54\nv_add_u32 v2, 2752, v1')
        W = lambda m, p, k: 256 + m * 128 + (k * 2 + p) * 4
        groups = []
        for m, srd in ((0, SRD_A), (1, SRD_B)):
            for k2 in range(8):
                ents = []
                for k in (2 * k2, 2 * k2 + 1):
                    for i in range(4):
                        ents.append((f's_mov_b32 s54, {(32*k + 2*i) * 2752}', W(m, 0, k) + i, W(m, 1, k) + i))
                groups.append((srd, ents))
        self.load_pairs(groups, 16, 3, 1, 2)
        ACC = lambda m, p, t: 16 + ((m * 2 + p) * 2 + t) * 4
        def mf(k, X0, X1):
            for m in (0, 1):
                for p in (0, 1):
                    for t, X in ((0, X0), (1, X1)):
                        d = v(ACC(m, p, t), 4); c = '0' if k == 0 else d
                        e(f'v_mfma_f32_16x16x32_bf16 {d}, {R(W(m,p,k),4)}, {v(X,4)}, {c}')
        def flagoff(sd):
            e(f's_lshl_b32 s{sd}, s{sT}, 8\ns_lshl_b32 s55, s{sPH}, 2\ns_add_u32 s{sd}, s{sd}, s55\ns_add_u32 s{sd}, s{sd}, {F_HFL}')
        def epi():
            e(f's_mul_i32 s54, s{sT}, {2*44*1024}\ns_lshl_b32 s55, s{sPH}, 10\ns_add_u32 s54, s54, s55\ns_add_u32 s54, s54, {HH}\ns_add_u32 s55, s54, {44*1024}')
            e('s_mov_b32 s59, 0xffff0000')
            for t in (0, 1):
                o = 112 + 4 * t
                for i in range(4):
                    g0, g1, u0, u1 = ACC(0, 0, t) + i, ACC(0, 1, t) + i, ACC(1, 0, t) + i, ACC(1, 1, t) + i
                    e(f'v_cvt_pk_bf16_f32 v120, v{g0}, v{g1}\nv_cvt_pk_bf16_f32 v121, v{u0}, v{u1}')
                    e(f'v_lshlrev_b32 v{g0}, 16, v120\nv_and_b32 v{g1}, s59, v120\nv_lshlrev_b32 v{u0}, 16, v121\nv_and_b32 v{u1}, s59, v121')
                    e(f'v_max_f32 v{g0}, 0, v{g0}\nv_max_f32 v{g1}, 0, v{g1}')
                    e(f'v_mul_f32 v{g0}, v{g0}, v{u0}\nv_mul_f32 v{g1}, v{g1}, v{u1}')
                    e(f'v_cvt_pk_bf16_f32 v{o+i}, v{g0}, v{g1}')
                e(f'buffer_store_dwordx4 {v(o,4)}, v1, {WSR}, s{54+t} offen sc1')
        self._nst = 3
        self.row_loop('ffn', sT, 20, mf, None, epi, flagoff)
        e.label('L_noffn')
        e.reset(); e('s_waitcnt vmcnt(0)')
        self.stamp(5)

    def tailphase(self):
        e = self.e
        sH, sSUB = 62, 63
        sA, sF, sCS, sQT, sEH, sQL, sSC = 64, 65, 66, 67, 68, 69, 70
        MK = 72
        e(f's_lshr_b32 s{sF}, s{sJ}, 4\ns_and_b32 s{sCS}, s{sJ}, 15\ns_mov_b32 s{sA}, s{sSUB}')
        e(f's_lshr_b32 s{sQT}, s{sW}, 1\ns_and_b32 s{sEH}, s{sW}, 1')
        self.srd(SRD_A, sWO, 1 << 22); self.srd(SRD_B, sWD, 1376 * 1024)
        e(f'v_lshrrev_b32 v1, 4, v0\nv_lshlrev_b32 v1, 13, v1\nv_and_b32 v2, 15, v0\nv_lshlrev_b32 v2, 2, v2')
        e(f's_lshl_b32 s54, s{sCS}, 6\nv_add3_u32 v1, v1, v2, s54\nv_add_u32 v2, 1024, v1')
        e(f's_lshl_b32 s56, s{sW}, 20\ns_mul_i32 s57, s{sW}, {11*32*1024}')
        WO = lambda p, k: 256 + (k * 2 + p) * 4
        WD = lambda p, k: 168 + (k * 2 + p) * 4
        groups = []
        for k in range(11):
            groups.append((SRD_B, [(f's_add_u32 s54, s57, {(32*k + 2*i) * 1024}', WD(0, k) + i, WD(1, k) + i) for i in range(4)]))
        for k in range(32):
            groups.append((SRD_A, [(f's_add_u32 s54, s56, {(32*k + 2*i) * 1024}', WO(0, k) + i, WO(1, k) + i) for i in range(4)]))
        self.load_pairs(groups, 16, 7, 1, 2)
        self.srd(SRD_A, sOUT, 2048 * 1024); self.srd(SRD_X, sX, 2048 * 1024)
        L16, L8, ONE, QA, FO, FH, RW, RR, XO, PG = 1, 2, 3, 4, 5, 6, 7, 8, 9, 10
        e(f'v_lshlrev_b32 v{L16}, 4, v0\nv_lshlrev_b32 v{L8}, 3, v0\nv_mov_b32 v{ONE}, 1')
        e(f's_lshl_b32 s54, s{sQT}, 12\ns_add_u32 s54, s54, 65536\nv_add_u32 v{QA}, s54, v{L16}')
        e(f'v_and_b32 v11, 15, v0\nv_lshlrev_b32 v{FO}, 2, v11\ns_lshl_b32 s54, s{sW}, 6\nv_add_u32 v{FO}, s54, v{FO}')
        e(f'v_min_u32 v{FH}, 10, v0\nv_lshlrev_b32 v{FH}, 2, v{FH}\ns_mul_i32 s54, s{sW}, 44\nv_add_u32 v{FH}, s54, v{FH}')
        e(f's_lshl_b32 s54, s{sW}, 12\nv_add_u32 v{RW}, s54, v{L16}')
        e(f'v_lshrrev_b32 v12, 4, v0\nv_bfe_u32 v13, v0, 2, 2\nv_and_b32 v14, 3, v0')
        e(f'v_lshlrev_b32 v13, 8, v13\nv_lshlrev_b32 v15, 4, v12\nv_lshlrev_b32 v14, 2, v14\nv_add3_u32 v{RR}, v13, v15, v14')
        e(f's_lshl_b32 s54, s{sW}, 6\nv_add_u32 v{RR}, s54, v{RR}')
        e(f'v_lshlrev_b32 v12, 10, v12\nv_lshlrev_b32 v13, 2, v11\ns_lshl_b32 s54, s{sW}, 12\ns_lshl_b32 s55, s{sCS}, 6\ns_add_u32 s54, s54, s55\nv_add3_u32 v{XO}, v12, v13, s54')
        e(f'v_and_b32 v{PG}, 3, v0\nv_lshlrev_b32 v{PG}, 2, v{PG}')
        e(f's_lshl_b32 s54, s{sQT}, 4\nv_add_u32 v12, s54, v11\nv_lshrrev_b32 v13, 4, v0\nv_lshlrev_b32 v13, 2, v13\nv_sub_u32 v12, v12, v13')
        for tk in (0, 1):
            for i in range(4):
                e(f'v_cmp_le_i32 {s(MK+2*(4*tk+i),2)}, {16*tk+i}, v12')
        e(f's_mov_b32 s{sSC}, {fbits(CSC):#x}\ns_mov_b32 s71, 0xffff0000')
        self.stamp(6)
        e.label('L_task')
        e.reset()
        e(f's_lshr_b32 s54, s{sF}, 1')
        e(f's_cmp_ge_u32 s{sA}, 64\ns_cbranch_scc1 L_noattn')
        e(f's_cmp_le_u32 s{sA}, s54\ns_cbranch_scc1 L_attn')
        e.label('L_noattn')
        e(f's_cmp_ge_u32 s{sF}, 128\ns_cbranch_scc1 L_WEND')
        XR = 11; AS, AF = 16, 24; RING = 32; NR = 32
        e(f's_lshl_b32 s56, s{sF}, 14')
        e(f'buffer_load_dword v{XR}, v{XO}, {s(SRD_X,4)}, s56 offen')
        e(f's_lshl_b32 s57, s54, 8\ns_add_u32 s57, s57, {F_HFL}')
        self.wait_flags(FH, 's57', 12)
        e.reset()
        e(f's_mul_i32 s57, s{sF}, {44*1024}\ns_mul_i32 s58, s{sW}, {11*1024}\ns_add_u32 s57, s57, s58\ns_add_u32 s57, s57, {HH}')
        for k in range(11):
            if k and k % 4 == 0: e('s_add_u32 s57, s57, 4096')
            e(f'buffer_load_dwordx4 {v(RING+4*k,4)}, v{L16}, {WSR}, s57 offen offset:{1024*(k%4)} sc1')
        for k in range(11):
            for p in (0, 1):
                d = v(AF + 4 * p, 4)
                e(f'v_mfma_f32_16x16x32_bf16 {d}, {R(WD(p,k),4)}, {v(RING+4*k,4)}, {"0" if k == 0 else d}')
        e(f's_lshl_b32 s57, s{sF}, 8\ns_add_u32 s57, s57, {F_OFL}')
        self.wait_flags(FO, 's57', 12)
        e.reset()
        e(f's_lshl_b32 s57, s{sF}, 17\ns_lshl_b32 s58, s{sW}, 15\ns_add_u32 s57, s57, s58\ns_add_u32 s57, s57, {OO}')
        for k in range(32):
            if k and k % 4 == 0: e('s_add_u32 s57, s57, 4096')
            e(f'buffer_load_dwordx4 {v(RING+4*k,4)}, v{L16}, {WSR}, s57 offen offset:{1024*(k%4)} sc1')
        for k in range(32):
            for p in (0, 1):
                d = v(AS + 4 * p, 4)
                e(f'v_mfma_f32_16x16x32_bf16 {d}, {R(WO(p,k),4)}, {v(RING+4*k,4)}, {"0" if k == 0 else d}')
        for q in range(4): e(f'ds_write_b128 v{RW}, {v(AS+4*q,4)} offset:{1024*q}')
        e('s_waitcnt lgkmcnt(0)\ns_barrier')
        for w in range(4):
            for q in range(4): e(f'ds_read_b32 v{32+4*w+q}, v{RR} offset:{4096*w+1024*q}')
        e(f'v_xor_b32 v{RW}, 0x4000, v{RW}')
        for q in range(4): e(f'v_add_f32 v{32+q}, v{32+q}, v{36+q}')
        for q in range(4): e(f'v_add_f32 v{40+q}, v{40+q}, v{44+q}')
        e(f'v_xor_b32 v{RR}, 0x4000, v{RR}')
        for q in range(4): e(f'v_add_f32 v{32+q}, v{32+q}, v{40+q}')
        e('v_cvt_pk_bf16_f32 v36, v32, v33\nv_cvt_pk_bf16_f32 v37, v34, v35')
        e('v_lshlrev_b32 v32, 16, v36\nv_and_b32 v33, s71, v36\nv_lshlrev_b32 v34, 16, v37\nv_and_b32 v35, s71, v37')
        e(f's_mov_b32 s57, {fbits(-math.log2(math.e)):#x}')
        e('v_mul_f32 v38, s57, v34\nv_mul_f32 v39, s57, v35\nv_exp_f32 v38, v38\nv_exp_f32 v39, v39')
        e('v_add_f32 v38, 1.0, v38\nv_add_f32 v39, 1.0, v39\nv_rcp_f32 v38, v38\nv_rcp_f32 v39, v39')
        e('v_mul_f32 v34, v34, v38\nv_mul_f32 v35, v35, v39\nv_cvt_pk_bf16_f32 v37, v34, v35')
        e('v_lshlrev_b32 v34, 16, v37\nv_and_b32 v35, s71, v37\nv_mul_f32 v32, v32, v34\nv_mul_f32 v33, v33, v35')
        e('v_cvt_pk_bf16_f32 v36, v32, v33\nv_lshlrev_b32 v32, 16, v36\nv_and_b32 v33, s71, v36')
        e(f'v_lshlrev_b32 v34, 16, v{XR}\nv_and_b32 v35, s71, v{XR}\nv_add_f32 v32, v32, v34\nv_add_f32 v33, v33, v35')
        e('v_cvt_pk_bf16_f32 v36, v32, v33')
        e(f'buffer_store_dword v36, v{XO}, {s(SRD_A,4)}, s56 offen')
        e(f's_add_u32 s{sF}, s{sF}, 14\ns_branch L_task')
        e.label('L_attn')
        e.reset(); e('s_waitcnt vmcnt(0)')
        Q, K, V, KM, VM, S0, S1, SMm, PX, PM, OA = 16, 32, 64, 80, 96, 104, 108, 112, 116, 120, 124
        e(f's_lshl_b32 s56, s{sA}, 19\ns_lshl_b32 s57, s{sH}, 14\ns_add_u32 s56, s56, s57\ns_add_u32 s56, s56, {KV}')
        e(f's_lshl_b32 s57, s{sEH}, 13\ns_add_u32 s57, s57, s56\ns_add_u32 s58, s57, 4096')
        for k in range(4):
            for tk in (0, 1):
                e(f'buffer_load_dwordx4 {v(K+8*k+4*tk,4)}, v{L16}, {WSR}, s56 offen offset:{1024*tk} sc1')
            if k < 3: e('s_add_u32 s56, s56, 4096')
        for u in (0, 1):
            for p in (0, 1):
                e(f'buffer_load_dwordx4 {v(V+8*u+4*p,4)}, v{L16}, {WSR}, s{57+u} offen offset:{2048+1024*p} sc1')
        for k in range(4): e(f'ds_read_b128 {v(Q+4*k,4)}, v{QA} offset:{1024*k}')
        for k in range(4):
            for tk, S_ in ((0, S0), (1, S1)):
                e(f'v_mfma_f32_16x16x32_bf16 {v(S_,4)}, {v(K+8*k+4*tk,4)}, {v(Q+4*k,4)}, {"0" if k == 0 else v(S_,4)}')
        e(f'v_add_u32 v{QA}, 8192, v{QA}')
        e(f's_lshl_b32 s56, s{sH}, 7\ns_add_u32 s56, s56, {F_PROG}')
        self.wait_flags(PG, 's56', 12, thr=f's{sA}')
        e.reset()
        e(f's_lshl_b32 s56, s{sA}, 18\ns_lshl_b32 s57, s{sH}, 13\ns_add_u32 s56, s56, s57\ns_add_u32 s56, s56, {KVM}')
        e(f's_add_u32 s57, s56, 4096\ns_lshl_b32 s58, s{sEH}, 12\ns_add_u32 s58, s58, s56')
        for k in range(4):
            e(f'buffer_load_dwordx4 {v(KM+4*k,4)}, v{L16}, {WSR}, s{56+k//2} offen offset:{2048*(k%2)} sc1')
        for u in (0, 1):
            e(f'buffer_load_dwordx2 {v(VM+4*u,2)}, v{L8}, {WSR}, s58 offen offset:{2048*u+1024} sc1')
        e(f'v_mov_b32 v13, {fbits(-1e9*math.log2(math.e)):#x}')
        for tk, S_ in ((0, S0), (1, S1)):
            for i in range(4):
                e(f'v_mul_f32 v{S_+i}, s{sSC}, v{S_+i}')
                e(f'v_cndmask_b32 v{S_+i}, v13, v{S_+i}, {s(MK+2*(4*tk+i),2)}')
        e(f'v_max3_f32 v14, v{S0}, v{S0+1}, v{S0+2}\nv_max3_f32 v14, v14, v{S0+3}, v{S1}\nv_max3_f32 v14, v14, v{S1+1}, v{S1+2}\nv_max_f32 v14, v14, v{S1+3}')
        for k in range(4):
            e(f'v_mfma_f32_16x16x32_bf16 {v(SMm,4)}, {v(KM+4*k,4)}, {v(Q+4*k,4)}, {"0" if k == 0 else v(SMm,4)}')
        for u in (0, 1): e(f'v_mov_b32 v{VM+4*u+2}, v{VM+4*u+1}\nv_mov_b32 v{VM+4*u+3}, v{VM+4*u}')
        e(f'v_mov_b32 v{PM+1}, 0')
        e(f'v_mul_f32 v{SMm}, s{sSC}, v{SMm}\nv_mul_f32 v{SMm+1}, s{sSC}, v{SMm+1}\nv_max3_f32 v14, v14, v{SMm}, v{SMm+1}')
        self.red_g('v_max_f32', 14, 15)
        vals = [S0 + i for i in range(4)] + [S1 + i for i in range(4)] + [SMm, SMm + 1]
        for x in vals: e(f'v_sub_f32 v{x}, v{x}, v14')
        for x in vals: e(f'v_exp_f32 v{x}, v{x}')
        e(f'v_add_f32 v14, v{vals[0]}, v{vals[1]}')
        for x in vals[2:]: e(f'v_add_f32 v14, v14, v{x}')
        self.red_g('v_add_f32', 14, 15)
        e('v_rcp_f32 v14, v14')
        for x in vals: e(f'v_mul_f32 v{x}, v{x}, v14')
        for tk, S_ in ((0, S0), (1, S1)):
            for hh in (0, 1): e(f'v_cvt_pk_bf16_f32 v{PX+2*tk+hh}, v{S_+2*hh}, v{S_+2*hh+1}')
        e(f'v_cvt_pk_bf16_f32 v{PM}, v{SMm}, v{SMm+1}')
        for u in (0, 1):
            for p in (0, 1):
                d = v(OA + 8 * u + 4 * p, 4)
                e(f'v_mfma_f32_16x16x32_bf16 {d}, {v(V+8*u+4*p,4)}, {v(PX,4)}, 0')
                e(f'v_mfma_f32_16x16x16_bf16 {d}, {v(VM+4*u+2*p,2)}, {v(PM,2)}, {d}')
        e(f's_lshl_b32 s56, s{sA}, 1\ns_add_u32 s56, s56, s{sQT}\ns_lshl_b32 s57, s56, 17\ns_lshl_b32 s58, s{sH}, 12\ns_add_u32 s57, s57, s58')
        e(f's_lshl_b32 s58, s{sEH}, 11\ns_add_u32 s57, s57, s58\ns_add_u32 s57, s57, {OO}')
        e(f's_lshl_b32 s56, s56, 8\ns_lshl_b32 s58, s{sH}, 3\ns_add_u32 s56, s56, s58\ns_lshl_b32 s58, s{sEH}, 2\ns_add_u32 s56, s56, s58\ns_add_u32 s56, s56, {F_OFL}')
        for u in (0, 1):
            for i in range(4): e(f'v_cvt_pk_bf16_f32 v{K+4*u+i}, v{OA+8*u+i}, v{OA+8*u+4+i}')
            e(f'buffer_store_dwordx4 {v(K+4*u,4)}, v{L16}, {WSR}, s57 offen offset:{1024*u} sc1')
        e('s_waitcnt vmcnt(0)')
        e(f'buffer_store_dword v{ONE}, off, {WSR}, s56 sc1')
        e(f's_add_u32 s{sA}, s{sA}, 7\ns_branch L_task')
        e.label('L_WEND')
        e.reset()
        self.stamp(7)
        e('s_branch L_END')

    def chain(self):
        e = self.e; o = self.o
        e.label('L_CHAIN'); e.reset()
        sH = sJ
        LW, LMEM, LTR, LSX, LSM, LO, LZ = 0, 131072, 139264, 144384, 148480, 149504, 152064
        TRS = 1280
        L16, L8, IDX, H1S, H2S, MEMW, MEMR, WST, TRW, KTR, Q0R, Q1R, QQR, SXW, SMW, SMR, OW, OR_, PFA, PFL, FLGV, TMP = \
            0, 1, 2, 3, 4, 5, 6, 9, 10, 11, 12, 13, 14, 15, 16, 17, 18, 19, 20, 21, 22, 23
        SEL, ONES, MEMA, ACK, ACQ, ACV, KX, VX, SX, SM_, ST = 24, 28, 32, 64, 72, 80, 88, 96, 104, 108, 112
        SXR = 23
        seq = []
        for m in 'kqv':
            for sl in (0, 1):
                for p in (0, 1): seq.append((m, sl, p))
        for m in 'kqv':
            for sl in range(2, 8):
                for p in (0, 1): seq.append((m, sl, p))
        for b in range(4):
            for sg in (0, 1):
                for tl in (2 * b, 2 * b + 1): seq.append(('o', sg, tl))
        pool = list(range(256, 512, 8)) + list(range(128, 256, 8))
        home = {}; pos = {}
        for n, key in enumerate(seq):
            pos[key] = n
            home[key] = None if n % 4 == 3 else pool.pop(0)
        assert not pool
        LN = 111
        G, C = 110, 109
        e(f'v_mov_b32 v{LN}, v0\nv_lshrrev_b32 v{G}, 4, v0\nv_and_b32 v{C}, 15, v0')
        e(f'v_lshlrev_b32 v{L8}, 3, v{LN}\nv_lshlrev_b32 v{L16}, 4, v{LN}')
        e(f's_lshl_b32 s54, s{sW}, 15\nv_add_u32 v{WST}, s54, v{L16}')
        sH1S, sH1S2, sH1L, sH2S, sH2L, sKV, sKVM, sT, sSEN, sSC, sPROG, sFL = 60, 61, 62, 63, 64, 65, 66, 67, 68, 69, 70, 71
        e(f's_mov_b32 s{sSEN}, {SENT:#x}\ns_mov_b32 s{sSC}, {fbits(CSC):#x}')
        e(f's_lshl_b32 s54, s{sH}, 2\ns_add_u32 s54, s54, s{sW}\ns_lshl_b32 s{sH1L}, s54, 11\ns_add_u32 s{sH1L}, s{sH1L}, {H1}')
        e(f's_mov_b32 s{sH1S}, {H1}\ns_mov_b32 s{sH1S2}, {H1+4096}')
        for i in range(4): e(f'v_mov_b32 v{SX+i}, s{sSEN}')
        e(f's_xor_b32 s55, s{sH1L}, 0x40000')
        for sb in (sH1L, 55):
            for m in (0, 1): e(f'buffer_store_dwordx4 {v(SX,4)}, v{L16}, {WSR}, s{sb} offen offset:{1024*m}')
        e(f's_lshr_b32 s54, s{sH}, 3\ns_bfe_u32 s55, s{sH}, 0x20001\ns_and_b32 s56, s{sH}, 1')
        e(f's_lshl_b32 s57, s{sW}, 1\ns_add_u32 s57, s57, s56\ns_lshl_b32 s57, s57, 10\ns_lshl_b32 s58, s54, 8\ns_add_u32 s57, s57, s58\ns_lshl_b32 s58, s55, 6\ns_add_u32 s57, s57, s58')
        e(f'v_lshrrev_b32 v100, 2, v{C}\nv_lshlrev_b32 v100, 1, v100\nv_add_u32 v100, v100, v{G}\nv_lshlrev_b32 v100, 4, v100')
        e(f'v_and_b32 v101, 3, v{C}\nv_lshlrev_b32 v101, 2, v101\nv_add3_u32 v{H2S}, v100, v101, s57')
        e(f's_mov_b32 s{sH2S}, {H2}\ns_lshl_b32 s{sH2L}, s{sW}, 11\ns_add_u32 s{sH2L}, s{sH2L}, {H2}')
        self.srd(SRD_A, sMEM, 8192)
        e(f's_lshl_b32 s57, s55, 11\ns_lshl_b32 s58, s54, 8\ns_add_u32 s57, s57, s58\ns_lshl_b32 s58, s56, 7\ns_add_u32 s57, s57, s58\ns_lshl_b32 s58, s{sW}, 2\ns_add_u32 s57, s57, s58')
        e(f'v_lshlrev_b32 v100, 10, v{G}\nv_lshlrev_b32 v101, 4, v{C}\nv_add_u32 v100, v100, v101')
        e(f's_mov_b32 s72, 0x00ff00ff\ns_mov_b32 s73, 0\ns_mov_b32 s74, 0x00ff00ff\ns_mov_b32 s75, 0x00ff00ff')
        e(f's_mov_b64 exec, s[72:73]')
        e(f'buffer_load_dword v101, v100, {s(SRD_A,4)}, s57 offen')
        e(f's_xor_b32 s55, s{sH2S}, 0x2000')
        e(f'buffer_store_dword v{SX}, v{H2S}, {WSR}, s55 offen')
        e(f'v_mov_b32 v102, -1\nv_cmp_eq_u32 vcc, s{sSEN}, v101\nv_cndmask_b32 v101, v101, v102, vcc')
        e(f'buffer_store_dword v101, v{H2S}, {WSR}, s{sH2S} offen')
        e(f's_mov_b64 exec, -1')
        self.srd(SRD_A, sWO, 1 << 22)
        e(f'v_lshlrev_b32 v100, 12, v{G}\nv_lshlrev_b32 v101, 4, v{C}')
        e(f's_lshl_b32 s54, s{sH}, 17\ns_lshl_b32 s55, s{sW}, 8\ns_add_u32 s54, s54, s55\nv_add3_u32 v100, v100, v101, s54')
        TB = 24
        def stage_write(key, regs):
            sl = pos[key] >> 2
            e(f'ds_write_b128 v{WST}, {v(regs,4)} offset:{sl*2048}\nds_write_b128 v{WST}, {v(regs+4,4)} offset:{sl*2048+1024}')
        def arrive():
            e('s_barrier')
            L = self.lab('arr')
            e(f's_cmp_lg_u32 s{sW}, 0\ns_cbranch_scc1 {L}')
            e.raw(f'v_mov_b32 v102, 4'); e.raw('v_mov_b32 v103, 1'); e.raw('s_mov_b64 exec, 1')
            e.raw(f'global_atomic_add v102, v103, {s(sDBG,2)}'); e.raw('s_mov_b64 exec, -1'); e.raw('s_waitcnt vmcnt(0)')
            e.label(L)
        for sg in (0, 1):
            for rho in range(8):
                row = 64 * sg + 16 * (rho >> 2) + 2 * ((rho >> 1) & 1) + 32 * (rho & 1)
                e(f's_mov_b32 s54, {row*1024}')
                e(f'buffer_load_dwordx4 {v(TB+8*rho,4)}, v100, {s(SRD_A,4)}, s54 offen')
                e(f'buffer_load_dwordx4 {v(TB+8*rho+4,4)}, v100, {s(SRD_A,4)}, s54 offen offset:1024')
            for tl in range(8):
                key = ('o', sg, tl); d = home[key]
                for rho in range(8):
                    X, Y = TB + 8 * rho + (tl >> 1), TB + 8 * rho + 4 + (tl >> 1)
                    sel = sPHI if tl & 1 else sPLO
                    if d is None: e(f'v_perm_b32 v{ST+rho}, v{Y}, v{X}, s{sel}')
                    elif d < 256: e(f'v_perm_b32 v{d+rho}, v{Y}, v{X}, s{sel}')
                    else: e(f'v_perm_b32 v102, v{Y}, v{X}, s{sel}\nv_accvgpr_write_b32 a{d-256+rho}, v102')
                if d is None:
                    stage_write(key, ST); e('s_waitcnt lgkmcnt(0)')
            if sg == 0: arrive()
        self.srd(SRD_A, sWK, 1 << 22); self.srd(SRD_B, sWQ, 1 << 22); self.srd(SRD_X, sWV, 1 << 22)
        e(f'v_lshrrev_b32 v100, 1, v{G}\nv_lshlrev_b32 v100, 20, v100\nv_and_b32 v101, 1, v{G}\nv_lshlrev_b32 v101, 17, v101\nv_add_u32 v100, v100, v101')
        e(f'v_lshlrev_b32 v101, 2, v{C}\ns_lshl_b32 s54, s{sH}, 8\ns_lshl_b32 s55, s{sW}, 6\ns_add_u32 s54, s54, s55\nv_add3_u32 v100, v100, v101, s54\nv_add_u32 v101, 8192, v100')
        for u in range(4):
            e(f's_add_u32 s{56+u}, s{sW}, {u}\ns_and_b32 s{56+u}, s{56+u}, 3\ns_lshl_b32 s{56+u}, s{56+u}, 14')
        groups = []
        for m, srd in (('k', SRD_A), ('q', SRD_B), ('v', SRD_X)):
            for sl in range(8):
                ents = []; post = []
                dst = []
                for p in (0, 1):
                    key = (m, sl, p)
                    if home[key] is None:
                        dst.append(ST); post.append(key)
                    else: dst.append(home[key])
                for rho in range(8):
                    row = 256 * (rho >> 2) + 8 * ((rho >> 1) & 1) + 32 * (rho & 1) + 64 * (sl & 1)
                    ents.append((f's_add_u32 s54, s{56+(sl>>1)}, {row*8192}', dst[0] + rho, dst[1] + rho))
                def mk(post=post):
                    def f():
                        for key in post:
                            stage_write(key, ST); e('s_waitcnt lgkmcnt(0)')
                    return f
                groups.append((srd, ents, mk()))
        self.load_pairs(groups, 24, 3, 100, 101)
        self.stamp(2, (100,))
        e(f'v_bfe_u32 v100, v{C}, 1, 1\nv_mov_b32 v101, 0x4444\nv_mov_b32 v102, 0xeeee\nv_cmp_eq_u32 vcc, 1, v100\nv_cndmask_b32 v{IDX}, v101, v102, vcc')
        e(f'v_lshlrev_b32 v101, 1, v{G}\nv_lshrrev_b32 v102, 3, v{C}\nv_add_u32 v101, v101, v102\nv_lshlrev_b32 v101, 13, v101')
        e(f'v_and_b32 v103, 7, v{C}\nv_lshlrev_b32 v104, 3, v103\ns_lshl_b32 s54, s{sW}, 16\ns_lshl_b32 s55, s{sH}, 6\ns_add_u32 s54, s54, s55\nv_add3_u32 v{H1S}, v101, v104, s54')
        e(f's_lshl_b32 s54, s{sW}, 11\ns_add_u32 s54, s54, {LMEM}\nv_add_u32 v{MEMW}, s54, v{L16}')
        for u in (1, 2, 3):
            e(f's_add_u32 s54, s{sW}, {u}\ns_and_b32 s54, s54, 3\ns_lshl_b32 s54, s54, 11\ns_add_u32 s54, s54, {LMEM}\nv_add_u32 v{MEMR+u-1}, s54, v{L16}')
        e(f's_mul_i32 s56, s{sW}, {TRS}\ns_add_u32 s56, s56, {LTR}')
        e(f'v_lshrrev_b32 v101, 2, v{C}\nv_mul_u32_u24 v101, 144, v101\nv_lshlrev_b32 v104, 5, v{G}\nv_and_b32 v105, 3, v{C}\nv_lshlrev_b32 v105, 2, v105')
        e(f'v_add3_u32 v101, v101, v104, v105\nv_add_u32 v{TRW}, s56, v101')
        e(f'v_lshrrev_b32 v101, 2, v{C}\nv_lshlrev_b32 v101, 1, v101\nv_and_b32 v104, 1, v{C}\nv_add_u32 v106, v101, v104')
        e(f'v_mul_u32_u24 v107, 144, v{G}\nv_lshlrev_b32 v101, 4, v106\nv_add3_u32 v{KTR}, v107, v101, s56')
        e(f'v_lshlrev_b32 v101, 4, v103\ns_add_u32 s57, s56, 640\nv_add3_u32 v{QQR}, v107, v101, s57')
        e(f'v_mov_b32 v101, {LZ}\nv_cmp_eq_u32 vcc, 0, v102\nv_cndmask_b32 v{Q0R}, v101, v{QQR}, vcc\nv_cndmask_b32 v{Q1R}, v{QQR}, v101, vcc')
        e(f's_lshl_b32 s54, s{sW}, 10\ns_add_u32 s54, s54, {LSX}\nv_add_u32 v{SXW}, s54, v{L16}')
        e(f'v_add_u32 v{SXR}, {LSX}, v{L16}')
        e(f'v_lshlrev_b32 v101, 3, v{G}\nv_add_u32 v101, v101, v103\nv_lshlrev_b32 v104, 5, v101\nv_add_u32 v{SMR}, {LSM}, v104')
        e(f's_lshl_b32 s54, s{sW}, 3\nv_add_u32 v{SMW}, s54, v{SMR}')
        e(f'v_lshlrev_b32 v104, 4, v101\ns_mul_i32 s54, s{sW}, 640\ns_add_u32 s54, s54, {LO}\nv_add_u32 v{OW}, s54, v104')
        e(f'v_mul_u32_u24 v101, 640, v100\nv_lshlrev_b32 v104, 7, v{G}\nv_lshlrev_b32 v105, 4, v106\nv_add3_u32 v101, v101, v104, v105\nv_add_u32 v{OR_}, {LO}, v101')
        e(f'v_and_b32 v101, 31, v{LN}\nv_lshlrev_b32 v{PFA}, 7, v101')
        e(f'v_mov_b32 v101, 0x3f80\nv_mov_b32 v104, 0x3f800000\nv_mov_b32 v105, 0')
        e(f'v_cmp_eq_u32 vcc, 0, v{C}\nv_cndmask_b32 v{SEL}, v105, v101, vcc\nv_cmp_eq_u32 vcc, 1, v{C}\nv_cndmask_b32 v{SEL}, v{SEL}, v104, vcc')
        e(f'v_cmp_eq_u32 vcc, 4, v{C}\nv_cndmask_b32 v{SEL+1}, v105, v101, vcc\nv_cmp_eq_u32 vcc, 5, v{C}\nv_cndmask_b32 v{SEL+1}, v{SEL+1}, v104, vcc')
        e(f'v_mov_b32 v{SEL+2}, v{SEL}\nv_mov_b32 v{SEL+3}, v{SEL+1}')
        for i in range(4): e(f'v_mov_b32 v{ONES+i}, 0x3f803f80')
        for i in range(4): e(f'v_mov_b32 v{SX+i}, 0')
        e(f'v_mov_b32 v101, {LZ}\nds_write_b128 v101, {v(SX,4)}')
        FLA = L8
        e(f's_lshl_b32 s54, s{sH}, 14\ns_lshl_b32 s55, s{sW}, 12\ns_add_u32 s{sKV}, s54, s55\ns_add_u32 s{sKV}, s{sKV}, {KV}')
        e(f's_lshl_b32 s54, s{sH}, 13\ns_lshl_b32 s55, s{sW}, 11\ns_add_u32 s{sKVM}, s54, s55\ns_add_u32 s{sKVM}, s{sKVM}, {KVM}')
        e(f's_lshl_b32 s54, s{sH}, 7\ns_lshl_b32 s55, s{sW}, 2\ns_add_u32 s{sPROG}, s54, s55\ns_add_u32 s{sPROG}, s{sPROG}, {F_PROG}')
        e(f's_lshl_b32 s54, s{sH}, 10\ns_lshl_b32 s55, s{sW}, 8\ns_add_u32 s{sFL}, s54, s55\ns_add_u32 s{sFL}, s{sFL}, {F_KVX}')
        e(f's_mov_b32 s{sT}, 0')
        e('s_waitcnt lgkmcnt(0)')
        self.wait_counter(4, 32, 100)
        self.wait_counter(192, 128, 100)
        def flag_spin(off):
            L = self.lab('fs'); D = self.lab('fsd')
            e.label(L)
            e.raw(f'buffer_load_dword v{FLGV}, off, {WSR}, s{sFL} offset:{off} sc1'); e.raw('s_waitcnt vmcnt(0)')
            e.raw(f'v_cmp_eq_u32 vcc, 0, v{FLGV}'); e.raw(f's_cbranch_vccz {D}')
            self.spin_check()
            e.raw('s_sleep 1'); e.raw(f's_branch {L}')
            e.label(D)
        flag_spin(0); flag_spin(4)
        e(f's_add_u32 s{sFL}, s{sFL}, 8')
        e('s_barrier')
        self.stamp(3, (100,))
        def refill(n):
            sl = (n >> 2) & 15; r = ST + 8 * (sl & 1)
            e(f'ds_read_b128 {v(r,4)}, v{WST} offset:{sl*2048}\nds_read_b128 {v(r+4,4)}, v{WST} offset:{sl*2048+1024}')
        OAq = 68
        def S(n, fill=None):
            m, sl, p = seq[n]
            if m == 'o': d, A = MEMA + 4 * p, OAq + 4 * sl
            else: d, A = {'k': ACK, 'q': ACQ, 'v': ACV}[m] + 4 * p, MEMA + 4 * sl
            hm = home[seq[n]]
            B = R(hm, 8) if hm is not None else v(ST + 8 * ((n >> 2) & 1), 8)
            e(f'v_smfmac_f32_16x16x64_bf16 {v(d,4)}, {v(A,4)}, {B}, v{IDX}')
            if hm is None: refill(n + 8)
            if fill: e(fill)
        def zero(r0, n):
            for r in range(r0, r0 + n, 2): e(f'v_mov_b64 {v(r,2)}, 0')
        def check(r, retry, tag):
            e(f'v_max3_u32 v{SM_}, v{r}, v{r+1}, v{r+2}\nv_max3_u32 v{SM_+1}, v{r+3}, v{r+4}, v{r+5}\nv_max3_u32 v{SM_}, v{SM_}, v{r+6}, v{r+7}\nv_max_u32 v{SM_}, v{SM_}, v{SM_+1}')
            e(f'v_cmp_le_u32 vcc, s{sSEN}, v{SM_}\ns_cbranch_vccnz L_slow{tag}')
            e.label(f'L_ok{tag}')
        def slow(r, retry, tag):
            e.label(f'L_slow{tag}')
            e.raw(f'v_cmp_eq_u32 s[76:77], s{sSEN}, v{r}')
            for i in range(1, 8):
                e.raw(f'v_cmp_eq_u32 vcc, s{sSEN}, v{r+i}'); e.raw('s_or_b64 s[76:77], s[76:77], vcc')
            e.raw(f's_cbranch_scc0 L_ok{tag}')
            if self.dev: e.raw(f's_add_u32 s{92+tag}, s{92+tag}, 1')
            self.spin_check(lim=1 << 19)
            e.raw(f's_branch {retry}')
        def nops(cyc):
            n = cyc // 4
            while n > 0:
                k = min(n, 16); e(f's_nop {k-1}'); n -= k
        refill(3); refill(7)
        zero(ACK, 24)
        for i in range(4): e(f'v_mov_b32 v{SX+i}, s{sSEN}')
        if self.dev: e('s_mov_b32 s93, 0\ns_mov_b32 s94, 0\ns_memtime s[88:89]\ns_waitcnt lgkmcnt(0)')
        e('s_waitcnt lgkmcnt(0)')
        e.raw('.p2align 6')
        e.label('L_p2')
        e.reset()
        for m in (0, 1): e(f'buffer_load_dwordx4 {v(MEMA+4*m,4)}, v{L16}, {WSR}, s{sH2L} offen offset:{1024*m} sc1')
        e('s_waitcnt vmcnt(0)')
        check(MEMA, 'L_p2', 2)
        for m in (0, 1): e(f'ds_write_b128 v{MEMW}, {v(MEMA+4*m,4)} offset:{1024*m}')
        S(0, f'v_mov_b32 v{SM_}, s{sT}')
        for m in (0, 1): e(f'buffer_load_dwordx4 {v(KX+4*m,4)}, v{L16}, {WSR}, s{sKV} offen offset:{1024*m} sc1')
        S(1)
        e(f's_xor_b32 s54, s{sH1L}, 0x40000\ns_xor_b32 s{sH2S}, s{sH2S}, 0x2000')
        S(2)
        e.lgkm_for_writes()
        e('s_barrier')
        for u in range(3):
            for m in (0, 1): e(f'ds_read_b128 {v(MEMA+8+8*u+4*m,4)}, v{MEMR+u} offset:{1024*m}')
        S(3)
        S(4)
        e(f'buffer_store_dwordx4 {v(SX,4)}, v{L16}, {WSR}, s54 offen')
        S(5)
        e(f'buffer_store_dwordx4 {v(SX,4)}, v{L16}, {WSR}, s54 offen offset:1024')
        S(6)
        e(f's_mov_b64 exec, s[72:73]\nbuffer_store_dword v{SX}, v{H2S}, {WSR}, s{sH2S} offen\ns_mov_b64 exec, -1')
        S(7)
        for m in (0, 1): e(f'buffer_load_dwordx4 {v(VX+4*m,4)}, v{L16}, {WSR}, s{sKV} offen offset:{2048+1024*m} sc1')
        S(8)
        e(f'buffer_store_dword v{SM_}, off, {WSR}, s{sPROG} sc1')
        e(f's_add_u32 s{sKV}, s{sKV}, 0x80000')
        S(9)
        e(f'buffer_load_dword v{PFL}, v{PFA}, {WSR}, s{sKV} offen sc1')
        e(f'buffer_load_dword v{FLGV}, off, {WSR}, s{sFL} sc1')
        for n in range(10, 27): S(n)
        kp = [f'v_add_f32 v{ACK}, v{ACK}, v{ACK+2}', f'v_add_f32 v{ACK+1}, v{ACK+1}, v{ACK+3}', f'v_add_f32 v{ACK+4}, v{ACK+4}, v{ACK+6}', f'v_add_f32 v{ACK+5}, v{ACK+5}, v{ACK+7}',
              f'v_cvt_pk_bf16_f32 v{ACK+2}, v{ACK}, v{ACK+4}', f'v_cvt_pk_bf16_f32 v{ACK+3}, v{ACK+1}, v{ACK+5}']
        for i, n in enumerate(range(27, 33)): S(n, kp[i])
        S(33)
        e(f'ds_write2_b32 v{TRW}, v{ACK+2}, v{ACK+3} offset0:0 offset1:4')
        e(f'ds_read_b128 {v(ACK,4)}, v{KTR}')
        S(34); S(35)
        S(36); S(37)
        e(f'v_add_f32 v{ACQ}, v{ACQ}, v{ACQ+2}\nv_add_f32 v{ACQ+1}, v{ACQ+1}, v{ACQ+3}\nv_add_f32 v{ACQ+4}, v{ACQ+4}, v{ACQ+6}\nv_add_f32 v{ACQ+5}, v{ACQ+5}, v{ACQ+7}')
        e(f'v_cvt_pk_bf16_f32 v{ACQ+2}, v{ACQ}, v{ACQ+4}\nv_cvt_pk_bf16_f32 v{ACQ+3}, v{ACQ+1}, v{ACQ+5}')
        e(f'ds_write2_b32 v{TRW}, v{ACQ+2}, v{ACQ+3} offset0:160 offset1:164')
        QB0, QB1, QQ = 68, 72, 76
        e(f'ds_read_b128 {v(QB0,4)}, v{Q0R}\nds_read_b128 {v(QB1,4)}, v{Q1R}\nds_read_b128 {v(QQ,4)}, v{QQR}')
        S(38)
        e(f'buffer_store_dwordx4 {v(ACK,4)}, v{L16}, {WSR}, s{sKVM} offen sc1')
        for n in range(39, 43): S(n)
        e(f'v_mfma_f32_16x16x32_bf16 {v(SX,4)}, {v(KX,4)}, {v(QB0,4)}, 0')
        e(f'v_mfma_f32_16x16x32_bf16 {v(SX,4)}, {v(KX+4,4)}, {v(QB1,4)}, {v(SX,4)}')
        e(f'v_mfma_f32_16x16x32_bf16 {v(SM_,4)}, {v(ACK,4)}, {v(QQ,4)}, 0')
        S(43)
        e(f'ds_write_b128 v{SXW}, {v(SX,4)}')
        e(f'ds_write_b64 v{SMW}, {v(SM_,2)}')
        S(44); S(45); S(46)
        e.lgkm_for_writes()
        e('s_barrier')
        RX = [88, 92, 68, 104]; RM = 72
        for w in range(4): e(f'ds_read_b128 {v(RX[w],4)}, v{SXR} offset:{1024*w}')
        e(f'ds_read_b128 {v(RM,4)}, v{SMR}\nds_read_b128 {v(RM+4,4)}, v{SMR} offset:16')
        S(47)
        for i in range(4): e(f'v_add_f32 v{RX[0]+i}, v{RX[0]+i}, v{RX[1]+i}')
        for i in range(4): e(f'v_add_f32 v{RX[2]+i}, v{RX[2]+i}, v{RX[3]+i}')
        for i in range(4): e(f'v_add_f32 v{RX[0]+i}, v{RX[0]+i}, v{RX[2]+i}')
        e(f'v_pk_add_f32 {v(RM,2)}, {v(RM,2)}, {v(RM+2,2)}\nv_pk_add_f32 {v(RM+4,2)}, {v(RM+4,2)}, {v(RM+6,2)}\nv_pk_add_f32 {v(RM,2)}, {v(RM,2)}, {v(RM+4,2)}')
        M0, M1 = 108, 109
        e(f'v_max3_f32 v{M0}, v88, v89, v90\nv_max3_f32 v{M1}, v91, v{RM}, v{RM+1}\nv_max_f32 v{M0}, v{M0}, v{M1}')
        e(f'v_add_f32 v{ACV}, v{ACV}, v{ACV+2}\nv_add_f32 v{ACV+1}, v{ACV+1}, v{ACV+3}')
        e(f'v_max_f32_dpp v{M0}, v{M0}, v{M0} row_ror:8 row_mask:0xf bank_mask:0xf')
        e(f'v_mov_b32 v{M1}, v{M0}')
        e(f'v_add_f32 v{ACV+4}, v{ACV+4}, v{ACV+6}\nv_add_f32 v{ACV+5}, v{ACV+5}, v{ACV+7}')
        e(f'v_permlane16_swap_b32 v{M0}, v{M1}\nv_max_f32 v{M0}, v{M0}, v{M1}\nv_mov_b32 v{M1}, v{M0}')
        e(f'v_cvt_pk_bf16_f32 v{ACV}, v{ACV}, v{ACV+1}\nv_cvt_pk_bf16_f32 v{ACV+1}, v{ACV+4}, v{ACV+5}')
        e(f'v_permlane32_swap_b32 v{M0}, v{M1}\nv_max_f32 v{M0}, v{M0}, v{M1}\nv_mul_f32 v{M0}, s{sSC}, v{M0}')
        e(f'buffer_store_dwordx2 {v(ACV,2)}, v{L8}, {WSR}, s{sKVM} offen offset:1024 sc1')
        e(f's_cmp_eq_u32 s{sT}, 63\ns_cbranch_scc1 L_CEND')
        vals = [88, 89, 90, 91, RM, RM + 1]
        for x in vals: e(f'v_fma_f32 v{x}, v{x}, s{sSC}, -v{M0}')
        for x in vals: e(f'v_exp_f32 v{x}, v{x}')
        PX, PM, LA, OE, OO_ = 92, 68, 104, 108, 76
        e(f'v_cvt_pk_bf16_f32 v{PX}, v88, v89\nv_cvt_pk_bf16_f32 v{PX+1}, v90, v91\nv_cvt_pk_bf16_f32 v{PM}, v{RM}, v{RM+1}\nv_mov_b32 v{PM+1}, 0')
        e(f'v_mov_b32_dpp v{PX+2}, v{PX} row_ror:8 row_mask:0xf bank_mask:0xf\nv_mov_b32_dpp v{PX+3}, v{PX+1} row_ror:8 row_mask:0xf bank_mask:0xf')
        e(f'v_mov_b32 v{ACV+2}, v{ACV+1}\nv_mov_b32 v{ACV+3}, v{ACV}')
        e(f'v_mfma_f32_16x16x32_bf16 {v(LA,4)}, {v(ONES,4)}, {v(PX,4)}, 0')
        e(f'v_mfma_f32_16x16x16_bf16 {v(LA,4)}, {v(ONES,2)}, {v(PM,2)}, {v(LA,4)}')
        zero(MEMA, 4)
        e(f'v_mfma_f32_16x16x32_bf16 {v(OE,4)}, {v(VX,4)}, {v(PX,4)}, 0')
        zero(MEMA + 4, 4)
        e(f'v_mfma_f32_16x16x16_bf16 {v(OE,4)}, {v(ACV,2)}, {v(PM,2)}, {v(OE,4)}')
        zero(MEMA + 8, 4)
        e(f'v_mfma_f32_16x16x32_bf16 {v(OO_,4)}, {v(VX+4,4)}, {v(PX,4)}, 0')
        zero(MEMA + 12, 4)
        e(f'v_mfma_f32_16x16x16_bf16 {v(OO_,4)}, {v(ACV+2,2)}, {v(PM,2)}, {v(OO_,4)}')
        e(f'v_rcp_f32 v{LA}, v{LA}')
        for i in range(4): e(f'v_mul_f32 v{OE+i}, v{OE+i}, v{LA}')
        for i in range(4): e(f'v_mul_f32 v{OO_+i}, v{OO_+i}, v{LA}')
        for i in range(4): e(f'v_cvt_pk_bf16_f32 v{88+i}, v{OE+i}, v{OO_+i}')
        e(f's_mov_b64 exec, s[74:75]\nds_write_b128 v{OW}, {v(88,4)}\ns_mov_b64 exec, -1')
        zero(MEMA + 16, 16)
        e.lgkm_for_writes()
        e('s_barrier')
        e(f'ds_read_b128 {v(OAq,4)}, v{OR_}\nds_read_b128 {v(OAq+4,4)}, v{OR_} offset:1280')
        e(f's_add_u32 s{sKVM}, s{sKVM}, 0x40000\ns_add_u32 s{sT}, s{sT}, 1')
        def post(b):
            t0, t1 = MEMA + 8 * b, MEMA + 8 * b + 4
            return [f'v_add_f32 v{t0}, v{t0}, v{t0+2}', f'v_add_f32 v{t0+1}, v{t0+1}, v{t0+3}', f'v_add_f32 v{t1}, v{t1}, v{t1+2}', f'v_add_f32 v{t1+1}, v{t1+1}, v{t1+3}',
                    f'v_cvt_pk_bf16_f32 v{88+2*b}, v{t0}, v{t1}', f'v_cvt_pk_bf16_f32 v{89+2*b}, v{t0+1}, v{t1+1}',
                    f'buffer_store_dwordx2 {v(88+2*b,2)}, v{H1S}, {WSR}, s{sH1S if b < 2 else sH1S2} offen offset:{2048*(b&1)}']
        for n in range(48, 54): S(n)
        pend = []
        for b in range(4):
            pend = post(b)
            nxt = [n for n in range(54 + 4 * b, 58 + 4 * b) if n < 64]
            k = 0
            for n in nxt:
                take = 2 if k in (0, 2) else (2 if k == 4 else 1)
                e('\n'.join(pend[k:k + take])); k += take
                S(n)
            e('\n'.join(pend[k:]))
        nops(o.get('d1', 300))
        e.label('L_p1')
        e.reset(dsq=e.dsq)
        P1 = 64
        for m in range(4): e(f'buffer_load_dwordx2 {v(P1+2*m,2)}, v{L8}, {WSR}, s{sH1L} offen offset:{512*m} sc1')
        e('s_waitcnt vmcnt(0)')
        e(f'v_mfma_f32_16x16x32_bf16 {v(72,4)}, {v(SEL,4)}, {v(P1,4)}, 0')
        e(f'v_mfma_f32_16x16x32_bf16 {v(72,4)}, {v(SEL,4)}, {v(P1+4,4)}, {v(72,4)}')
        check(P1, 'L_p1', 1)
        e(f'v_add_f32_dpp v72, v72, v72 row_ror:8 row_mask:0xf bank_mask:0xf\nv_add_f32_dpp v73, v73, v73 row_ror:8 row_mask:0xf bank_mask:0xf')
        e(f'v_cvt_pk_bf16_f32 v{PFL}, v72, v73')
        e(f's_mov_b64 exec, s[72:73]\nbuffer_store_dword v{PFL}, v{H2S}, {WSR}, s{sH2S} offen\ns_mov_b64 exec, -1')
        zero(ACK, 24)
        for i in range(4): e(f'v_mov_b32 v{SX+i}, s{sSEN}')
        e(f's_xor_b32 s{sH1S}, s{sH1S}, 0x40000\ns_xor_b32 s{sH1S2}, s{sH1S2}, 0x40000\ns_xor_b32 s{sH1L}, s{sH1L}, 0x40000\ns_xor_b32 s{sH2L}, s{sH2L}, 0x2000')
        e(f'v_cmp_ne_u32 vcc, 0, v{FLGV}\ns_cbranch_vccnz L_fok')
        e(f's_cmp_ge_u32 s{sT}, 63\ns_cbranch_scc1 L_fok')
        flag_spin(0)
        e.label('L_fok')
        e(f's_add_u32 s{sFL}, s{sFL}, 4')
        e('s_waitcnt lgkmcnt(0)')
        nops(o.get('d2', 200))
        e('s_branch L_p2')
        slow(MEMA, 'L_p2', 2)
        slow(P1, 'L_p1', 1)
        e.label('L_CEND')
        e.reset()
        e(f's_waitcnt vmcnt(0) lgkmcnt(0)\nv_mov_b32 v{SM_}, 64\nbuffer_store_dword v{SM_}, off, {WSR}, s{sPROG} sc1')
        if self.dev:
            e('s_memtime s[90:91]\ns_waitcnt lgkmcnt(0)\ns_sub_u32 s90, s90, s88')
            e(f's_lshl_b32 s97, s98, 8\ns_lshl_b32 s99, s{sW}, 6\ns_add_u32 s97, s97, s99\ns_add_u32 s97, s97, {STP+32}')
            e(f'v_mov_b32 v100, s90\nv_mov_b32 v101, s93\nv_mov_b32 v102, s94\nv_mov_b32 v103, s{sSPIN}\nbuffer_store_dwordx4 v[100:103], off, {WSR}, s97')
        self.stamp(7, (100,))

    def build(self):
        e = self.e
        self.prologue()
        self.ln(); self.stamp(1)
        self.qkv(); self.ffn1(); self.tailphase()
        self.chain()
        e.label('L_END')
        e('s_endpgm')
        body = fix_hazards(e.lines)
        hdr = open('recurrent_scan__memory_aug_recurrent_mem_tr__glu_gated_reglu__prompt.s.ref').read().split('\n')
        top = [l for l in hdr if l.startswith(';') and '@launch' not in l and not l.startswith('; Override') and not l.startswith('; grid=')]
        out = top + ['; @launch grid=(256,1,1) block=(256,1,1) lds=163840', '.amdgcn_target "amdgcn-amd-amdhsa--gfx950"', '.text', f'.globl {KNAME}', '.p2align 8', f'.type {KNAME},@function', f'{KNAME}:']
        out += body
        out += ['.section .rodata,"a"', '.p2align 6', f'.amdhsa_kernel {KNAME}', '  .amdhsa_next_free_vgpr 512', '  .amdhsa_next_free_sgpr 102', '  .amdhsa_accum_offset 256',
                '  .amdhsa_group_segment_fixed_size 0', '  .amdhsa_kernarg_size 112', '  .amdhsa_user_sgpr_count 2', '  .amdhsa_user_sgpr_kernarg_segment_ptr 1',
                '  .amdhsa_system_sgpr_workgroup_id_x 1', '  .amdhsa_float_denorm_mode_32 3', '.end_amdhsa_kernel', '']
        return '\n'.join(out)

if __name__ == '__main__':
    import json
    dev = 'dev' in sys.argv[2:]
    opts = {}
    for a_ in sys.argv[2:]:
        if '=' in a_:
            k, x = a_.split('='); opts[k] = int(x)
    open(sys.argv[1], 'w').write(Gen(dev, opts).build())
```

```python
import sys, math
sys.path.insert(0, 'gen')
from asmlib import *

KNAME = 'recurrent_scan__memory_aug_recurrent_mem_tr__glu_gated_reglu__prompt_kernel'
XN   = 0x0000000
FLG  = 0x0200000
F_KVX, F_OFL, F_HFL, F_PROG = FLG, FLG + 0x8000, FLG + 0x10000, FLG + 0x14000
H1   = 0x0300000
H2   = 0x0380000
STP  = 0x0390000
DUM  = 0x0500000
KV   = 0x1000000
KVM  = 0x3040000
OO   = 0x4100000
HH   = 0x5100000
WS_BYTES = 0x10000000
SENT = 0xFFBFFFBF
CSC = (128 ** -0.5) * math.log2(math.e)
import struct
def fbits(x): return struct.unpack('<I', struct.pack('<f', x))[0]

sX, sMEM, sWQ, sWK, sWV, sWO, sWG, sWU, sWD, sOUT, sDBG, sWS = 4, 6, 8, 10, 12, 14, 20, 22, 24, 26, 28, 30
sW, sXCC, sJ = 32, 33, 34
SRD_WS, SRD_A, SRD_B, SRD_X = 36, 40, 44, 48
sPLO, sPHI = 52, 53
sSPIN = 35
WSR = s(SRD_WS, 4)

class Gen:
    def __init__(self, dev=False, opts=None):
        self.e = Emitter(); self.dev = dev; self.o = opts or {}
        self.uid = 0
    def lab(self, p):
        self.uid += 1; return f'L_{p}_{self.uid}'
    def srd(self, d, ptr, nbytes):
        e = self.e
        e(f's_mov_b32 s{d}, s{ptr}\ns_and_b32 s{d+1}, s{ptr+1}, 0xffff\ns_mov_b32 s{d+2}, {nbytes:#x}\ns_mov_b32 s{d+3}, 0x20000')
    def stamp(self, idx, vt=(112,)):
        if not self.dev: return
        e = self.e; t = vt[0]
        sv = (list(e.dsq), list(e.vmq))
        e.raw('s_memrealtime s[96:97]')
        e.raw('s_waitcnt lgkmcnt(0)')
        e.raw(f's_lshl_b32 s97, s98, 8')
        e.raw(f's_lshl_b32 s99, s{sW}, 6')
        e.raw(f's_add_u32 s97, s97, s99')
        e.raw(f's_add_u32 s97, s97, {STP + idx*4}')
        e.raw(f'v_mov_b32 v{t}, s96')
        e.raw(f'buffer_store_dword v{t}, off, {WSR}, s97')
        e.raw('s_waitcnt vmcnt(0)')
        e.reset()
    def tick(self, k, base=76):
        if not self.dev or not self.o.get('tick'): return
        e = self.e
        e.raw('s_memtime s[90:91]'); e.raw('s_waitcnt lgkmcnt(0)'); e.dsq = []
        if k is not None:
            e.raw('s_sub_u32 s91, s90, s88'); e.raw(f's_add_u32 s{base+k}, s{base+k}, s91')
        e.raw('s_mov_b32 s88, s90')
    def tick_init(self, n, base=76):
        if not self.dev or not self.o.get('tick'): return
        for k in range(n): self.e.raw(f's_mov_b32 s{base+k}, 0')
    def tick_dump(self, n, slot, vt, base=76):
        if not self.dev or not self.o.get('tick'): return
        e = self.e
        e.raw(f's_lshl_b32 s97, s98, 8'); e.raw(f's_lshl_b32 s99, s{sW}, 6'); e.raw('s_add_u32 s97, s97, s99')
        e.raw(f's_add_u32 s97, s97, {STP + 0x10000*(slot+1)}')
        for k in range(n):
            e.raw(f'v_mov_b32 v{vt}, s{base+k}'); e.raw(f'buffer_store_dword v{vt}, off, {WSR}, s97 offset:{4*k}')
        e.raw('s_waitcnt vmcnt(0)'); e.vmq = []
    def ct(self, tag):
        if not (self.dev and self.o.get('tick')): return
        z = tag.split('.')[0]
        if z != '*' and str(self.o.get('zoom', 0)) not in z: return
        k = len(self.cts); self.cts.append(tag); assert k < 11
        self.e.raw(f's_memtime s[{4+2*k}:{5+2*k}]')
    def ct_last(self):
        if self.dev and self.o.get('tick'): self.e.raw('s_memtime s[26:27]')
    def ct_init(self):
        self.cts = []
        if self.dev and self.o.get('tick'):
            for k in range(11): self.e.raw(f's_mov_b32 s{78+k}, 0')
            self.ct_last()
    def ct_cost(self):
        return 8 * len(self.cts)
    def ct_acc(self):
        if not (self.dev and self.o.get('tick')): return
        e = self.e
        for k in range(len(self.cts)):
            p = 26 if k == 0 else 4 + 2 * (k - 1)
            e.raw(f's_sub_u32 s91, s{4+2*k}, s{p}'); e.raw(f's_add_u32 s{78+k}, s{78+k}, s91')
        sys.stderr.write('stamps: %s\n' % self.cts)
    def spin_check(self, fail='L_END', lim=1 << 17):
        e = self.e
        e(f's_add_u32 s{sSPIN}, s{sSPIN}, 1\ns_cmp_gt_u32 s{sSPIN}, {lim}\ns_cbranch_scc1 {fail}')
    def wait_counter(self, off, target, vt):
        e = self.e; L = self.lab('wc'); D = self.lab('wcd')
        e(f'v_mov_b32 v{vt}, {off}')
        e.label(L)
        e(f'global_load_dword v{vt+1}, v{vt}, {s(sDBG,2)} sc1')
        e('s_waitcnt vmcnt(0)')
        e(f'v_readfirstlane_b32 s54, v{vt+1}')
        e(f's_cmp_ge_u32 s54, {target}\ns_cbranch_scc1 {D}')
        self.spin_check()
        e(f's_sleep 2\ns_branch {L}')
        e.label(D)
    def wait_flags(self, voff, soff, vt, thr=None):
        e = self.e; L = self.lab('wf'); D = self.lab('wfd')
        e.label(L)
        e(f'buffer_load_dword v{vt}, v{voff}, {WSR}, {soff} offen sc1')
        e('s_waitcnt vmcnt(0)')
        if thr is None: e(f'v_cmp_eq_u32 vcc, 0, v{vt}')
        else: e(f'v_cmp_ge_u32 vcc, {thr}, v{vt}')
        e(f's_cbranch_vccz {D}')
        self.spin_check()
        e(f's_sleep 2\ns_branch {L}')
        e.label(D)
    def red_g(self, op, x, t):
        e = self.e
        e(f'v_mov_b32 v{t}, v{x}\nv_permlane16_swap_b32 v{x}, v{t}\n{op} v{x}, v{x}, v{t}')
        e(f'v_mov_b32 v{t}, v{x}\nv_permlane32_swap_b32 v{x}, v{t}\n{op} v{x}, v{x}, v{t}')
    def rbf(self, d, x):
        self.e(f'v_cvt_pk_bf16_f32 v{d}, v{x}, v{x}\nv_lshlrev_b32 v{d}, 16, v{d}')

    def prologue(self):
        e = self.e
        e('s_cmp_ge_u32 s2, 256\ns_cbranch_scc1 L_END')
        e('s_load_dwordx16 s[4:19], s[0:1], 0\ns_load_dwordx8 s[20:27], s[0:1], 64\ns_load_dwordx4 s[28:31], s[0:1], 96')
        e(f's_getreg_b32 s{sXCC}, hwreg(HW_REG_XCC_ID)\ns_and_b32 s{sXCC}, s{sXCC}, 7')
        e(f'v_lshrrev_b32 v1, 6, v0\nv_readfirstlane_b32 s{sW}, v1\nv_and_b32 v0, 63, v0')
        e(f's_mov_b32 s{sSPIN}, 0\ns_mov_b32 s{sPLO}, 0x05040100\ns_mov_b32 s{sPHI}, 0x07060302')
        e('s_waitcnt lgkmcnt(0)')
        self.srd(SRD_WS, sWS, WS_BYTES)
        e(f's_cmp_lg_u32 s{sW}, 0\ns_cbranch_scc1 L_notick')
        e(f's_lshl_b32 s54, s{sXCC}, 2\ns_add_u32 s54, s54, 128\ns_cmp_eq_u32 s{sXCC}, 0\ns_cselect_b32 s54, 0, s54')
        e(f'v_mov_b32 v2, s54\nv_mov_b32 v3, 1\nv_mov_b32 v5, 0\ns_mov_b64 exec, 1')
        e(f'global_atomic_add v4, v2, v3, {s(sDBG,2)} sc0\ns_waitcnt vmcnt(0)\nds_write_b32 v5, v4\ns_waitcnt lgkmcnt(0)\ns_mov_b64 exec, -1')
        e.label('L_notick')
        e('s_barrier\nv_mov_b32 v5, 0\nds_read_b32 v4, v5\ns_waitcnt lgkmcnt(0)')
        e(f'v_readfirstlane_b32 s{sJ}, v4')
        e('s_barrier')
        e(f's_cmp_ge_u32 s{sJ}, 32\ns_cbranch_scc1 L_END')
        if self.dev:
            e(f's_lshl_b32 s98, s{sXCC}, 5\ns_add_u32 s98, s98, s{sJ}')
            self.stamp(0)
        e(f's_cmp_eq_u32 s{sXCC}, 0\ns_cbranch_scc1 L_CHAIN')
        e(f's_sub_u32 s54, s{sXCC}, 1\ns_lshl_b32 s54, s54, 5\ns_add_u32 s{sJ}, s{sJ}, s54')

    def load_pairs(self, groups, tmp, depth, vA, vB, post=None):
        e = self.e
        n = len(groups[0][1]); T = tmp + depth * 2 * n
        def issue(k):
            srd, ents = groups[k][0], groups[k][1]
            b = tmp + (k % depth) * 2 * n
            for i, (so, _, _) in enumerate(ents):
                e(so)
                e(f'buffer_load_dword v{b+2*i}, v{vA}, {s(srd,4)}, s54 offen')
                e(f'buffer_load_dword v{b+2*i+1}, v{vB}, {s(srd,4)}, s54 offen')
        def finish(k):
            ents = groups[k][1]
            b = tmp + (k % depth) * 2 * n
            for i, (_, dE, dO) in enumerate(ents):
                for d, sel, tt in ((dE, sPLO, T), (dO, sPHI, T + 1)):
                    if d < 256: e(f'v_perm_b32 v{d}, v{b+2*i+1}, v{b+2*i}, s{sel}')
                    else: e(f'v_perm_b32 v{tt}, v{b+2*i+1}, v{b+2*i}, s{sel}\nv_accvgpr_write_b32 a{d-256}, v{tt}')
            if len(groups[k]) > 2 and groups[k][2]: groups[k][2]()
        for k in range(len(groups) + depth - 1):
            if k < len(groups): issue(k)
            if k - (depth - 1) >= 0: finish(k - (depth - 1))
            if post and k == depth - 1: post()

    def ln(self):
        e = self.e
        e(f's_cmp_ge_u32 s{sJ}, 128\ns_cbranch_scc1 L_noln')
        self.srd(SRD_X, sX, 2048 * 1024)
        e(f'v_lshlrev_b32 v1, 4, v0')
        e(f's_lshl_b32 s54, s{sJ}, 14\ns_lshl_b32 s55, s{sW}, 12\ns_add_u32 s54, s54, s55')
        for r in range(4):
            e(f'buffer_load_dwordx4 {v(16+4*r,4)}, v1, {s(SRD_X,4)}, s54 offen offset:{1024*r}')
        e(f'v_lshlrev_b32 v2, 2, v0\nv_mov_b32 v3, 0')
        e(f's_lshl_b32 s55, s{sJ}, 10\ns_lshl_b32 s56, s{sW}, 8\ns_add_u32 s55, s55, s56\ns_add_u32 s55, s55, {FLG}')
        e(f'buffer_store_dword v3, v2, {WSR}, s55 offen sc1')
        F = lambda r, i: 32 + 8 * r + i
        Dv = lambda r, i: 64 + 8 * r + i
        SM, VR, T = 96, 100, 104
        e(f's_mov_b32 s56, 0xffff0000\ns_mov_b32 s57, {fbits(1.0/512):#x}\ns_mov_b32 s58, {fbits(1e-5):#x}')
        for r in range(4):
            for i in range(4):
                e(f'v_lshlrev_b32 v{F(r,2*i)}, 16, v{16+4*r+i}\nv_and_b32 v{F(r,2*i+1)}, s56, v{16+4*r+i}')
        def red64(base):
            for sh in (1, 2, 4, 8):
                for r in range(4):
                    e(f'v_add_f32_dpp v{base+r}, v{base+r}, v{base+r} row_ror:{sh} row_mask:0xf bank_mask:0xf')
            for sw in ('16', '32'):
                for r in range(4): e(f'v_mov_b32 v{T+r}, v{base+r}')
                for r in range(4): e(f'v_permlane{sw}_swap_b32 v{base+r}, v{T+r}')
                for r in range(4): e(f'v_add_f32 v{base+r}, v{base+r}, v{T+r}')
        for r in range(4): e(f'v_add_f32 v{SM+r}, v{F(r,0)}, v{F(r,1)}')
        for i in range(2, 8):
            for r in range(4): e(f'v_add_f32 v{SM+r}, v{SM+r}, v{F(r,i)}')
        red64(SM)
        for r in range(4): e(f'v_mul_f32 v{SM+r}, s57, v{SM+r}')
        for r in range(4):
            for i in range(8): e(f'v_sub_f32 v{Dv(r,i)}, v{F(r,i)}, v{SM+r}')
        for r in range(4): e(f'v_mul_f32 v{VR+r}, v{Dv(r,0)}, v{Dv(r,0)}')
        for i in range(1, 8):
            for r in range(4): e(f'v_fmac_f32 v{VR+r}, v{Dv(r,i)}, v{Dv(r,i)}')
        red64(VR)
        for r in range(4):
            e(f'v_mul_f32 v{VR+r}, s57, v{VR+r}')
            self.rbf(VR + r, VR + r); self.rbf(SM + r, SM + r)
            e(f'v_add_f32 v{VR+r}, s58, v{VR+r}')
            self.rbf(VR + r, VR + r)
            e(f'v_sqrt_f32 v{VR+r}, v{VR+r}')
            self.rbf(VR + r, VR + r)
            e(f'v_rcp_f32 v{T+r}, v{VR+r}')
        for r in range(4):
            for i in range(8): e(f'v_sub_f32 v{F(r,i)}, v{F(r,i)}, v{SM+r}')
            for i in range(4):
                e(f'v_cvt_pk_bf16_f32 v108, v{F(r,2*i)}, v{F(r,2*i+1)}')
                e(f'v_lshlrev_b32 v{F(r,2*i)}, 16, v108\nv_and_b32 v{F(r,2*i+1)}, s56, v108')
            for i in range(8): e(f'v_mul_f32 v{Dv(r,i)}, v{F(r,i)}, v{T+r}')
            for i in range(8): e(f'v_fma_f32 v{F(r,i)}, -v{Dv(r,i)}, v{VR+r}, v{F(r,i)}')
            for i in range(8): e(f'v_fmac_f32 v{Dv(r,i)}, v{F(r,i)}, v{T+r}')
            for i in range(4): e(f'v_cvt_pk_bf16_f32 v{16+4*r+i}, v{Dv(r,2*i)}, v{Dv(r,2*i+1)}')
        e(f'v_lshlrev_b32 v2, 8, v0\ns_lshl_b32 s55, s{sW}, 6\nv_add_u32 v2, s55, v2')
        for r in range(4): e(f'ds_write_b128 v2, {v(16+4*r,4)} offset:{16*r}')
        e('s_waitcnt lgkmcnt(0)\ns_barrier')
        e(f's_lshl_b32 s55, s{sW}, 12\nv_add_u32 v2, s55, v1')
        for r in range(4): e(f'ds_read_b128 {v(16+4*r,4)}, v2 offset:{1024*r}')
        for r in range(4): e(f'buffer_store_dwordx4 {v(16+4*r,4)}, v1, {WSR}, s54 offen offset:{1024*r} sc1')
        e('s_waitcnt vmcnt(0)\ns_barrier')
        e(f's_cmp_lg_u32 s{sW}, 0\ns_cbranch_scc1 L_noln')
        e(f'v_mov_b32 v2, 192\nv_mov_b32 v3, 1\ns_mov_b64 exec, 1\nglobal_atomic_add v2, v3, {s(sDBG,2)}\ns_mov_b64 exec, -1')
        e.label('L_noln')
        e.reset(); e('s_waitcnt vmcnt(0)')

    def row_loop(self, name, sT, step, mf, nacc_desc, epilogue, flagoff):
        e = self.e
        PF, FR = 80, 64
        sSO, sBUF, sPREV = 56, 57, 58
        def pf_issue():
            e(f's_lshl_b32 s{sSO}, s61, 15\ns_lshl_b32 s55, s{sW}, 13\ns_add_u32 s{sSO}, s{sSO}, s55')
            e(f's_add_u32 s55, s{sSO}, 4096')
            for i in range(8):
                e(f'buffer_load_dwordx4 {v(PF+4*i,4)}, v1, {WSR}, s{sSO if i < 4 else 55} offen offset:{1024*(i%4)} sc1')
        e(f'v_lshlrev_b32 v1, 4, v0\ns_lshl_b32 s55, s{sW}, 13\nv_add_u32 v2, s55, v1\nv_mov_b32 v3, v1\nv_mov_b32 v4, 1')
        e(f's_lshl_b32 s{sPREV}, s{sJ}, 2\ns_add_u32 s{sPREV}, s{sPREV}, s{sW}\ns_lshl_b32 s{sPREV}, s{sPREV}, 7\ns_add_u32 s{sPREV}, s{sPREV}, {DUM}')
        e(f's_mov_b32 s61, s{sT}')
        pf_issue()
        nst = self._nst
        e('s_mov_b64 exec, 1')
        for _ in range(nst): e(f'buffer_store_dword v4, off, {WSR}, s{sPREV}')
        e('s_mov_b64 exec, -1')
        e('s_barrier')
        self.tick_init(6); self.tick(None)
        L = f'L_{name}_loop'
        e.label(L)
        q0 = list(e.vmq)
        for i in range(8): e(f'ds_write_b128 v2, {v(PF+4*i,4)} offset:{1024*i}')
        e(f's_add_u32 s61, s{sT}, {step}\ns_min_u32 s61, s61, 63')
        e('s_waitcnt lgkmcnt(0)')
        self.tick(0)
        pf_issue()
        self.tick(1)
        e('s_barrier')
        self.tick(2)
        rd = lambda k: (e(f'ds_read_b128 {v(FR+8*(k%2),4)}, v3 offset:{1024*k}'), e(f'ds_read_b128 {v(FR+8*(k%2)+4,4)}, v3 offset:{16384+1024*k}'))
        rd(0)
        for k in range(16):
            if k < 15: rd(k + 1)
            mf(k, FR + 8 * (k % 2), FR + 8 * (k % 2) + 4)
        e('v_xor_b32 v2, 0x8000, v2\nv_xor_b32 v3, 0x8000, v3')
        self.tick(3)
        e('s_waitcnt vmcnt(8)')
        self.tick(4)
        e(f's_mov_b64 exec, 1\nbuffer_store_dword v4, off, {WSR}, s{sPREV} sc1\ns_mov_b64 exec, -1')
        flagoff(sPREV)
        epilogue()
        e('s_waitcnt lgkmcnt(0)')
        self.tick(5)
        assert len(e.vmq) == len(q0), (len(e.vmq), len(q0))
        e(f's_add_u32 s{sT}, s{sT}, {step}\ns_cmp_lt_u32 s{sT}, 64\ns_cbranch_scc1 {L}')
        e('s_waitcnt vmcnt(0)')
        e(f's_mov_b64 exec, 1\nbuffer_store_dword v4, off, {WSR}, s{sPREV} sc1\ns_mov_b64 exec, -1')
        e('s_barrier')
        e.reset(vmq=[set()])
        self.tick_dump(6, 0 if name == 'qkv' else 1, 112)

    def qkv(self):
        e = self.e
        sH, sSUB, sT, sQ = 62, 63, 64, 65
        e(f's_mul_i32 s{sH}, s{sJ}, 9363\ns_lshr_b32 s{sH}, s{sH}, 16\ns_mul_i32 s54, s{sH}, 7\ns_sub_u32 s{sSUB}, s{sJ}, s54')
        self.srd(SRD_A, sWK, 1 << 22); self.srd(SRD_B, sWV, 1 << 22); self.srd(SRD_X, sWQ, 1 << 22)
        e(f'v_lshrrev_b32 v1, 4, v0\nv_lshlrev_b32 v1, 16, v1\nv_and_b32 v2, 15, v0\nv_lshlrev_b32 v2, 2, v2')
        e(f's_lshl_b32 s54, s{sH}, 8\ns_lshl_b32 s55, s{sW}, 6\ns_add_u32 s54, s54, s55\nv_add3_u32 v1, v1, v2, s54\nv_add_u32 v2, 8192, v1')
        W = lambda m, p, k: [256, 384, 128][m] + (k * 2 + p) * 4
        groups = []
        for m, srd in ((0, SRD_A), (1, SRD_B), (2, SRD_X)):
            for k2 in range(8):
                ents = []
                for k in (2 * k2, 2 * k2 + 1):
                    for i in range(4):
                        ents.append((f's_mov_b32 s54, {(32*k + 2*i) * 8192}', W(m, 0, k) + i, W(m, 1, k) + i))
                groups.append((srd, ents))
        self.load_pairs(groups, 16, 3, 1, 2)
        self.stamp(2)
        self.wait_counter(192, 128, 8)
        self.stamp(3)
        ACC = lambda m, p, t: 16 + ((m * 2 + p) * 2 + t) * 4
        def mf(k, X0, X1):
            for m in (0, 1, 2):
                for p in (0, 1):
                    for t, X in ((0, X0), (1, X1)):
                        d = v(ACC(m, p, t), 4); c = '0' if k == 0 else d
                        if m == 1: e(f'v_mfma_f32_16x16x32_bf16 {d}, {v(X,4)}, {R(W(m,p,k),4)}, {c}')
                        else: e(f'v_mfma_f32_16x16x32_bf16 {d}, {R(W(m,p,k),4)}, {v(X,4)}, {c}')
        def flagoff(sd):
            e(f's_lshl_b32 s{sd}, s{sH}, 10\ns_lshl_b32 s55, s{sW}, 8\ns_add_u32 s{sd}, s{sd}, s55\ns_lshl_b32 s55, s{sT}, 2\ns_add_u32 s{sd}, s{sd}, s55\ns_add_u32 s{sd}, s{sd}, {F_KVX}')
        def epi():
            e(f's_lshl_b32 s54, s{sT}, 19\ns_lshl_b32 s55, s{sH}, 14\ns_add_u32 s54, s54, s55\ns_lshl_b32 s55, s{sW}, 12\ns_add_u32 s54, s54, s55\ns_add_u32 s54, s54, {KV}')
            for t in (0, 1):
                o = 112 + 4 * t
                for i in range(4): e(f'v_cvt_pk_bf16_f32 v{o+i}, v{ACC(0,0,t)+i}, v{ACC(0,1,t)+i}')
                e(f'buffer_store_dwordx4 {v(o,4)}, v1, {WSR}, s54 offen offset:{1024*t} sc1')
            for p in (0, 1):
                o = 120 + 4 * p
                for t in (0, 1):
                    for hh in (0, 1): e(f'v_cvt_pk_bf16_f32 v{o+2*t+hh}, v{ACC(1,p,t)+2*hh}, v{ACC(1,p,t)+2*hh+1}')
                e(f'buffer_store_dwordx4 {v(o,4)}, v1, {WSR}, s54 offen offset:{2048+1024*p} sc1')
            for t in (0, 1):
                o = 64 + 4 * t
                for i in range(4): e(f'v_cvt_pk_bf16_f32 v{o+i}, v{ACC(2,0,t)+i}, v{ACC(2,1,t)+i}')
                e(f'ds_write_b128 v6, {v(o,4)} offset:{4096*t}')
            e('v_add_u32 v6, 8192, v6')
        e(f'v_lshlrev_b32 v6, 4, v0\ns_lshl_b32 s55, s{sW}, 10\ns_add_u32 s55, s55, 65536\nv_add_u32 v6, s55, v6')
        e(f's_mov_b32 s{sT}, s{sSUB}')
        self._nst = 5
        self.row_loop('qkv', sT, 7, mf, None, epi, flagoff)
        self.stamp(4)

    def ffn1(self):
        e = self.e
        sT, sPH = 64, 65
        e(f's_cmp_ge_u32 s{sJ}, 220\ns_cbranch_scc1 L_noffn')
        e(f's_mul_i32 s{sT}, s{sJ}, 5958\ns_lshr_b32 s{sT}, s{sT}, 16\ns_mul_i32 s54, s{sT}, 11\ns_sub_u32 s54, s{sJ}, s54')
        e(f's_lshl_b32 s{sPH}, s54, 2\ns_add_u32 s{sPH}, s{sPH}, s{sW}')
        self.srd(SRD_A, sWG, 512 * 2752); self.srd(SRD_B, sWU, 512 * 2752)
        e(f'v_lshrrev_b32 v1, 4, v0\nv_mul_u32_u24 v1, {8*2752}, v1\nv_and_b32 v2, 15, v0\nv_lshlrev_b32 v2, 2, v2')
        e(f's_lshl_b32 s54, s{sPH}, 6\nv_add3_u32 v1, v1, v2, s54\nv_add_u32 v2, 2752, v1')
        W = lambda m, p, k: 256 + m * 128 + (k * 2 + p) * 4
        groups = []
        for m, srd in ((0, SRD_A), (1, SRD_B)):
            for k2 in range(8):
                ents = []
                for k in (2 * k2, 2 * k2 + 1):
                    for i in range(4):
                        ents.append((f's_mov_b32 s54, {(32*k + 2*i) * 2752}', W(m, 0, k) + i, W(m, 1, k) + i))
                groups.append((srd, ents))
        self.load_pairs(groups, 16, 3, 1, 2)
        ACC = lambda m, p, t: 16 + ((m * 2 + p) * 2 + t) * 4
        def mf(k, X0, X1):
            for m in (0, 1):
                for p in (0, 1):
                    for t, X in ((0, X0), (1, X1)):
                        d = v(ACC(m, p, t), 4); c = '0' if k == 0 else d
                        e(f'v_mfma_f32_16x16x32_bf16 {d}, {R(W(m,p,k),4)}, {v(X,4)}, {c}')
        def flagoff(sd):
            e(f's_lshl_b32 s{sd}, s{sT}, 8\ns_lshl_b32 s55, s{sPH}, 2\ns_add_u32 s{sd}, s{sd}, s55\ns_add_u32 s{sd}, s{sd}, {F_HFL}')
        def epi():
            e(f's_mul_i32 s54, s{sT}, {2*44*1024}\ns_lshl_b32 s55, s{sPH}, 10\ns_add_u32 s54, s54, s55\ns_add_u32 s54, s54, {HH}\ns_add_u32 s55, s54, {44*1024}')
            e('s_mov_b32 s59, 0xffff0000')
            for t in (0, 1):
                o = 112 + 4 * t
                for i in range(4):
                    g0, g1, u0, u1 = ACC(0, 0, t) + i, ACC(0, 1, t) + i, ACC(1, 0, t) + i, ACC(1, 1, t) + i
                    e(f'v_cvt_pk_bf16_f32 v120, v{g0}, v{g1}\nv_cvt_pk_bf16_f32 v121, v{u0}, v{u1}')
                    e(f'v_lshlrev_b32 v{g0}, 16, v120\nv_and_b32 v{g1}, s59, v120\nv_lshlrev_b32 v{u0}, 16, v121\nv_and_b32 v{u1}, s59, v121')
                    e(f'v_max_f32 v{g0}, 0, v{g0}\nv_max_f32 v{g1}, 0, v{g1}')
                    e(f'v_mul_f32 v{g0}, v{g0}, v{u0}\nv_mul_f32 v{g1}, v{g1}, v{u1}')
                    e(f'v_cvt_pk_bf16_f32 v{o+i}, v{g0}, v{g1}')
                e(f'buffer_store_dwordx4 {v(o,4)}, v1, {WSR}, s{54+t} offen sc1')
        self._nst = 3
        self.row_loop('ffn', sT, 20, mf, None, epi, flagoff)
        e.label('L_noffn')
        e.reset(); e('s_waitcnt vmcnt(0)')
        self.stamp(5)

    def tailphase(self):
        e = self.e
        sH, sSUB = 62, 63
        sA, sF, sCS, sQT, sEH, sQL, sSC = 64, 65, 66, 67, 68, 69, 70
        MK = 72
        e(f's_lshr_b32 s{sF}, s{sJ}, 4\ns_and_b32 s{sCS}, s{sJ}, 15\ns_mov_b32 s{sA}, s{sSUB}')
        e(f's_lshr_b32 s{sQT}, s{sW}, 1\ns_and_b32 s{sEH}, s{sW}, 1')
        self.srd(SRD_A, sWO, 1 << 22); self.srd(SRD_B, sWD, 1376 * 1024)
        e(f'v_lshrrev_b32 v1, 4, v0\nv_lshlrev_b32 v1, 13, v1\nv_and_b32 v2, 15, v0\nv_lshlrev_b32 v2, 2, v2')
        e(f's_lshl_b32 s54, s{sCS}, 6\nv_add3_u32 v1, v1, v2, s54\nv_add_u32 v2, 1024, v1')
        e(f's_lshl_b32 s56, s{sW}, 20\ns_mul_i32 s57, s{sW}, {11*32*1024}')
        WO = lambda p, k: 256 + (k * 2 + p) * 4
        WD = lambda p, k: 168 + (k * 2 + p) * 4
        groups = []
        for k in range(11):
            groups.append((SRD_B, [(f's_add_u32 s54, s57, {(32*k + 2*i) * 1024}', WD(0, k) + i, WD(1, k) + i) for i in range(4)]))
        for k in range(32):
            groups.append((SRD_A, [(f's_add_u32 s54, s56, {(32*k + 2*i) * 1024}', WO(0, k) + i, WO(1, k) + i) for i in range(4)]))
        self.load_pairs(groups, 16, 7, 1, 2)
        self.srd(SRD_A, sOUT, 2048 * 1024); self.srd(SRD_X, sX, 2048 * 1024)
        L16, L8, ONE, QA, FO, FH, RW, RR, XO, PG = 1, 2, 3, 4, 5, 6, 7, 8, 9, 10
        e(f'v_lshlrev_b32 v{L16}, 4, v0\nv_lshlrev_b32 v{L8}, 3, v0\nv_mov_b32 v{ONE}, 1')
        e(f's_lshl_b32 s54, s{sQT}, 12\ns_add_u32 s54, s54, 65536\nv_add_u32 v{QA}, s54, v{L16}')
        e(f'v_and_b32 v11, 15, v0\nv_lshlrev_b32 v{FO}, 2, v11\ns_lshl_b32 s54, s{sW}, 6\nv_add_u32 v{FO}, s54, v{FO}')
        e(f'v_min_u32 v{FH}, 10, v0\nv_lshlrev_b32 v{FH}, 2, v{FH}\ns_mul_i32 s54, s{sW}, 44\nv_add_u32 v{FH}, s54, v{FH}')
        e(f's_lshl_b32 s54, s{sW}, 12\nv_add_u32 v{RW}, s54, v{L16}')
        e(f'v_lshrrev_b32 v12, 4, v0\nv_bfe_u32 v13, v0, 2, 2\nv_and_b32 v14, 3, v0')
        e(f'v_lshlrev_b32 v13, 8, v13\nv_lshlrev_b32 v15, 4, v12\nv_lshlrev_b32 v14, 2, v14\nv_add3_u32 v{RR}, v13, v15, v14')
        e(f's_lshl_b32 s54, s{sW}, 6\nv_add_u32 v{RR}, s54, v{RR}')
        e(f'v_lshlrev_b32 v12, 10, v12\nv_lshlrev_b32 v13, 2, v11\ns_lshl_b32 s54, s{sW}, 12\ns_lshl_b32 s55, s{sCS}, 6\ns_add_u32 s54, s54, s55\nv_add3_u32 v{XO}, v12, v13, s54')
        e(f'v_and_b32 v{PG}, 3, v0\nv_lshlrev_b32 v{PG}, 2, v{PG}')
        KMA = 160
        e(f'v_lshrrev_b32 v12, 2, v11\nv_lshlrev_b32 v12, 7, v12\nv_and_b32 v13, 1, v11\nv_lshlrev_b32 v13, 6, v13\nv_and_b32 v14, 48, v0\nv_add3_u32 v{KMA}, v12, v13, v14')
        e(f's_lshl_b32 s54, s{sQT}, 4\nv_add_u32 v12, s54, v11\nv_lshrrev_b32 v13, 4, v0\nv_lshlrev_b32 v13, 2, v13\nv_sub_u32 v12, v12, v13')
        for tk in (0, 1):
            for i in range(4):
                e(f'v_cmp_le_i32 {s(MK+2*(4*tk+i),2)}, {16*tk+i}, v12')
        e(f's_mov_b32 s{sSC}, {fbits(CSC):#x}\ns_mov_b32 s71, 0xffff0000')
        self.stamp(6)
        XR = 11; AS, AF = 16, 24
        Q, V, S0, S1, MX = 32, 48, 64, 68, 161
        RING = 72; NR = 22
        K, KM, VM, SMm, PX, PM, OA = 72, 104, 120, 128, 132, 136, 140
        def prepA():
            L = self.lab('pa')
            e(f's_cmp_ge_u32 s{sA}, 64\ns_cbranch_scc1 {L}')
            e(f's_lshl_b32 s56, s{sA}, 19\ns_lshl_b32 s57, s{sH}, 14\ns_add_u32 s56, s56, s57\ns_add_u32 s56, s56, {KV}')
            e(f's_lshl_b32 s57, s{sEH}, 13\ns_add_u32 s57, s57, s56\ns_add_u32 s58, s57, 4096')
            for k in range(4):
                for tk in (0, 1):
                    e(f'buffer_load_dwordx4 {v(K+8*k+4*tk,4)}, v{L16}, {WSR}, s56 offen offset:{1024*tk} sc1')
                if k < 3: e('s_add_u32 s56, s56, 4096')
            for u in (0, 1):
                for p in (0, 1):
                    e(f'buffer_load_dwordx4 {v(V+8*u+4*p,4)}, v{L16}, {WSR}, s{57+u} offen offset:{2048+1024*p} sc1')
            for k in range(4): e(f'ds_read_b128 {v(Q+4*k,4)}, v{QA} offset:{1024*k}')
            for k in range(4):
                for tk, S_ in ((0, S0), (1, S1)):
                    e(f'v_mfma_f32_16x16x32_bf16 {v(S_,4)}, {v(K+8*k+4*tk,4)}, {v(Q+4*k,4)}, {"0" if k == 0 else v(S_,4)}')
            e(f'v_add_u32 v{QA}, 8192, v{QA}')
            e(f'v_mov_b32 v13, {fbits(-1e9*math.log2(math.e)):#x}')
            for tk, S_ in ((0, S0), (1, S1)):
                for i in range(4):
                    e(f'v_mul_f32 v{S_+i}, s{sSC}, v{S_+i}')
                    e(f'v_cndmask_b32 v{S_+i}, v13, v{S_+i}, {s(MK+2*(4*tk+i),2)}')
            e(f'v_max3_f32 v{MX}, v{S0}, v{S0+1}, v{S0+2}\nv_max3_f32 v{MX}, v{MX}, v{S0+3}, v{S1}\nv_max3_f32 v{MX}, v{MX}, v{S1+1}, v{S1+2}\nv_max_f32 v{MX}, v{MX}, v{S1+3}')
            e.label(L); e('s_waitcnt vmcnt(0) lgkmcnt(0)')
        def prepF():
            L = self.lab('pf')
            e(f's_cmp_ge_u32 s{sF}, 128\ns_cbranch_scc1 {L}')
            e(f's_lshl_b32 s56, s{sF}, 14')
            e(f'buffer_load_dword v{XR}, v{XO}, {s(SRD_X,4)}, s56 offen')
            e(f's_lshr_b32 s57, s{sF}, 1\ns_lshl_b32 s57, s57, 8\ns_add_u32 s57, s57, {F_HFL}')
            self.wait_flags(FH, 's57', 12)
            e.reset()
            e(f's_mul_i32 s57, s{sF}, {44*1024}\ns_mul_i32 s58, s{sW}, {11*1024}\ns_add_u32 s57, s57, s58\ns_add_u32 s57, s57, {HH}')
            for k in range(11):
                if k and k % 4 == 0: e('s_add_u32 s57, s57, 4096')
                e(f'buffer_load_dwordx4 {v(RING+4*k,4)}, v{L16}, {WSR}, s57 offen offset:{1024*(k%4)} sc1')
            for k in range(11):
                for p in (0, 1):
                    d = v(AF + 4 * p, 4)
                    e(f'v_mfma_f32_16x16x32_bf16 {d}, {R(WD(p,k),4)}, {v(RING+4*k,4)}, {"0" if k == 0 else d}')
            e.label(L); e('s_waitcnt vmcnt(0) lgkmcnt(0)')
        prepA(); prepF()
        e(f's_lshl_b32 s{sQL}, s{sH}, 7\ns_add_u32 s{sQL}, s{sQL}, {F_PROG}')
        e.label('L_task')
        e.reset()
        e(f's_min_u32 s57, s{sF}, 127\ns_lshl_b32 s57, s57, 8\ns_add_u32 s57, s57, {F_OFL}')
        e(f'buffer_load_dword v12, v{PG}, {WSR}, s{sQL} offen sc1')
        e(f'buffer_load_dword v13, v{FO}, {WSR}, s57 offen sc1')
        e(f's_lshr_b32 s54, s{sF}, 1')
        e(f's_cmp_ge_u32 s{sA}, 64\ns_cbranch_scc1 L_noattn')
        e(f'v_cmp_ge_u32 vcc, s{sA}, v12\ns_cbranch_vccz L_attn')
        e(f's_cmp_le_u32 s{sA}, s54\ns_cbranch_scc1 L_idle')
        e.label('L_noattn')
        e(f's_cmp_ge_u32 s{sF}, 128\ns_cbranch_scc1 L_WEND')
        e('s_waitcnt vmcnt(0)')
        e(f'v_cmp_eq_u32 vcc, 0, v13\ns_cbranch_vccz L_final')
        e.label('L_idle')
        self.spin_check()
        e(f's_waitcnt vmcnt(0)\ns_sleep {self.o.get("slp", 4)}\ns_branch L_task')
        e.label('L_final')
        e.reset()
        e(f's_lshl_b32 s57, s{sF}, 17\ns_lshl_b32 s58, s{sW}, 15\ns_add_u32 s57, s57, s58\ns_add_u32 s57, s57, {OO}')
        def old(k):
            if k and k % 4 == 0: e('s_add_u32 s57, s57, 4096')
            e(f'buffer_load_dwordx4 {v(RING+4*(k%NR),4)}, v{L16}, {WSR}, s57 offen offset:{1024*(k%4)} sc1')
        for k in range(NR): old(k)
        for k in range(32):
            for p in (0, 1):
                d = v(AS + 4 * p, 4)
                e(f'v_mfma_f32_16x16x32_bf16 {d}, {R(WO(p,k),4)}, {v(RING+4*(k%NR),4)}, {"0" if k == 0 else d}')
            if k + NR < 32: old(k + NR)
        for q in range(4): e(f'ds_write_b128 v{RW}, {v(AS+4*q,4)} offset:{1024*q}')
        e('s_waitcnt lgkmcnt(0)\ns_barrier')
        T = RING
        for w in range(4):
            for q in range(4): e(f'ds_read_b32 v{T+4*w+q}, v{RR} offset:{4096*w+1024*q}')
        e(f'v_xor_b32 v{RW}, 0x4000, v{RW}')
        for q in range(4): e(f'v_add_f32 v{T+q}, v{T+q}, v{T+4+q}')
        for q in range(4): e(f'v_add_f32 v{T+8+q}, v{T+8+q}, v{T+12+q}')
        e(f'v_xor_b32 v{RR}, 0x4000, v{RR}')
        for q in range(4): e(f'v_add_f32 v{T+q}, v{T+q}, v{T+8+q}')
        a0, a1, f0, f1, t0, t1, u0, u1 = range(T, T + 8)
        e(f'v_cvt_pk_bf16_f32 v{t0}, v{a0}, v{a1}\nv_cvt_pk_bf16_f32 v{t1}, v{f0}, v{f1}')
        e(f'v_lshlrev_b32 v{a0}, 16, v{t0}\nv_and_b32 v{a1}, s71, v{t0}\nv_lshlrev_b32 v{f0}, 16, v{t1}\nv_and_b32 v{f1}, s71, v{t1}')
        e(f's_mov_b32 s57, {fbits(-math.log2(math.e)):#x}\ns_lshl_b32 s56, s{sF}, 14')
        e(f'v_mul_f32 v{u0}, s57, v{f0}\nv_mul_f32 v{u1}, s57, v{f1}\nv_exp_f32 v{u0}, v{u0}\nv_exp_f32 v{u1}, v{u1}')
        e(f'v_add_f32 v{u0}, 1.0, v{u0}\nv_add_f32 v{u1}, 1.0, v{u1}\nv_rcp_f32 v{u0}, v{u0}\nv_rcp_f32 v{u1}, v{u1}')
        e(f'v_mul_f32 v{f0}, v{f0}, v{u0}\nv_mul_f32 v{f1}, v{f1}, v{u1}\nv_cvt_pk_bf16_f32 v{t1}, v{f0}, v{f1}')
        e(f'v_lshlrev_b32 v{f0}, 16, v{t1}\nv_and_b32 v{f1}, s71, v{t1}\nv_mul_f32 v{a0}, v{a0}, v{f0}\nv_mul_f32 v{a1}, v{a1}, v{f1}')
        e(f'v_cvt_pk_bf16_f32 v{t0}, v{a0}, v{a1}\nv_lshlrev_b32 v{a0}, 16, v{t0}\nv_and_b32 v{a1}, s71, v{t0}')
        e(f'v_lshlrev_b32 v{f0}, 16, v{XR}\nv_and_b32 v{f1}, s71, v{XR}\nv_add_f32 v{a0}, v{a0}, v{f0}\nv_add_f32 v{a1}, v{a1}, v{f1}')
        e(f'v_cvt_pk_bf16_f32 v{t0}, v{a0}, v{a1}')
        e(f'buffer_store_dword v{t0}, v{XO}, {s(SRD_A,4)}, s56 offen')
        e(f's_add_u32 s{sF}, s{sF}, 14')
        prepF()
        e('s_branch L_task')
        e.label('L_attn')
        e.reset(vmq=[{('v', 13)}])
        e(f's_lshl_b32 s56, s{sA}, 18\ns_lshl_b32 s57, s{sH}, 13\ns_add_u32 s56, s56, s57\ns_add_u32 s56, s56, {KVM}')
        e(f's_add_u32 s57, s56, 4096\ns_lshl_b32 s58, s{sEH}, 12\ns_add_u32 s58, s58, s56')
        for k in range(4):
            e(f'buffer_load_dwordx4 {v(KM+4*k,4)}, v{KMA}, {WSR}, s{56+k//2} offen offset:{2048*(k%2)} sc1')
        for u in (0, 1):
            e(f'buffer_load_dwordx2 {v(VM+4*u,2)}, v{L8}, {WSR}, s58 offen offset:{2048*u+1024} sc1')
        e(f's_lshl_b32 s56, s{sA}, 1\ns_add_u32 s56, s56, s{sQT}\ns_lshl_b32 s57, s56, 17\ns_lshl_b32 s58, s{sH}, 12\ns_add_u32 s57, s57, s58')
        e(f's_lshl_b32 s58, s{sEH}, 11\ns_add_u32 s57, s57, s58\ns_add_u32 s57, s57, {OO}')
        e(f's_lshl_b32 s56, s56, 8\ns_lshl_b32 s58, s{sH}, 3\ns_add_u32 s56, s56, s58\ns_lshl_b32 s58, s{sEH}, 2\ns_add_u32 s56, s56, s58\ns_add_u32 s56, s56, {F_OFL}')
        e(f'v_mov_b32 v{PM+1}, 0')
        for k in range(4):
            e(f'v_mfma_f32_16x16x32_bf16 {v(SMm,4)}, {v(KM+4*k,4)}, {v(Q+4*k,4)}, {"0" if k == 0 else v(SMm,4)}')
        for u in (0, 1): e(f'v_mov_b32 v{VM+4*u+2}, v{VM+4*u+1}\nv_mov_b32 v{VM+4*u+3}, v{VM+4*u}')
        e(f'v_mul_f32 v{SMm}, s{sSC}, v{SMm}\nv_mul_f32 v{SMm+1}, s{sSC}, v{SMm+1}\nv_max3_f32 v14, v{MX}, v{SMm}, v{SMm+1}')
        self.red_g('v_max_f32', 14, 15)
        vals = [S0 + i for i in range(4)] + [S1 + i for i in range(4)] + [SMm, SMm + 1]
        for x in vals: e(f'v_sub_f32 v{x}, v{x}, v14')
        for x in vals: e(f'v_exp_f32 v{x}, v{x}')
        e(f'v_add_f32 v14, v{vals[0]}, v{vals[1]}')
        for x in vals[2:]: e(f'v_add_f32 v14, v14, v{x}')
        self.red_g('v_add_f32', 14, 15)
        e('v_rcp_f32 v14, v14')
        for x in vals: e(f'v_mul_f32 v{x}, v{x}, v14')
        for tk, S_ in ((0, S0), (1, S1)):
            for hh in (0, 1): e(f'v_cvt_pk_bf16_f32 v{PX+2*tk+hh}, v{S_+2*hh}, v{S_+2*hh+1}')
        e(f'v_cvt_pk_bf16_f32 v{PM}, v{SMm}, v{SMm+1}')
        for u in (0, 1):
            for p in (0, 1):
                e(f'v_mfma_f32_16x16x32_bf16 {v(OA + 8 * u + 4 * p, 4)}, {v(V+8*u+4*p,4)}, {v(PX,4)}, 0')
        for u in (0, 1):
            for p in (0, 1):
                d = v(OA + 8 * u + 4 * p, 4)
                e(f'v_mfma_f32_16x16x16_bf16 {d}, {v(VM+4*u+2*p,2)}, {v(PM,2)}, {d}')
        for u in (0, 1):
            for i in range(4): e(f'v_cvt_pk_bf16_f32 v{KM+4*u+i}, v{OA+8*u+i}, v{OA+8*u+4+i}')
            e(f'buffer_store_dwordx4 {v(KM+4*u,4)}, v{L16}, {WSR}, s57 offen offset:{1024*u} sc1')
        e('s_waitcnt vmcnt(0)')
        e(f's_mov_b64 exec, 1\nbuffer_store_dword v{ONE}, off, {WSR}, s56 sc1\ns_mov_b64 exec, -1')
        e(f's_add_u32 s{sA}, s{sA}, 7')
        prepA()
        e('s_branch L_task')
        e.label('L_WEND')
        e.reset()
        self.stamp(7)
        e('s_branch L_END')

    def chain(self):
        e = self.e; o = self.o
        e.label('L_CHAIN'); e.reset()
        sH = sJ
        LW, LMEM, LTR, LO, LZ, LKV = 0, 131072, 139264, 144384, 146944, 147456
        TRS = 1280
        L16, L8, IDX, H1S, H2S, MEMW, MEMR, WST, TRW, KTR, Q0R, Q1R, QQR, K2R, LN0, OW, OR_, PFA, PFL, FLGV, VMK = \
            0, 1, 2, 3, 4, 5, 6, 9, 10, 11, 12, 13, 14, 15, 16, 17, 18, 19, 20, 21, 22
        SEL, ONES, MEMA, ACK, ACQ, ACV, KX, VX, SX, SM_, ST = 24, 28, 32, 64, 72, 80, 88, 96, 104, 108, 112
        seq = []
        for m in 'qkv':
            for sl in (0, 1):
                for p in (0, 1): seq.append((m, sl, p))
        for m in 'qkv':
            for sl in range(2, 8):
                for p in (0, 1): seq.append((m, sl, p))
        for b in range(4):
            for sg in (0, 1):
                for tl in (2 * b, 2 * b + 1): seq.append(('o', sg, tl))
        bA, bB, bC, bD = ST, ST + 8, KX, VX
        staged = {1: bC, 3: bD, 5: bA, 7: bB, 17: bA, 20: bB, 24: bA, 27: bB, 31: bA, 36: bB, 38: bA, 48: bA, 49: bB, 56: bA, 57: bB, 63: bA}
        slot = {n: i for i, n in enumerate(sorted(staged))}
        pool = list(range(256, 512, 8)) + list(range(128, 256, 8))
        home = {}; pos = {}
        for n, key in enumerate(seq):
            pos[key] = n
            home[key] = None if n in staged else pool.pop(0)
        assert not pool
        LN = 111
        G, C = 110, 109
        e(f'v_mov_b32 v{LN}, v0\nv_lshrrev_b32 v{G}, 4, v0\nv_and_b32 v{C}, 15, v0')
        e(f'v_lshlrev_b32 v{L8}, 3, v{LN}\nv_lshlrev_b32 v{L16}, 4, v{LN}')
        e(f's_lshl_b32 s54, s{sW}, 15\nv_add_u32 v{WST}, s54, v{L16}')
        sH1S, sH1S2, sH1L, sH2S, sH2L, sKV, sKVM, sT, sSEN, sSC, sPROG, sFL = 60, 61, 62, 63, 64, 65, 66, 67, 68, 69, 70, 71
        e(f's_mov_b32 s{sSEN}, {SENT:#x}\ns_mov_b32 s{sSC}, {fbits(CSC):#x}')
        e(f's_lshl_b32 s54, s{sH}, 2\ns_add_u32 s54, s54, s{sW}\ns_lshl_b32 s{sH1L}, s54, 11\ns_add_u32 s{sH1L}, s{sH1L}, {H1}')
        e(f's_mov_b32 s{sH1S}, {H1}\ns_mov_b32 s{sH1S2}, {H1+4096}')
        for i in range(4): e(f'v_mov_b32 v{SX+i}, s{sSEN}')
        e(f's_xor_b32 s55, s{sH1L}, 0x40000')
        for sb in (sH1L, 55):
            for m in (0, 1): e(f'buffer_store_dwordx4 {v(SX,4)}, v{L16}, {WSR}, s{sb} offen offset:{1024*m}')
        e(f's_lshr_b32 s54, s{sH}, 3\ns_bfe_u32 s55, s{sH}, 0x20001\ns_and_b32 s56, s{sH}, 1')
        e(f's_lshl_b32 s57, s{sW}, 1\ns_add_u32 s57, s57, s56\ns_lshl_b32 s57, s57, 10\ns_lshl_b32 s58, s54, 8\ns_add_u32 s57, s57, s58\ns_lshl_b32 s58, s55, 6\ns_add_u32 s57, s57, s58')
        e(f'v_lshrrev_b32 v100, 1, v{C}\nv_lshlrev_b32 v100, 1, v100\nv_and_b32 v102, 1, v{G}\nv_add_u32 v100, v100, v102\nv_lshlrev_b32 v100, 4, v100')
        e(f'v_and_b32 v101, 1, v{C}\nv_lshlrev_b32 v101, 1, v101\nv_lshrrev_b32 v103, 1, v{G}\nv_add_u32 v101, v101, v103\nv_lshlrev_b32 v101, 2, v101\nv_add3_u32 v{H2S}, v100, v101, s57')
        e(f's_mov_b32 s{sH2S}, {H2}\ns_lshl_b32 s{sH2L}, s{sW}, 11\ns_add_u32 s{sH2L}, s{sH2L}, {H2}')
        self.srd(SRD_A, sMEM, 8192)
        e(f's_lshl_b32 s57, s55, 11\ns_lshl_b32 s58, s54, 8\ns_add_u32 s57, s57, s58\ns_lshl_b32 s58, s56, 7\ns_add_u32 s57, s57, s58\ns_lshl_b32 s58, s{sW}, 2\ns_add_u32 s57, s57, s58')
        e(f'v_lshlrev_b32 v100, 10, v102\nv_lshlrev_b32 v101, 5, v{C}\nv_lshlrev_b32 v103, 4, v103\nv_add3_u32 v100, v100, v101, v103')
        e(f's_mov_b32 s72, 0x000f000f\ns_mov_b32 s73, 0x000f000f\ns_mov_b32 s74, 0x00ff00ff\ns_mov_b32 s75, 0x00ff00ff')
        e(f's_mov_b64 exec, s[72:73]')
        e(f'buffer_load_dword v101, v100, {s(SRD_A,4)}, s57 offen')
        e(f's_xor_b32 s55, s{sH2S}, 0x2000')
        e(f'buffer_store_dword v{SX}, v{H2S}, {WSR}, s55 offen')
        e(f'v_mov_b32 v102, -1\nv_cmp_eq_u32 vcc, s{sSEN}, v101\nv_cndmask_b32 v101, v101, v102, vcc')
        e(f'buffer_store_dword v101, v{H2S}, {WSR}, s{sH2S} offen')
        e(f's_mov_b64 exec, -1')
        self.srd(SRD_A, sWO, 1 << 22)
        e(f'v_lshlrev_b32 v100, 12, v{G}\nv_lshlrev_b32 v101, 4, v{C}')
        e(f's_lshl_b32 s54, s{sH}, 17\ns_lshl_b32 s55, s{sW}, 8\ns_add_u32 s54, s54, s55\nv_add3_u32 v100, v100, v101, s54')
        TB = 24
        def stage_write(key, regs):
            sl = slot[pos[key]]
            e(f'ds_write_b128 v{WST}, {v(regs,4)} offset:{sl*2048}\nds_write_b128 v{WST}, {v(regs+4,4)} offset:{sl*2048+1024}')
        def arrive():
            e('s_barrier')
            L = self.lab('arr')
            e(f's_cmp_lg_u32 s{sW}, 0\ns_cbranch_scc1 {L}')
            e.raw(f'v_mov_b32 v102, 4'); e.raw('v_mov_b32 v103, 1'); e.raw('s_mov_b64 exec, 1')
            e.raw(f'global_atomic_add v102, v103, {s(sDBG,2)}'); e.raw('s_mov_b64 exec, -1'); e.raw('s_waitcnt vmcnt(0)')
            e.label(L)
        for sg in (0, 1):
            for rho in range(8):
                row = 64 * sg + 16 * (rho >> 2) + 2 * ((rho >> 1) & 1) + 32 * (rho & 1)
                e(f's_mov_b32 s54, {row*1024}')
                e(f'buffer_load_dwordx4 {v(TB+8*rho,4)}, v100, {s(SRD_A,4)}, s54 offen')
                e(f'buffer_load_dwordx4 {v(TB+8*rho+4,4)}, v100, {s(SRD_A,4)}, s54 offen offset:1024')
            for tl in range(8):
                key = ('o', sg, tl); d = home[key]
                for rho in range(8):
                    X, Y = TB + 8 * rho + (tl >> 1), TB + 8 * rho + 4 + (tl >> 1)
                    sel = sPHI if tl & 1 else sPLO
                    if d is None: e(f'v_perm_b32 v{ST+rho}, v{Y}, v{X}, s{sel}')
                    elif d < 256: e(f'v_perm_b32 v{d+rho}, v{Y}, v{X}, s{sel}')
                    else: e(f'v_perm_b32 v102, v{Y}, v{X}, s{sel}\nv_accvgpr_write_b32 a{d-256+rho}, v102')
                if d is None:
                    stage_write(key, ST); e('s_waitcnt lgkmcnt(0)')
            if sg == 0: arrive()
        self.srd(SRD_A, sWK, 1 << 22); self.srd(SRD_B, sWQ, 1 << 22); self.srd(SRD_X, sWV, 1 << 22)
        e(f'v_lshrrev_b32 v100, 1, v{G}\nv_lshlrev_b32 v100, 20, v100\nv_and_b32 v101, 1, v{G}\nv_lshlrev_b32 v101, 17, v101\nv_add_u32 v100, v100, v101')
        e(f'v_lshlrev_b32 v101, 2, v{C}\ns_lshl_b32 s54, s{sH}, 8\ns_lshl_b32 s55, s{sW}, 6\ns_add_u32 s54, s54, s55\nv_add3_u32 v100, v100, v101, s54\nv_add_u32 v101, 8192, v100')
        for u in range(4):
            e(f's_add_u32 s{56+u}, s{sW}, {u}\ns_and_b32 s{56+u}, s{56+u}, 3\ns_lshl_b32 s{56+u}, s{56+u}, 14')
        groups = []
        for m, srd in (('k', SRD_A), ('q', SRD_B), ('v', SRD_X)):
            for sl in range(8):
                ents = []; post = []
                dst = []
                for p in (0, 1):
                    key = (m, sl, p)
                    if home[key] is None:
                        dst.append(ST + 8 * p); post.append((key, ST + 8 * p))
                    else: dst.append(home[key])
                for rho in range(8):
                    row = 256 * (rho >> 2) + 8 * ((rho >> 1) & 1) + 32 * (rho & 1) + 64 * (sl & 1)
                    ents.append((f's_add_u32 s54, s{56+(sl>>1)}, {row*8192}', dst[0] + rho, dst[1] + rho))
                def mk(post=post):
                    def f():
                        for key, rg in post:
                            stage_write(key, rg); e('s_waitcnt lgkmcnt(0)')
                    return f
                groups.append((srd, ents, mk()))
        self.load_pairs(groups, 24, 3, 100, 101)
        self.stamp(2, (100,))
        e(f'v_bfe_u32 v100, v{C}, 1, 1\nv_mov_b32 v101, 0x4444\nv_mov_b32 v102, 0xeeee\nv_cmp_eq_u32 vcc, 1, v100\nv_cndmask_b32 v{IDX}, v101, v102, vcc')
        e(f'v_lshlrev_b32 v101, 1, v{G}\nv_lshrrev_b32 v102, 3, v{C}\nv_add_u32 v101, v101, v102\nv_lshlrev_b32 v101, 13, v101')
        e(f'v_and_b32 v103, 7, v{C}\nv_lshlrev_b32 v104, 3, v103\ns_lshl_b32 s54, s{sW}, 16\ns_lshl_b32 s55, s{sH}, 6\ns_add_u32 s54, s54, s55\nv_add3_u32 v{H1S}, v101, v104, s54')
        e(f's_lshl_b32 s54, s{sW}, 11\ns_add_u32 s54, s54, {LMEM}\nv_add_u32 v{MEMW}, s54, v{L16}')
        for u in (1, 2, 3):
            e(f's_add_u32 s54, s{sW}, {u}\ns_and_b32 s54, s54, 3\ns_lshl_b32 s54, s54, 11\ns_add_u32 s54, s54, {LMEM}\nv_add_u32 v{MEMR+u-1}, s54, v{L16}')
        e(f's_mul_i32 s56, s{sW}, {TRS}\ns_add_u32 s56, s56, {LTR}')
        e(f'v_lshrrev_b32 v101, 2, v{C}\nv_mul_u32_u24 v101, 144, v101\nv_lshlrev_b32 v104, 5, v{G}\nv_and_b32 v105, 3, v{C}\nv_lshlrev_b32 v105, 2, v105')
        e(f'v_add3_u32 v101, v101, v104, v105\nv_add_u32 v{TRW}, s56, v101')
        e(f'v_lshrrev_b32 v101, 2, v{C}\nv_lshlrev_b32 v101, 1, v101\nv_and_b32 v104, 1, v{C}\nv_add_u32 v106, v101, v104')
        e(f'v_mul_u32_u24 v107, 144, v{G}\nv_lshlrev_b32 v101, 7, v{G}\nv_lshlrev_b32 v104, 2, v{C}\nv_add_u32 v{KTR}, v101, v104')
        e(f'v_lshlrev_b32 v101, 4, v103\ns_add_u32 s57, s56, 640\nv_add3_u32 v{QQR}, v107, v101, s57')
        e(f'v_mov_b32 v101, {LZ}\nv_cmp_eq_u32 vcc, 0, v102\nv_cndmask_b32 v{Q0R}, v101, v{QQR}, vcc\nv_cndmask_b32 v{Q1R}, v{QQR}, v101, vcc')
        e(f'v_mul_u32_u24 v101, {TRS}, v102\nv_lshlrev_b32 v104, 4, v103\nv_add3_u32 v101, v101, v104, v107\nv_add_u32 v{QQR}, {LTR+640}, v101')
        e(f'v_mul_u32_u24 v101, {TRS}, v100\nv_lshlrev_b32 v104, 4, v106\nv_add3_u32 v101, v101, v104, v107\nv_add_u32 v{K2R}, {LTR}, v101')
        e(f'v_lshlrev_b32 v101, 3, v{G}\nv_add_u32 v101, v101, v103')
        e(f'v_lshlrev_b32 v104, 4, v101\ns_mul_i32 s54, s{sW}, 640\ns_add_u32 s54, s54, {LO}\nv_add_u32 v{OW}, s54, v104')
        e(f'v_mul_u32_u24 v101, 640, v100\nv_lshlrev_b32 v104, 7, v{G}\nv_lshlrev_b32 v105, 4, v106\nv_add3_u32 v101, v101, v104, v105\nv_add_u32 v{OR_}, {LO}, v101')
        e(f's_lshl_b32 s54, s{sW}, 12\ns_add_u32 s54, s54, {LKV}\ns_mov_b32 m0, s54\nv_add_u32 v{PFA}, s54, v{L16}')
        e(f'v_mov_b32 v101, 0x3f80\nv_mov_b32 v104, 0x3f800000\nv_mov_b32 v105, 0')
        for i in range(4):
            e(f'v_cmp_eq_u32 vcc, {4*i}, v{C}\nv_cndmask_b32 v{SEL+i}, v105, v101, vcc\nv_cmp_eq_u32 vcc, {4*i+1}, v{C}\nv_cndmask_b32 v{SEL+i}, v{SEL+i}, v104, vcc')
        for i in range(4): e(f'v_mov_b32 v{ONES+i}, 0x3f803f80')
        for i in range(4): e(f'v_mov_b32 v{SX+i}, 0')
        e(f'v_mov_b32 v101, {LZ}\nds_write_b128 v101, {v(SX,4)}')
        FLA = L8
        e(f's_lshl_b32 s54, s{sH}, 14\ns_lshl_b32 s55, s{sW}, 12\ns_add_u32 s{sKV}, s54, s55\ns_add_u32 s{sKV}, s{sKV}, {KV}')
        e(f's_lshl_b32 s54, s{sH}, 13\ns_lshl_b32 s55, s{sW}, 11\ns_add_u32 s{sKVM}, s54, s55\ns_add_u32 s{sKVM}, s{sKVM}, {KVM - 0x40000}')
        e(f's_lshl_b32 s54, s{sH}, 7\ns_lshl_b32 s55, s{sW}, 2\ns_add_u32 s{sPROG}, s54, s55\ns_add_u32 s{sPROG}, s{sPROG}, {F_PROG}')
        e(f's_lshl_b32 s54, s{sH}, 10\ns_lshl_b32 s55, s{sW}, 8\ns_add_u32 s{sFL}, s54, s55\ns_add_u32 s{sFL}, s{sFL}, {F_KVX}')
        e(f's_mov_b32 s{sT}, 0')
        e('s_waitcnt lgkmcnt(0)')
        self.wait_counter(4, 32, 100)
        self.wait_counter(192, 128, 100)
        def flag_spin(off):
            L = self.lab('fs'); D = self.lab('fsd')
            e.label(L)
            e.raw(f'buffer_load_dword v{FLGV}, off, {WSR}, s{sFL} offset:{off} sc1'); e.raw('s_waitcnt vmcnt(0)')
            e.raw(f'v_cmp_eq_u32 vcc, 0, v{FLGV}'); e.raw(f's_cbranch_vccz {D}')
            self.spin_check()
            e.raw('s_sleep 1'); e.raw(f's_branch {L}')
            e.label(D)
        flag_spin(0); flag_spin(4)
        dma = lambda i, sr: f'buffer_load_dwordx4 v{L16}, {WSR}, s{sr} offen offset:{1024*i} sc1 lds'
        for i in range(4): e(dma(i, sKV))
        e('s_waitcnt vmcnt(0)')
        e(f's_add_u32 s{sFL}, s{sFL}, 8')
        e('s_barrier')
        self.stamp(3, (100,))
        def rf(n, half=None):
            r = staged[n]; sl = slot[n]
            t = [f'ds_read_b128 {v(r,4)}, v{WST} offset:{sl*2048}', f'ds_read_b128 {v(r+4,4)}, v{WST} offset:{sl*2048+1024}']
            return '\n'.join(t) if half is None else t[half]
        OAq = 64
        def S(n, fill=None):
            m, sl, p = seq[n]
            if m == 'o': d, A = MEMA + 4 * p, OAq + 4 * sl
            else: d, A = {'k': ACK, 'q': ACQ, 'v': ACV}[m] + 4 * p, MEMA + 4 * sl
            hm = home[seq[n]]
            B = R(hm, 8) if hm is not None else v(staged[n], 8)
            e(f'v_smfmac_f32_16x16x64_bf16 {v(d,4)}, {v(A,4)}, {B}, v{IDX}')
            if fill: e(fill)
        def zero(r0, n):
            for r in range(r0, r0 + n, 2): e(f'v_mov_b64 {v(r,2)}, 0')
        def check(r, retry, tag):
            e(f'v_max3_u32 v{SM_}, v{r}, v{r+1}, v{r+2}\nv_max3_u32 v{SM_+1}, v{r+3}, v{r+4}, v{r+5}\nv_max3_u32 v{SM_}, v{SM_}, v{r+6}, v{r+7}\nv_max_u32 v{SM_}, v{SM_}, v{SM_+1}')
            e(f'v_cmp_le_u32 vcc, s{sSEN}, v{SM_}\ns_cbranch_vccnz L_slow{tag}')
            e.label(f'L_ok{tag}')
        def slow(r, retry, tag, redo=''):
            e.label(f'L_slow{tag}')
            e.raw(f'v_cmp_eq_u32 vcc, s{sSEN}, v{SM_}')
            e.raw(f's_cbranch_vccz L_exact{tag}')
            e.label(f'L_again{tag}')
            if self.dev: e.raw(f's_add_u32 s{92+tag}, s{92+tag}, 1')
            e.raw(f's_add_u32 s{sSPIN}, s{sSPIN}, 1'); e.raw(f's_cmp_le_u32 s{sSPIN}, {1 << 19}'); e.raw(f's_cbranch_scc1 {retry}'); e.raw('s_branch L_END')
            e.label(f'L_exact{tag}')
            e.raw('s_waitcnt vmcnt(0)')
            for t_ in redo.split('\n'):
                if t_: e.raw(t_)
            e.raw(f'v_cmp_eq_u32 s[76:77], s{sSEN}, v{r}')
            for i in range(1, 8):
                e.raw(f'v_cmp_eq_u32 vcc, s{sSEN}, v{r+i}'); e.raw('s_or_b64 s[76:77], s[76:77], vcc')
            e.raw(f's_cbranch_scc0 L_ok{tag}')
            e.raw(f's_branch L_again{tag}')
        def nops(cyc):
            n = cyc // 4
            while n > 0:
                k = min(n, 16); e(f's_nop {k-1}'); n -= k
        for n in (1, 3, 5, 7): e(rf(n))
        zero(ACK, 24)
        for i in range(4): e(f'v_mov_b32 v{SX+i}, s{sSEN}')
        e(f'v_mov_b32 v{FLGV}, 0\nv_mov_b32 v{LN0}, {WS_BYTES:#x}\nv_mov_b32 v{SM_}, v{H2S}\nv_mov_b32 v{H2S}, {WS_BYTES:#x}\nv_mov_b64 {v(VMK,2)}, 0')
        e(f's_mov_b64 exec, 1\nv_mov_b32 v{LN0}, 0\ns_mov_b64 exec, s[72:73]\nv_mov_b32 v{H2S}, v{SM_}\ns_mov_b64 exec, -1')
        if self.dev: e('s_mov_b32 s93, 0\ns_mov_b32 s94, 0\ns_memtime s[100:101]\ns_waitcnt lgkmcnt(0)')
        self.ct_init()
        e('s_waitcnt lgkmcnt(0)')
        e.raw('.p2align 6')
        add = lambda x: f'v_add_f32 v{x}, v{x}, v{x+2}'
        J = lambda *t: '\n'.join(t)
        e.label('L_step')
        e.reset()
        p2 = lambda: [e(f'buffer_load_dwordx4 {v(MEMA+4*m,4)}, v{L16}, {WSR}, s{sH2L} offen offset:{1024*m} sc1') for m in (0, 1)]
        e(f's_xor_b32 s{sH2S}, s{sH2S}, 0x2000\ns_xor_b32 s54, s{sH1L}, 0x40000')
        e(f's_add_u32 s55, s{sKV}, 0x80000\ns_add_u32 s56, s{sKVM}, 0x40000')
        if o.get('y2', 64):
            p2(); nops(o.get('y2', 64))
        e.label('L_p2')
        p2()
        e(f's_waitcnt vmcnt({2 if o.get("y2", 64) else 0})')
        e.reset(vmq=[set(), set()] if o.get('y2', 64) else [])
        check(MEMA, 'L_p2', 2)
        self.ct('01.got2')
        S(0, f'ds_write_b128 v{MEMW}, {v(MEMA,4)}')
        S(1, f'ds_write_b128 v{MEMW}, {v(MEMA+4,4)} offset:1024')
        S(2); S(3)
        S(4)
        self.ct('1.s4')
        e.lgkm_for_writes()
        e('s_barrier')
        self.ct('1.bar')
        mr = lambda u, m: f'ds_read_b128 {v(MEMA+8+8*u+4*m,4)}, v{MEMR+u} offset:{1024*m}'
        kvr = lambda i: f'ds_read_b128 {v(KX+4*i,4)}, v{PFA} offset:{1024*i}'
        arm = lambda i: f'buffer_store_dwordx4 {v(SX,4)}, v{L16}, {WSR}, s54 offen offset:{1024*i}'
        e(mr(0, 0))
        S(5, mr(0, 1)); S(6, mr(1, 0)); S(7, mr(1, 1)); S(8, mr(2, 0))
        S(9, J(mr(2, 1), f'buffer_store_dword v{SX}, v{H2S}, {WSR}, s{sH2S} offen'))
        S(10, rf(17))
        S(11, arm(0))
        self.ct('1.s11')
        S(12, J(kvr(0), kvr(1)))
        S(13, rf(20))
        S(14, J(kvr(2), kvr(3)))
        S(15, arm(1))
        nyoung = len(e.vmq)
        S(16)
        S(17, rf(24))
        S(18, f'buffer_store_dword v{FLGV}, v{LN0}, {WSR}, s{sPROG} offen sc1')
        self.ct('1.s18')
        S(19, f'buffer_load_dword v{FLGV}, off, {WSR}, s{sFL} sc1')
        S(20, rf(27))
        e('s_waitcnt lgkmcnt(4)')
        S(21, dma(0, 55))
        S(22)
        S(23)
        S(24, rf(31))
        S(25, J(dma(1, 55), 's_nop 0'))
        self.ct('1.s25')
        S(26, J(add(ACQ), add(ACQ + 1)))
        S(27, J(add(ACQ + 4), add(ACQ + 5)))
        S(28, f'v_cvt_pk_bf16_f32 v{ACQ+2}, v{ACQ}, v{ACQ+4}\nv_cvt_pk_bf16_f32 v{ACQ+3}, v{ACQ+1}, v{ACQ+5}')
        QB0, QB1 = ACQ, ACQ + 4
        S(29, J(f'ds_write2_b32 v{TRW}, v{ACQ+2}, v{ACQ+3} offset0:160 offset1:164', f'ds_read_b128 {v(QB0,4)}, v{Q0R}'))
        S(30, J(f'ds_read_b128 {v(QB1,4)}, v{Q1R}', dma(2, 55)))
        self.ct('1.s30')
        S(31, rf(36))
        S(32)
        if o.get('y2', 64):
            e(f's_waitcnt vmcnt({len(e.vmq) - 2})'); nyoung -= 2
        S(33)
        e.lgkm_for_writes()
        e('s_barrier')
        Q2 = MEMA
        S(34, f'ds_read_b128 {v(Q2,4)}, v{QQR}\nds_read_b128 {v(Q2+4,4)}, v{QQR} offset:{2*TRS}')
        S(35, dma(3, 55))
        self.ct('015.kend')
        KP = 110
        e(f'v_mfma_f32_16x16x32_bf16 {v(SX,4)}, {v(KX,4)}, {v(QB0,4)}, 0')
        e(f'v_mfma_f32_16x16x32_bf16 {v(SX,4)}, {v(KX+4,4)}, {v(QB1,4)}, {v(SX,4)}')
        e(J(add(ACK), add(ACK + 1), add(ACK + 4), add(ACK + 5)))
        e(f'v_cvt_pk_bf16_f32 v{KP}, v{ACK}, v{ACK+4}\nv_cvt_pk_bf16_f32 v{KP+1}, v{ACK+1}, v{ACK+5}')
        self.ct('5.kp')
        S(36, J(f'ds_write2_b32 v{TRW}, v{KP}, v{KP+1} offset0:0 offset1:4', f'ds_write_b128 v{MEMW}, {v(SX,4)}'))
        self.ct('5.w')
        RM = 108
        S(37, J(f's_cmp_eq_u32 s{sT}, 63', f'v_mov_b32 v{RM}, 0xff800000'))
        S(39, f'v_mov_b32 v{RM+1}, 0xff800000')
        S(40, f'buffer_store_dwordx2 {v(VMK,2)}, v{L8}, {WSR}, s{sKVM} offen offset:1024 sc1')
        self.ct('5.s40')
        e.lgkm_for_writes()
        e('s_barrier')
        e('s_cbranch_scc1 L_CEND')
        st63 = (list(e.dsq), list(e.vmq))
        self.ct('0125.barS')
        K2 = ACK
        RX = [88, 92, 72]; SMD = 76
        kst = lambda i: f'buffer_store_dword v{KP+i}, v{KTR}, {WSR}, s56 offen offset:{64*i} sc1'
        e(f'ds_read_b128 {v(K2,4)}, v{K2R}\nds_read_b128 {v(K2+4,4)}, v{K2R} offset:{2*TRS}')
        S(41, J(f'ds_read_b128 {v(RX[0],4)}, v{MEMR}', f'ds_read_b128 {v(RX[1],4)}, v{MEMR+1}'))
        S(42, J(f'ds_read_b128 {v(RX[2],4)}, v{MEMR+2}', kst(0)))
        S(43, kst(1))
        self.ct('2.s43')
        e(f'v_mfma_f32_16x16x32_bf16 {v(SMD,4)}, {v(K2,4)}, {v(Q2,4)}, 0')
        e(rf(38))
        e(f'v_mfma_f32_16x16x32_bf16 {v(SMD,4)}, {v(K2+4,4)}, {v(Q2+4,4)}, {v(SMD,4)}')
        self.ct('2.m2')
        for i in range(4): e(f'v_add_f32 v{SX+i}, v{SX+i}, v{RX[0]+i}')
        for i in range(4): e(f'v_add_f32 v{RX[1]+i}, v{RX[1]+i}, v{RX[2]+i}')
        e(f'v_add_f32_dpp v{RM}, v{SMD+2}, v{SMD} row_ror:8 row_mask:0xf bank_mask:0x3\nv_add_f32_dpp v{RM+1}, v{SMD+3}, v{SMD+1} row_ror:8 row_mask:0xf bank_mask:0x3')
        for i in range(4): e(f'v_add_f32 v{SX+i}, v{SX+i}, v{RX[1]+i}')
        self.ct('2.sum')
        M0, M1 = 64, 65
        e(f'v_max3_f32 v{M0}, v{SX}, v{SX+1}, v{RM}\nv_max3_f32 v{M1}, v{SX+2}, v{SX+3}, v{RM+1}\nv_max_f32 v{M0}, v{M0}, v{M1}')
        S(44, rf(49))
        e(f'v_max_f32_dpp v{M1}, v{M0}, v{M0} row_ror:8 row_mask:0xf bank_mask:0xf')
        e(f'v_max_f32_dpp v{M0}, v{M0}, v{M0} row_ror:8 row_mask:0xf bank_mask:0xf')
        S(45, 's_nop 0')
        e(f'v_permlane16_swap_b32 v{M0}, v{M1}\nv_max_f32 v{M1+1}, v{M0}, v{M1}\nv_max_f32 v{M0}, v{M0}, v{M1}')
        S(38, rf(48))
        e(f'v_permlane32_swap_b32 v{M0}, v{M1+1}\nv_max_f32 v{M0}, v{M0}, v{M1+1}\nv_mul_f32 v{M0}, s{sSC}, v{M0}')
        self.ct('2.red')
        vals = [SX, SX + 1, SX + 2, SX + 3, RM, RM + 1]
        for x in vals: e(f'v_fma_f32 v{x}, v{x}, s{sSC}, -v{M0}')
        for x in vals: e(f'v_exp_f32 v{x}, v{x}')
        self.ct('2.exp')
        PX, PM, LA, OE, OO_ = 92, 68, 88, 72, 76
        e(f'v_cvt_pk_bf16_f32 v{PX}, v{SX}, v{SX+1}\nv_cvt_pk_bf16_f32 v{PX+1}, v{SX+2}, v{SX+3}')
        S(46, 's_nop 0')
        e(f'v_mov_b32_dpp v{PX+2}, v{PX} row_ror:8 row_mask:0xf bank_mask:0xf\nv_mov_b32_dpp v{PX+3}, v{PX+1} row_ror:8 row_mask:0xf bank_mask:0xf')
        S(47, f'v_cvt_pk_bf16_f32 v{PM}, v{RM}, v{RM+1}')
        self.ct('023.P')
        z1 = lambda r0: f'v_mov_b64 {v(r0,2)}, 0'
        e(f'v_mfma_f32_16x16x32_bf16 {v(LA,4)}, {v(ONES,4)}, {v(PX,4)}, 0')
        e(J(f'v_mov_b32 v{PM+1}, 0', z1(MEMA)))
        e(f'v_mfma_f32_16x16x32_bf16 {v(OE,4)}, {v(VX,4)}, {v(PX,4)}, 0')
        e(J(add(ACV), add(ACV + 1)))
        e(f'v_mfma_f32_16x16x32_bf16 {v(OO_,4)}, {v(VX+4,4)}, {v(PX,4)}, 0')
        e(J(f'v_cvt_pk_bf16_f32 v{VMK}, v{ACV}, v{ACV+1}', add(ACV + 4)))
        self.ct('3.x')
        e(f'v_mfma_f32_16x16x16_bf16 {v(LA,4)}, {v(ONES,2)}, {v(PM,2)}, {v(LA,4)}')
        e(J(add(ACV + 5), f'v_cvt_pk_bf16_f32 v{ACV+2}, v{ACV+4}, v{ACV+5}'))
        e(f'v_mfma_f32_16x16x16_bf16 {v(OE,4)}, {v(VMK,2)}, {v(PM,2)}, {v(OE,4)}')
        e(J(f'v_mov_b32 v{ACV+3}, 0', z1(MEMA + 2)))
        e(f'v_mfma_f32_16x16x16_bf16 {v(OO_,4)}, {v(ACV+2,2)}, {v(PM,2)}, {v(OO_,4)}')
        e(J(z1(MEMA + 4), z1(MEMA + 6)))
        self.ct('3.m')
        e(f'v_rcp_f32 v{LA}, v{LA}')
        e(f'v_mov_b32 v{VMK+1}, v{ACV+2}')
        for i in range(4): e(f'v_mul_f32 v{OE+i}, v{OE+i}, v{LA}')
        for i in range(4): e(f'v_mul_f32 v{OO_+i}, v{OO_+i}, v{LA}')
        e('s_mov_b64 exec, s[74:75]')
        for i in range(4): e(f'v_cvt_pk_bf16_f32 v{SX+i}, v{OE+i}, v{OO_+i}')
        self.ct('3.cvt')
        e(f'ds_write_b128 v{OW}, {v(SX,4)}\ns_mov_b64 exec, -1')
        e(J(z1(MEMA + 8), f's_mov_b32 s{sKVM}, s56', z1(MEMA + 10), f's_mov_b32 s{sKV}, s55', z1(MEMA + 12)))
        self.ct('3.z')
        e(f's_waitcnt vmcnt({len(e.vmq) - nyoung})')
        e.lgkm_for_writes()
        e('s_barrier')
        self.ct('034.barB')
        e(f'ds_read_b128 {v(OAq,4)}, v{OR_}\nds_read_b128 {v(OAq+4,4)}, v{OR_} offset:1280')
        e(J(z1(MEMA + 14), 's_nop 0', z1(MEMA + 16), 's_nop 0', z1(MEMA + 18), 's_nop 0', z1(MEMA + 20), 's_nop 0', z1(MEMA + 22)))
        PK = 72
        def post(b):
            t0, t1 = MEMA + 8 * b, MEMA + 8 * b + 4
            return [add(t0), add(t0 + 1), add(t1), add(t1 + 1),
                    f'v_cvt_pk_bf16_f32 v{PK+2*b}, v{t0}, v{t1}', f'v_cvt_pk_bf16_f32 v{PK+1+2*b}, v{t0+1}, v{t1+1}',
                    f'buffer_store_dwordx2 {v(PK+2*b,2)}, v{H1S}, {WSR}, s{sH1S if b < 2 else sH1S2} offen offset:{2048*(b&1)}']
        P = [post(b) for b in range(4)]
        self.ct('4.pre')
        S(48, J(rf(56), z1(MEMA + 24))); S(49, J(rf(57), z1(MEMA + 26))); S(50, J('s_nop 1', z1(MEMA + 28))); S(51, J('s_nop 1', z1(MEMA + 30)))
        S(52, P[0][0]); self.ct('4.s52')
        S(53, J(P[0][1], P[0][2])); S(54, J(P[0][3], P[0][4])); S(55, P[0][5])
        S(56, J(P[0][6], rf(63, 0)))
        S(57, J(rf(63, 1), P[1][0], P[1][1])); self.ct('4.s57'); S(58, J(P[1][2], P[1][3])); S(59, J(P[1][4], P[1][5]))
        S(60, J(P[1][6], 's_nop 0')); self.ct('4.s60')
        S(61, J(P[2][0], P[2][1])); S(62, J(P[2][2], P[2][3])); S(63, J(P[2][4], P[2][5], P[2][6])); self.ct('4.b2')
        e(J(*P[3]))
        self.ct('04.wo')
        def stagger(d0, dd, tag):
            nops(d0)
            if dd:
                for w in (1, 2, 3):
                    e(f's_cmp_lt_u32 s{sW}, {w}\ns_cbranch_scc1 L_sg{tag}')
                    nops(dd - 8)
            e.label(f'L_sg{tag}')
        stagger(o.get('d1', 150), o.get('g1', 0), 1)
        self.ct('0.d1')
        P1 = MEMA + 8
        p1 = lambda: [e(f'buffer_load_dwordx4 {v(P1+4*m,4)}, v{L16}, {WSR}, s{sH1L} offen offset:{1024*m} sc1') for m in (0, 1)]
        p1()
        if o.get('y1', 64):
            nops(o.get('y1', 64)); p1()
        for n in (1, 3, 5, 7): e(rf(n))
        for i in range(4): e(f'v_mov_b32 v{SX+i}, s{sSEN}')
        for i in range(4): e(z1(ACK + 2 * i))
        e.label('L_w1')
        x = 2 if o.get('y1', 64) else 0
        e.track = False
        RD = MEMA + 16
        red1 = f'v_mfma_f32_16x16x32_bf16 {v(RD,4)}, {v(SEL,4)}, {v(P1,4)}, 0'
        red2 = f'v_mfma_f32_16x16x32_bf16 {v(RD,4)}, {v(SEL,4)}, {v(P1+4,4)}, {v(RD,4)}'
        e(f's_waitcnt vmcnt({x+1})')
        e(f'v_max3_u32 v{SM_}, v{P1}, v{P1+1}, v{P1+2}\nv_max_u32 v{SM_}, v{SM_}, v{P1+3}')
        e(red1)
        e(f's_waitcnt vmcnt({x})')
        e(f'v_max3_u32 v{SM_}, v{SM_}, v{P1+4}, v{P1+5}\nv_max3_u32 v{SM_}, v{SM_}, v{P1+6}, v{P1+7}')
        e(red2)
        e(f'v_cmp_le_u32 vcc, s{sSEN}, v{SM_}\ns_cbranch_vccnz L_slow1')
        e.label('L_ok1')
        for sh in (4, 8):
            e(f'v_add_f32_dpp v{RD}, v{RD}, v{RD} row_ror:{sh} row_mask:0xf bank_mask:0xf\nv_add_f32_dpp v{RD+1}, v{RD+1}, v{RD+1} row_ror:{sh} row_mask:0xf bank_mask:0xf')
        e(f'v_cvt_pk_bf16_f32 v{PFL}, v{RD}, v{RD+1}')
        e(f'buffer_store_dword v{PFL}, v{H2S}, {WSR}, s{sH2S} offen')
        e.track = True
        e.reset(dsq=e.dsq)
        self.ct('0.pub')
        for i in range(4, 12): e(z1(ACK + 2 * i))
        e(f's_xor_b32 s{sH1S}, s{sH1S}, 0x40000\ns_xor_b32 s{sH1S2}, s{sH1S2}, 0x40000\ns_xor_b32 s{sH1L}, s{sH1L}, 0x40000\ns_xor_b32 s{sH2L}, s{sH2L}, 0x2000')
        e(f'v_readfirstlane_b32 s54, v{FLGV}\ns_cmp_lg_u32 s54, 0\ns_cbranch_scc0 L_fslow')
        e.label('L_fok')
        e(f'v_mov_b32 v{FLGV}, s{sT}')
        e(f's_add_u32 s{sFL}, s{sFL}, 4\ns_add_u32 s{sT}, s{sT}, 1')
        e('s_waitcnt lgkmcnt(0)')
        self.ct_acc()
        if self.dev and o.get('trace'):
            e.raw(f's_lshl_b32 s97, s98, 2'); e.raw(f's_add_u32 s97, s97, s{sW}'); e.raw('s_lshl_b32 s97, s97, 6'); e.raw(f's_add_u32 s97, s97, s{sT}'); e.raw('s_lshl_b32 s97, s97, 5'); e.raw(f's_add_u32 s97, s97, {STP+0x40000}')
            for i, sr in enumerate((26, 4, 6, 14, 16, 18, 93, 94)):
                e.raw(f'v_mov_b32 v{52+i}, s{sr}')
            e.raw(f'buffer_store_dwordx4 v[52:55], v{LN0}, {WSR}, s97 offen'); e.raw(f'buffer_store_dwordx4 v[56:59], v{LN0}, {WSR}, s97 offen offset:16')
        nops(max(0, o.get('d2', 200) - self.ct_cost() - (72 if o.get('trace') else 0)))
        self.ct_last()
        e('s_branch L_step')
        e.label('L_fslow')
        e(f's_cmp_ge_u32 s{sT}, 62\ns_cbranch_scc1 L_fok')
        flag_spin(0)
        e('s_branch L_fok')
        slow(MEMA, 'L_p2', 2)
        slow(P1, 'L_p1', 1, red1 + '\n' + red2)
        e.label('L_p1')
        e.track = False
        p1(); e('s_branch L_w1')
        e.track = True
        e.label('L_CEND')
        e.reset(*st63)
        e(J(rf(38), kst(0), kst(1)))
        for n in (41, 42, 43, 44, 45, 46, 47, 38): S(n)
        e(J(add(ACV), add(ACV + 1), add(ACV + 4), add(ACV + 5)))
        e(f'v_cvt_pk_bf16_f32 v{ACV}, v{ACV}, v{ACV+1}\nv_cvt_pk_bf16_f32 v{ACV+1}, v{ACV+4}, v{ACV+5}')
        e(f'buffer_store_dwordx2 {v(ACV,2)}, v{L8}, {WSR}, s56 offen offset:1024 sc1')
        e(f's_waitcnt vmcnt(0) lgkmcnt(0)\nv_mov_b32 v{SM_}, 64\ns_mov_b64 exec, 1\nbuffer_store_dword v{SM_}, off, {WSR}, s{sPROG} sc1\ns_mov_b64 exec, -1')
        if self.dev:
            e('s_memtime s[90:91]\ns_waitcnt lgkmcnt(0)\ns_sub_u32 s90, s90, s100')
            e(f's_lshl_b32 s97, s98, 8\ns_lshl_b32 s99, s{sW}, 6\ns_add_u32 s97, s97, s99\ns_add_u32 s97, s97, {STP+32}')
            e(f'v_mov_b32 v100, s90\nv_mov_b32 v101, s93\nv_mov_b32 v102, s94\nv_mov_b32 v103, s{sSPIN}\nbuffer_store_dwordx4 v[100:103], off, {WSR}, s97')
        self.tick_dump(11, 2, 100, 78)
        self.stamp(7, (100,))

    def build(self):
        e = self.e
        self.prologue()
        self.ln(); self.stamp(1)
        self.qkv(); self.ffn1(); self.tailphase()
        self.chain()
        e.label('L_END')
        e('s_endpgm')
        body = fix_hazards(e.lines)
        hdr = open('recurrent_scan__memory_aug_recurrent_mem_tr__glu_gated_reglu__prompt.s.ref').read().split('\n')
        top = [l for l in hdr if l.startswith(';') and '@launch' not in l and not l.startswith('; Override') and not l.startswith('; grid=')]
        out = top + ['; @launch grid=(256,1,1) block=(256,1,1) lds=163840', '.amdgcn_target "amdgcn-amd-amdhsa--gfx950"', '.text', f'.globl {KNAME}', '.p2align 8', f'.type {KNAME},@function', f'{KNAME}:']
        out += body
        out += ['.section .rodata,"a"', '.p2align 6', f'.amdhsa_kernel {KNAME}', '  .amdhsa_next_free_vgpr 512', '  .amdhsa_next_free_sgpr 102', '  .amdhsa_accum_offset 256',
                '  .amdhsa_group_segment_fixed_size 0', '  .amdhsa_kernarg_size 112', '  .amdhsa_user_sgpr_count 2', '  .amdhsa_user_sgpr_kernarg_segment_ptr 1',
                '  .amdhsa_system_sgpr_workgroup_id_x 1', '  .amdhsa_float_denorm_mode_32 3', '.end_amdhsa_kernel', '']
        return '\n'.join(out)

if __name__ == '__main__':
    import json
    dev = 'dev' in sys.argv[2:]
    opts = {}
    for a_ in sys.argv[2:]:
        if '=' in a_:
            k, x = a_.split('='); opts[k] = int(x)
    open(sys.argv[1], 'w').write(Gen(dev, opts).build())
```

```python
import sys, math
sys.path.insert(0, 'gen')
from asmlib import *

KNAME = 'recurrent_scan__memory_aug_recurrent_mem_tr__glu_gated_reglu__prompt_kernel'
XN   = 0x0000000
FLG  = 0x0200000
F_KVX, F_OFL, F_HFL, F_PROG = FLG, FLG + 0x8000, FLG + 0x10000, FLG + 0x14000
H1   = 0x0300000
H2   = 0x0380000
STP  = 0x0390000
DUM  = 0x0500000
KV   = 0x1000000
KVM  = 0x3040000
OO   = 0x4100000
HH   = 0x5100000
WS_BYTES = 0x10000000
SENT = 0xFFBFFFBF
CSC = (128 ** -0.5) * math.log2(math.e)
import struct
def fbits(x): return struct.unpack('<I', struct.pack('<f', x))[0]

sX, sMEM, sWQ, sWK, sWV, sWO, sWG, sWU, sWD, sOUT, sDBG, sWS = 4, 6, 8, 10, 12, 14, 20, 22, 24, 26, 28, 30
sW, sXCC, sJ = 32, 33, 34
SRD_WS, SRD_A, SRD_B, SRD_X = 36, 40, 44, 48
sPLO, sPHI = 52, 53
sSPIN = 35
WSR = s(SRD_WS, 4)

class Gen:
    def __init__(self, dev=False, opts=None):
        self.e = Emitter(); self.dev = dev; self.o = opts or {}
        self.uid = 0
    def lab(self, p):
        self.uid += 1; return f'L_{p}_{self.uid}'
    def srd(self, d, ptr, nbytes):
        e = self.e
        e(f's_mov_b32 s{d}, s{ptr}\ns_and_b32 s{d+1}, s{ptr+1}, 0xffff\ns_mov_b32 s{d+2}, {nbytes:#x}\ns_mov_b32 s{d+3}, 0x20000')
    def stamp(self, idx, vt=(112,)):
        if not self.dev: return
        e = self.e; t = vt[0]
        sv = (list(e.dsq), list(e.vmq))
        e.raw('s_memrealtime s[96:97]')
        e.raw('s_waitcnt lgkmcnt(0)')
        e.raw(f's_lshl_b32 s97, s98, 8')
        e.raw(f's_lshl_b32 s99, s{sW}, 6')
        e.raw(f's_add_u32 s97, s97, s99')
        e.raw(f's_add_u32 s97, s97, {STP + idx*4}')
        e.raw(f'v_mov_b32 v{t}, s96')
        e.raw(f'buffer_store_dword v{t}, off, {WSR}, s97')
        e.raw('s_waitcnt vmcnt(0)')
        e.reset()
    def stamp2(self, idx):
        if self.dev: self.e.raw(f's_memrealtime s[{4+2*idx}:{5+2*idx}]')
    def tick(self, k, base=76):
        if not self.dev or not self.o.get('tick'): return
        e = self.e
        e.raw('s_memtime s[90:91]'); e.raw('s_waitcnt lgkmcnt(0)'); e.dsq = []
        if k is not None:
            e.raw('s_sub_u32 s91, s90, s88'); e.raw(f's_add_u32 s{base+k}, s{base+k}, s91')
        e.raw('s_mov_b32 s88, s90')
    def tick_init(self, n, base=76):
        if not self.dev or not self.o.get('tick'): return
        for k in range(n): self.e.raw(f's_mov_b32 s{base+k}, 0')
    def tick_dump(self, n, slot, vt, base=76):
        if not self.dev or not self.o.get('tick'): return
        e = self.e
        e.raw(f's_lshl_b32 s97, s98, 8'); e.raw(f's_lshl_b32 s99, s{sW}, 6'); e.raw('s_add_u32 s97, s97, s99')
        e.raw(f's_add_u32 s97, s97, {STP + 0x10000*(slot+1)}')
        for k in range(n):
            e.raw(f'v_mov_b32 v{vt}, s{base+k}'); e.raw(f'buffer_store_dword v{vt}, off, {WSR}, s97 offset:{4*k}')
        e.raw('s_waitcnt vmcnt(0)'); e.vmq = []
    def ct(self, tag):
        if not (self.dev and self.o.get('tick')): return
        z = tag.split('.')[0]
        if z != '*' and str(self.o.get('zoom', 0)) not in z: return
        k = len(self.cts); self.cts.append(tag); assert k < 11
        self.e.raw(f's_memtime s[{4+2*k}:{5+2*k}]')
    def ct_last(self):
        if self.dev and self.o.get('tick'): self.e.raw('s_memtime s[26:27]')
    def ct_init(self):
        self.cts = []
        if self.dev and self.o.get('tick'):
            for k in range(11): self.e.raw(f's_mov_b32 s{78+k}, 0')
            self.ct_last()
    def ct_cost(self):
        return 8 * len(self.cts)
    def ct_acc(self):
        if not (self.dev and self.o.get('tick')): return
        e = self.e
        for k in range(len(self.cts)):
            p = 26 if k == 0 else 4 + 2 * (k - 1)
            e.raw(f's_sub_u32 s91, s{4+2*k}, s{p}'); e.raw(f's_add_u32 s{78+k}, s{78+k}, s91')
        sys.stderr.write('stamps: %s\n' % self.cts)
    def spin_check(self, fail='L_END', lim=1 << 17):
        e = self.e
        e(f's_add_u32 s{sSPIN}, s{sSPIN}, 1\ns_cmp_gt_u32 s{sSPIN}, {lim}\ns_cbranch_scc1 {fail}')
    def wait_counter(self, off, target, vt):
        e = self.e; L = self.lab('wc'); D = self.lab('wcd')
        e(f'v_mov_b32 v{vt}, {off}')
        e.label(L)
        e(f'global_load_dword v{vt+1}, v{vt}, {s(sDBG,2)} sc1')
        e('s_waitcnt vmcnt(0)')
        e(f'v_readfirstlane_b32 s54, v{vt+1}')
        e(f's_cmp_ge_u32 s54, {target}\ns_cbranch_scc1 {D}')
        self.spin_check()
        e(f's_sleep 2\ns_branch {L}')
        e.label(D)
    def wait_flags(self, voff, soff, vt, thr=None):
        e = self.e; L = self.lab('wf'); D = self.lab('wfd')
        e.label(L)
        e(f'buffer_load_dword v{vt}, v{voff}, {WSR}, {soff} offen sc1')
        e('s_waitcnt vmcnt(0)')
        if thr is None: e(f'v_cmp_eq_u32 vcc, 0, v{vt}')
        else: e(f'v_cmp_ge_u32 vcc, {thr}, v{vt}')
        e(f's_cbranch_vccz {D}')
        self.spin_check()
        e(f's_sleep 2\ns_branch {L}')
        e.label(D)
    def red_g(self, op, x, t):
        e = self.e
        e(f'v_mov_b32 v{t}, v{x}\nv_permlane16_swap_b32 v{x}, v{t}\n{op} v{x}, v{x}, v{t}')
        e(f'v_mov_b32 v{t}, v{x}\nv_permlane32_swap_b32 v{x}, v{t}\n{op} v{x}, v{x}, v{t}')
    def rbf(self, d, x):
        self.e(f'v_cvt_pk_bf16_f32 v{d}, v{x}, v{x}\nv_lshlrev_b32 v{d}, 16, v{d}')

    def prologue(self):
        e = self.e
        e('s_cmp_ge_u32 s2, 256\ns_cbranch_scc1 L_END')
        e('s_load_dwordx16 s[4:19], s[0:1], 0\ns_load_dwordx8 s[20:27], s[0:1], 64\ns_load_dwordx4 s[28:31], s[0:1], 96')
        e(f's_getreg_b32 s{sXCC}, hwreg(HW_REG_XCC_ID)\ns_and_b32 s{sXCC}, s{sXCC}, 7')
        e(f'v_lshrrev_b32 v1, 6, v0\nv_readfirstlane_b32 s{sW}, v1\nv_and_b32 v0, 63, v0')
        e(f's_mov_b32 s{sSPIN}, 0\ns_mov_b32 s{sPLO}, 0x05040100\ns_mov_b32 s{sPHI}, 0x07060302')
        e('s_waitcnt lgkmcnt(0)')
        self.srd(SRD_WS, sWS, WS_BYTES)
        e(f's_cmp_lg_u32 s{sW}, 0\ns_cbranch_scc1 L_notick')
        e(f's_lshl_b32 s54, s{sXCC}, 2\ns_add_u32 s54, s54, 128\ns_cmp_eq_u32 s{sXCC}, 0\ns_cselect_b32 s54, 0, s54')
        e(f'v_mov_b32 v2, s54\nv_mov_b32 v3, 1\nv_mov_b32 v5, 0\ns_mov_b64 exec, 1')
        e(f'global_atomic_add v4, v2, v3, {s(sDBG,2)} sc0\ns_waitcnt vmcnt(0)\nds_write_b32 v5, v4\ns_waitcnt lgkmcnt(0)\ns_mov_b64 exec, -1')
        e.label('L_notick')
        e('s_barrier\nv_mov_b32 v5, 0\nds_read_b32 v4, v5\ns_waitcnt lgkmcnt(0)')
        e(f'v_readfirstlane_b32 s{sJ}, v4')
        e('s_barrier')
        e(f's_cmp_ge_u32 s{sJ}, 32\ns_cbranch_scc1 L_END')
        if self.dev:
            e(f's_lshl_b32 s98, s{sXCC}, 5\ns_add_u32 s98, s98, s{sJ}')
            self.stamp(0)
        e(f's_cmp_eq_u32 s{sXCC}, 0\ns_cbranch_scc1 L_CHAIN')
        e(f's_sub_u32 s54, s{sXCC}, 1\ns_lshl_b32 s54, s54, 5\ns_add_u32 s{sJ}, s{sJ}, s54')

    def load_pairs(self, groups, tmp, depth, vA, vB, post=None):
        e = self.e
        n = len(groups[0][1]); T = tmp + depth * 2 * n
        def issue(k):
            srd, ents = groups[k][0], groups[k][1]
            b = tmp + (k % depth) * 2 * n
            for i, (so, _, _) in enumerate(ents):
                e(so)
                e(f'buffer_load_dword v{b+2*i}, v{vA}, {s(srd,4)}, s54 offen')
                e(f'buffer_load_dword v{b+2*i+1}, v{vB}, {s(srd,4)}, s54 offen')
        def finish(k):
            ents = groups[k][1]
            b = tmp + (k % depth) * 2 * n
            for i, (_, dE, dO) in enumerate(ents):
                for d, sel, tt in ((dE, sPLO, T), (dO, sPHI, T + 1)):
                    if d < 256: e(f'v_perm_b32 v{d}, v{b+2*i+1}, v{b+2*i}, s{sel}')
                    else: e(f'v_perm_b32 v{tt}, v{b+2*i+1}, v{b+2*i}, s{sel}\nv_accvgpr_write_b32 a{d-256}, v{tt}')
            if len(groups[k]) > 2 and groups[k][2]: groups[k][2]()
        for k in range(len(groups) + depth - 1):
            if k < len(groups): issue(k)
            if k - (depth - 1) >= 0: finish(k - (depth - 1))
            if post and k == depth - 1: post()

    def touch_qkv(self):
        e = self.e
        e(f'v_lshrrev_b32 v120, 1, v0\nv_lshlrev_b32 v120, 13, v120\nv_and_b32 v121, 1, v0\nv_lshlrev_b32 v121, 7, v121')
        e(f's_lshl_b32 s55, s62, 8\ns_sub_u32 s56, s63, 3\ns_lshl_b32 s56, s56, 2\ns_add_u32 s56, s56, s{sW}\ns_lshl_b32 s56, s56, 18\ns_add_u32 s55, s55, s56\nv_add3_u32 v120, v120, v121, s55')
        for ptr in (sWK, sWV, sWQ):
            self.srd(SRD_A, ptr, 1 << 22)
            e(f'buffer_load_dword v121, v120, {s(SRD_A,4)}, 0 offen')
    def ln(self):
        e = self.e
        sLN = 61
        e(f's_mul_i32 s62, s{sJ}, 9363\ns_lshr_b32 s62, s62, 16\ns_mul_i32 s54, s62, 7\ns_sub_u32 s63, s{sJ}, s54')
        e(f's_cmp_lt_u32 s63, 3\ns_cbranch_scc1 L_skipln')
        e(f's_lshl_b32 s{sLN}, s62, 2\ns_add_u32 s{sLN}, s{sLN}, s63\ns_sub_u32 s{sLN}, s{sLN}, 3')
        self.srd(SRD_X, sX, 2048 * 1024)
        e(f'v_lshlrev_b32 v1, 4, v0')
        e(f's_lshl_b32 s54, s{sLN}, 14\ns_lshl_b32 s55, s{sW}, 12\ns_add_u32 s54, s54, s55')
        for r in range(4):
            e(f'buffer_load_dwordx4 {v(16+4*r,4)}, v1, {s(SRD_X,4)}, s54 offen offset:{1024*r}')
        if self.o.get('touch', 1): self.touch_qkv()
        e(f'v_lshlrev_b32 v2, 2, v0\nv_mov_b32 v3, 0')
        e(f's_lshl_b32 s55, s{sLN}, 10\ns_lshl_b32 s56, s{sW}, 8\ns_add_u32 s55, s55, s56\ns_add_u32 s55, s55, {FLG}')
        e(f'buffer_store_dword v3, v2, {WSR}, s55 offen sc1')
        F = lambda r, i: 32 + 8 * r + i
        Dv = lambda r, i: 64 + 8 * r + i
        SM, VR, T = 96, 100, 104
        e(f's_mov_b32 s56, 0xffff0000\ns_mov_b32 s57, {fbits(1.0/512):#x}\ns_mov_b32 s58, {fbits(1e-5):#x}')
        for r in range(4):
            for i in range(4):
                e(f'v_lshlrev_b32 v{F(r,2*i)}, 16, v{16+4*r+i}\nv_and_b32 v{F(r,2*i+1)}, s56, v{16+4*r+i}')
        def red64(base):
            for sh in (1, 2, 4, 8):
                for r in range(4):
                    e(f'v_add_f32_dpp v{base+r}, v{base+r}, v{base+r} row_ror:{sh} row_mask:0xf bank_mask:0xf')
            for sw in ('16', '32'):
                for r in range(4): e(f'v_mov_b32 v{T+r}, v{base+r}')
                for r in range(4): e(f'v_permlane{sw}_swap_b32 v{base+r}, v{T+r}')
                for r in range(4): e(f'v_add_f32 v{base+r}, v{base+r}, v{T+r}')
        for r in range(4): e(f'v_add_f32 v{SM+r}, v{F(r,0)}, v{F(r,1)}')
        for i in range(2, 8):
            for r in range(4): e(f'v_add_f32 v{SM+r}, v{SM+r}, v{F(r,i)}')
        red64(SM)
        for r in range(4): e(f'v_mul_f32 v{SM+r}, s57, v{SM+r}')
        for r in range(4):
            for i in range(8): e(f'v_sub_f32 v{Dv(r,i)}, v{F(r,i)}, v{SM+r}')
        for r in range(4): e(f'v_mul_f32 v{VR+r}, v{Dv(r,0)}, v{Dv(r,0)}')
        for i in range(1, 8):
            for r in range(4): e(f'v_fmac_f32 v{VR+r}, v{Dv(r,i)}, v{Dv(r,i)}')
        red64(VR)
        for r in range(4):
            e(f'v_mul_f32 v{VR+r}, s57, v{VR+r}')
            self.rbf(VR + r, VR + r); self.rbf(SM + r, SM + r)
            e(f'v_add_f32 v{VR+r}, s58, v{VR+r}')
            self.rbf(VR + r, VR + r)
            e(f'v_sqrt_f32 v{VR+r}, v{VR+r}')
            self.rbf(VR + r, VR + r)
            e(f'v_rcp_f32 v{T+r}, v{VR+r}')
        for r in range(4):
            for i in range(8): e(f'v_sub_f32 v{F(r,i)}, v{F(r,i)}, v{SM+r}')
            for i in range(4):
                e(f'v_cvt_pk_bf16_f32 v108, v{F(r,2*i)}, v{F(r,2*i+1)}')
                e(f'v_lshlrev_b32 v{F(r,2*i)}, 16, v108\nv_and_b32 v{F(r,2*i+1)}, s56, v108')
            for i in range(8): e(f'v_mul_f32 v{Dv(r,i)}, v{F(r,i)}, v{T+r}')
            for i in range(8): e(f'v_fma_f32 v{F(r,i)}, -v{Dv(r,i)}, v{VR+r}, v{F(r,i)}')
            for i in range(8): e(f'v_fmac_f32 v{Dv(r,i)}, v{F(r,i)}, v{T+r}')
            for i in range(4): e(f'v_cvt_pk_bf16_f32 v{16+4*r+i}, v{Dv(r,2*i)}, v{Dv(r,2*i+1)}')
        e(f'v_lshlrev_b32 v2, 8, v0\ns_lshl_b32 s55, s{sW}, 6\nv_add_u32 v2, s55, v2')
        for r in range(4): e(f'ds_write_b128 v2, {v(16+4*r,4)} offset:{16*r}')
        e('s_waitcnt lgkmcnt(0)\ns_barrier')
        e(f's_lshl_b32 s55, s{sW}, 12\nv_add_u32 v2, s55, v1')
        for r in range(4): e(f'ds_read_b128 {v(16+4*r,4)}, v2 offset:{1024*r}')
        for r in range(4): e(f'buffer_store_dwordx4 {v(16+4*r,4)}, v1, {WSR}, s54 offen offset:{1024*r} sc1')
        e('s_waitcnt vmcnt(0)\ns_barrier')
        e(f's_cmp_lg_u32 s{sW}, 0\ns_cbranch_scc1 L_noln')
        e(f'v_mov_b32 v2, 192\nv_mov_b32 v3, 1\ns_mov_b64 exec, 1\nglobal_atomic_add v2, v3, {s(sDBG,2)}\ns_mov_b64 exec, -1')
        e('s_branch L_noln')
        e.label('L_skipln')
        e.label('L_noln')
        e.reset(); e('s_waitcnt vmcnt(0)')

    def row_loop(self, name, sT, step, mf, nacc_desc, epilogue, flagoff):
        e = self.e
        PF, FR = 80, 64
        sSO, sBUF, sPREV = 56, 57, 58
        def pf_issue():
            e(f's_lshl_b32 s{sSO}, s61, 15\ns_lshl_b32 s55, s{sW}, 13\ns_add_u32 s{sSO}, s{sSO}, s55')
            e(f's_add_u32 s55, s{sSO}, 4096')
            for i in range(8):
                e(f'buffer_load_dwordx4 {v(PF+4*i,4)}, v1, {WSR}, s{sSO if i < 4 else 55} offen offset:{1024*(i%4)} sc1')
        e(f'v_lshlrev_b32 v1, 4, v0\ns_lshl_b32 s55, s{sW}, 13\nv_add_u32 v2, s55, v1\nv_mov_b32 v3, v1\nv_mov_b32 v4, 1')
        e(f's_lshl_b32 s{sPREV}, s{sJ}, 2\ns_add_u32 s{sPREV}, s{sPREV}, s{sW}\ns_lshl_b32 s{sPREV}, s{sPREV}, 7\ns_add_u32 s{sPREV}, s{sPREV}, {DUM}')
        e(f's_mov_b32 s61, s{sT}')
        pf_issue()
        nst = self._nst
        e('s_mov_b64 exec, 1')
        for _ in range(nst): e(f'buffer_store_dword v4, off, {WSR}, s{sPREV}')
        e('s_mov_b64 exec, -1')
        e('s_barrier')
        self.tick_init(6); self.tick(None)
        L = f'L_{name}_loop'
        e.label(L)
        q0 = list(e.vmq)
        for i in range(8): e(f'ds_write_b128 v2, {v(PF+4*i,4)} offset:{1024*i}')
        e(f's_add_u32 s61, s{sT}, {step}\ns_min_u32 s61, s61, 63')
        e('s_waitcnt lgkmcnt(0)')
        self.tick(0)
        pf_issue()
        self.tick(1)
        e('s_barrier')
        self.tick(2)
        rd = lambda k: (e(f'ds_read_b128 {v(FR+8*(k%2),4)}, v3 offset:{1024*k}'), e(f'ds_read_b128 {v(FR+8*(k%2)+4,4)}, v3 offset:{16384+1024*k}'))
        rd(0)
        for k in range(16):
            if k < 15: rd(k + 1)
            mf(k, FR + 8 * (k % 2), FR + 8 * (k % 2) + 4)
            if k == 7:
                e('s_waitcnt vmcnt(8)')
                e(f's_mov_b64 exec, 1\nbuffer_store_dword v4, off, {WSR}, s{sPREV} sc1\ns_mov_b64 exec, -1')
        e('v_xor_b32 v2, 0x8000, v2\nv_xor_b32 v3, 0x8000, v3')
        self.tick(3)
        flagoff(sPREV)
        epilogue()
        e('s_waitcnt lgkmcnt(0)')
        self.tick(5)
        assert len(e.vmq) == len(q0), (len(e.vmq), len(q0))
        e(f's_add_u32 s{sT}, s{sT}, {step}\ns_cmp_lt_u32 s{sT}, 64\ns_cbranch_scc1 {L}')
        e('s_waitcnt vmcnt(0)')
        e(f's_mov_b64 exec, 1\nbuffer_store_dword v4, off, {WSR}, s{sPREV} sc1\ns_mov_b64 exec, -1')
        e('s_barrier')
        e.reset(vmq=[set()])
        self.tick_dump(6, 0 if name == 'qkv' else 1, 112)

    def qkv(self):
        e = self.e
        sH, sSUB, sT, sQ = 62, 63, 64, 65
        e(f's_mul_i32 s{sH}, s{sJ}, 9363\ns_lshr_b32 s{sH}, s{sH}, 16\ns_mul_i32 s54, s{sH}, 7\ns_sub_u32 s{sSUB}, s{sJ}, s54')
        self.srd(SRD_A, sWK, 1 << 22); self.srd(SRD_B, sWV, 1 << 22); self.srd(SRD_X, sWQ, 1 << 22)
        e(f'v_lshrrev_b32 v1, 4, v0\nv_lshlrev_b32 v1, 16, v1\nv_and_b32 v2, 15, v0\nv_lshlrev_b32 v2, 2, v2')
        e(f's_lshl_b32 s54, s{sH}, 8\ns_lshl_b32 s55, s{sW}, 6\ns_add_u32 s54, s54, s55\nv_add3_u32 v1, v1, v2, s54\nv_add_u32 v2, 8192, v1')
        W = lambda m, p, k: [256, 384, 128][m] + (k * 2 + p) * 4
        groups = []
        for m, srd in ((0, SRD_A), (1, SRD_B), (2, SRD_X)):
            for k2 in range(8):
                ents = []
                for k in (2 * k2, 2 * k2 + 1):
                    for i in range(4):
                        ents.append((f's_mov_b32 s54, {(32*k + 2*i) * 8192}', W(m, 0, k) + i, W(m, 1, k) + i))
                groups.append((srd, ents))
        self.load_pairs(groups, 16, 3, 1, 2)
        self.stamp(2)
        self.wait_counter(192, 128, 8)
        self.stamp(3)
        ACC = lambda m, p, t: 16 + ((m * 2 + p) * 2 + t) * 4
        def mf(k, X0, X1):
            for m in (0, 1, 2):
                for p in (0, 1):
                    for t, X in ((0, X0), (1, X1)):
                        d = v(ACC(m, p, t), 4); c = '0' if k == 0 else d
                        if m == 1: e(f'v_mfma_f32_16x16x32_bf16 {d}, {v(X,4)}, {R(W(m,p,k),4)}, {c}')
                        else: e(f'v_mfma_f32_16x16x32_bf16 {d}, {R(W(m,p,k),4)}, {v(X,4)}, {c}')
        def flagoff(sd):
            e(f's_lshl_b32 s{sd}, s{sH}, 10\ns_lshl_b32 s55, s{sW}, 8\ns_add_u32 s{sd}, s{sd}, s55\ns_lshl_b32 s55, s{sT}, 2\ns_add_u32 s{sd}, s{sd}, s55\ns_add_u32 s{sd}, s{sd}, {F_KVX}')
        def epi():
            e(f's_lshl_b32 s54, s{sT}, 19\ns_lshl_b32 s55, s{sH}, 14\ns_add_u32 s54, s54, s55\ns_lshl_b32 s55, s{sW}, 12\ns_add_u32 s54, s54, s55\ns_add_u32 s54, s54, {KV}')
            for t in (0, 1):
                o = 112 + 4 * t
                for i in range(4): e(f'v_cvt_pk_bf16_f32 v{o+i}, v{ACC(0,0,t)+i}, v{ACC(0,1,t)+i}')
                e(f'buffer_store_dwordx4 {v(o,4)}, v1, {WSR}, s54 offen offset:{1024*t} sc1')
            for p in (0, 1):
                o = 120 + 4 * p
                for t in (0, 1):
                    for hh in (0, 1): e(f'v_cvt_pk_bf16_f32 v{o+2*t+hh}, v{ACC(1,p,t)+2*hh}, v{ACC(1,p,t)+2*hh+1}')
                e(f'buffer_store_dwordx4 {v(o,4)}, v1, {WSR}, s54 offen offset:{2048+1024*p} sc1')
            for t in (0, 1):
                o = 64 + 4 * t
                for i in range(4): e(f'v_cvt_pk_bf16_f32 v{o+i}, v{ACC(2,0,t)+i}, v{ACC(2,1,t)+i}')
                e(f'ds_write_b128 v6, {v(o,4)} offset:{4096*t}')
            e('v_add_u32 v6, 8192, v6')
        e(f'v_lshlrev_b32 v6, 4, v0\ns_lshl_b32 s55, s{sW}, 10\ns_add_u32 s55, s55, 65536\nv_add_u32 v6, s55, v6')
        e(f's_mov_b32 s{sT}, s{sSUB}')
        self._nst = 5
        self.row_loop('qkv', sT, 7, mf, None, epi, flagoff)
        self.stamp(4)

    def ffn1(self):
        e = self.e
        sT, sPH = 64, 65
        e(f's_cmp_ge_u32 s{sJ}, 220\ns_cbranch_scc1 L_noffn')
        e(f's_mul_i32 s{sT}, s{sJ}, 5958\ns_lshr_b32 s{sT}, s{sT}, 16\ns_mul_i32 s54, s{sT}, 11\ns_sub_u32 s54, s{sJ}, s54')
        e(f's_lshl_b32 s{sPH}, s54, 2\ns_add_u32 s{sPH}, s{sPH}, s{sW}')
        self.srd(SRD_A, sWG, 512 * 2752); self.srd(SRD_B, sWU, 512 * 2752)
        e(f'v_lshrrev_b32 v1, 4, v0\nv_mul_u32_u24 v1, {8*2752}, v1\nv_and_b32 v2, 15, v0\nv_lshlrev_b32 v2, 2, v2')
        e(f's_lshl_b32 s54, s{sPH}, 6\nv_add3_u32 v1, v1, v2, s54\nv_add_u32 v2, 2752, v1')
        W = lambda m, p, k: 256 + m * 128 + (k * 2 + p) * 4
        groups = []
        for m, srd in ((0, SRD_A), (1, SRD_B)):
            for k2 in range(8):
                ents = []
                for k in (2 * k2, 2 * k2 + 1):
                    for i in range(4):
                        ents.append((f's_mov_b32 s54, {(32*k + 2*i) * 2752}', W(m, 0, k) + i, W(m, 1, k) + i))
                groups.append((srd, ents))
        self.load_pairs(groups, 16, 3, 1, 2)
        ACC = lambda m, p, t: 16 + ((m * 2 + p) * 2 + t) * 4
        def mf(k, X0, X1):
            for m in (0, 1):
                for p in (0, 1):
                    for t, X in ((0, X0), (1, X1)):
                        d = v(ACC(m, p, t), 4); c = '0' if k == 0 else d
                        e(f'v_mfma_f32_16x16x32_bf16 {d}, {R(W(m,p,k),4)}, {v(X,4)}, {c}')
        def flagoff(sd):
            e(f's_lshl_b32 s{sd}, s{sT}, 8\ns_lshl_b32 s55, s{sPH}, 2\ns_add_u32 s{sd}, s{sd}, s55\ns_add_u32 s{sd}, s{sd}, {F_HFL}')
        def epi():
            e(f's_mul_i32 s54, s{sT}, {2*44*1024}\ns_lshl_b32 s55, s{sPH}, 10\ns_add_u32 s54, s54, s55\ns_add_u32 s54, s54, {HH}\ns_add_u32 s55, s54, {44*1024}')
            e('s_mov_b32 s59, 0xffff0000')
            for t in (0, 1):
                o = 112 + 4 * t
                for i in range(4):
                    g0, g1, u0, u1 = ACC(0, 0, t) + i, ACC(0, 1, t) + i, ACC(1, 0, t) + i, ACC(1, 1, t) + i
                    e(f'v_cvt_pk_bf16_f32 v120, v{g0}, v{g1}\nv_cvt_pk_bf16_f32 v121, v{u0}, v{u1}')
                    e(f'v_lshlrev_b32 v{g0}, 16, v120\nv_and_b32 v{g1}, s59, v120\nv_lshlrev_b32 v{u0}, 16, v121\nv_and_b32 v{u1}, s59, v121')
                    e(f'v_max_f32 v{g0}, 0, v{g0}\nv_max_f32 v{g1}, 0, v{g1}')
                    e(f'v_mul_f32 v{g0}, v{g0}, v{u0}\nv_mul_f32 v{g1}, v{g1}, v{u1}')
                    e(f'v_cvt_pk_bf16_f32 v{o+i}, v{g0}, v{g1}')
                e(f'buffer_store_dwordx4 {v(o,4)}, v1, {WSR}, s{54+t} offen sc1')
        self._nst = 3
        self.row_loop('ffn', sT, 20, mf, None, epi, flagoff)
        e.label('L_noffn')
        e.reset(); e('s_waitcnt vmcnt(0)')
        self.stamp(5)

    def tailphase(self):
        e = self.e
        sH, sSUB = 62, 63
        sA, sF, sCS, sQT, sEH, sQL, sSC = 64, 65, 66, 67, 68, 69, 70
        MK = 72
        e(f's_lshr_b32 s{sF}, s{sJ}, 4\ns_and_b32 s{sCS}, s{sJ}, 15\ns_mov_b32 s{sA}, s{sSUB}')
        e(f's_lshr_b32 s{sQT}, s{sW}, 1\ns_and_b32 s{sEH}, s{sW}, 1')
        self.srd(SRD_A, sWO, 1 << 22); self.srd(SRD_B, sWD, 1376 * 1024)
        e(f'v_lshrrev_b32 v1, 4, v0\nv_lshlrev_b32 v1, 13, v1\nv_and_b32 v2, 15, v0\nv_lshlrev_b32 v2, 2, v2')
        e(f's_lshl_b32 s54, s{sCS}, 6\nv_add3_u32 v1, v1, v2, s54\nv_add_u32 v2, 1024, v1')
        e(f's_lshl_b32 s56, s{sW}, 20\ns_mul_i32 s57, s{sW}, {11*32*1024}')
        WO = lambda p, k: 256 + (k * 2 + p) * 4
        WD = lambda p, k: 168 + (k * 2 + p) * 4
        groups = []
        for k in range(11):
            groups.append((SRD_B, [(f's_add_u32 s54, s57, {(32*k + 2*i) * 1024}', WD(0, k) + i, WD(1, k) + i) for i in range(4)]))
        for k in range(32):
            groups.append((SRD_A, [(f's_add_u32 s54, s56, {(32*k + 2*i) * 1024}', WO(0, k) + i, WO(1, k) + i) for i in range(4)]))
        self.load_pairs(groups, 16, 7, 1, 2)
        self.srd(SRD_A, sOUT, 2048 * 1024); self.srd(SRD_X, sX, 2048 * 1024)
        L16, L8, ONE, QA, FO, FH, RW, RR, XO, PG = 1, 2, 3, 4, 5, 6, 7, 8, 9, 10
        e(f'v_lshlrev_b32 v{L16}, 4, v0\nv_lshlrev_b32 v{L8}, 3, v0\nv_mov_b32 v{ONE}, 1')
        e(f's_lshl_b32 s54, s{sQT}, 12\ns_add_u32 s54, s54, 65536\nv_add_u32 v{QA}, s54, v{L16}')
        e(f'v_and_b32 v11, 15, v0\nv_lshlrev_b32 v{FO}, 2, v0')
        e(f'v_min_u32 v{FH}, 10, v0\nv_lshlrev_b32 v{FH}, 2, v{FH}\ns_mul_i32 s54, s{sW}, 44\nv_add_u32 v{FH}, s54, v{FH}')
        e(f's_lshl_b32 s54, s{sW}, 12\nv_add_u32 v{RW}, s54, v{L16}')
        e(f'v_lshrrev_b32 v12, 4, v0\nv_bfe_u32 v13, v0, 2, 2\nv_and_b32 v14, 3, v0')
        e(f'v_lshlrev_b32 v13, 8, v13\nv_lshlrev_b32 v15, 4, v12\nv_lshlrev_b32 v14, 2, v14\nv_add3_u32 v{RR}, v13, v15, v14')
        e(f's_lshl_b32 s54, s{sW}, 6\nv_add_u32 v{RR}, s54, v{RR}')
        e(f'v_lshlrev_b32 v12, 10, v12\nv_lshlrev_b32 v13, 2, v11\ns_lshl_b32 s54, s{sW}, 12\ns_lshl_b32 s55, s{sCS}, 6\ns_add_u32 s54, s54, s55\nv_add3_u32 v{XO}, v12, v13, s54')
        e(f'v_and_b32 v{PG}, 3, v0\nv_lshlrev_b32 v{PG}, 2, v{PG}')
        KMA = 160
        e(f'v_lshrrev_b32 v12, 2, v11\nv_lshlrev_b32 v12, 7, v12\nv_and_b32 v13, 1, v11\nv_lshlrev_b32 v13, 6, v13\nv_and_b32 v14, 48, v0\nv_add3_u32 v{KMA}, v12, v13, v14')
        e(f's_lshl_b32 s54, s{sQT}, 4\nv_add_u32 v12, s54, v11\nv_lshrrev_b32 v13, 4, v0\nv_lshlrev_b32 v13, 2, v13\nv_sub_u32 v12, v12, v13')
        for tk in (0, 1):
            for i in range(4):
                e(f'v_cmp_le_i32 {s(MK+2*(4*tk+i),2)}, {16*tk+i}, v12')
        e(f's_mov_b32 s{sSC}, {fbits(CSC):#x}\ns_mov_b32 s71, 0xffff0000')
        self.stamp(6)
        XR = 11; AS, AF = 16, 24
        Q, V, S0, S1, MX = 32, 48, 64, 68, 161
        RING = 72; NR = 22
        K, KM, VM, SMm, PX, PM, OA = 72, 104, 120, 128, 132, 136, 140
        def prepA():
            L = self.lab('pa')
            e(f's_cmp_ge_u32 s{sA}, 64\ns_cbranch_scc1 {L}')
            e(f's_lshl_b32 s56, s{sA}, 19\ns_lshl_b32 s57, s{sH}, 14\ns_add_u32 s56, s56, s57\ns_add_u32 s56, s56, {KV}')
            e(f's_lshl_b32 s57, s{sEH}, 13\ns_add_u32 s57, s57, s56\ns_add_u32 s58, s57, 4096')
            for k in range(4):
                for tk in (0, 1):
                    e(f'buffer_load_dwordx4 {v(K+8*k+4*tk,4)}, v{L16}, {WSR}, s56 offen offset:{1024*tk} sc1')
                if k < 3: e('s_add_u32 s56, s56, 4096')
            for u in (0, 1):
                for p in (0, 1):
                    e(f'buffer_load_dwordx4 {v(V+8*u+4*p,4)}, v{L16}, {WSR}, s{57+u} offen offset:{2048+1024*p} sc1')
            for k in range(4): e(f'ds_read_b128 {v(Q+4*k,4)}, v{QA} offset:{1024*k}')
            for k in range(4):
                for tk, S_ in ((0, S0), (1, S1)):
                    e(f'v_mfma_f32_16x16x32_bf16 {v(S_,4)}, {v(K+8*k+4*tk,4)}, {v(Q+4*k,4)}, {"0" if k == 0 else v(S_,4)}')
            e(f'v_add_u32 v{QA}, 8192, v{QA}')
            e(f'v_mov_b32 v13, {fbits(-1e9*math.log2(math.e)):#x}')
            for tk, S_ in ((0, S0), (1, S1)):
                for i in range(4):
                    e(f'v_mul_f32 v{S_+i}, s{sSC}, v{S_+i}')
                    e(f'v_cndmask_b32 v{S_+i}, v13, v{S_+i}, {s(MK+2*(4*tk+i),2)}')
            e(f'v_max3_f32 v{MX}, v{S0}, v{S0+1}, v{S0+2}\nv_max3_f32 v{MX}, v{MX}, v{S0+3}, v{S1}\nv_max3_f32 v{MX}, v{MX}, v{S1+1}, v{S1+2}\nv_max_f32 v{MX}, v{MX}, v{S1+3}')
            e.label(L); e('s_waitcnt vmcnt(0) lgkmcnt(0)')
        def prepF():
            L = self.lab('pf')
            e(f's_cmp_ge_u32 s{sF}, 128\ns_cbranch_scc1 {L}')
            e(f's_lshl_b32 s56, s{sF}, 14')
            e(f'buffer_load_dword v{XR}, v{XO}, {s(SRD_X,4)}, s56 offen')
            e(f's_lshr_b32 s57, s{sF}, 1\ns_lshl_b32 s57, s57, 8\ns_add_u32 s57, s57, {F_HFL}')
            self.wait_flags(FH, 's57', 12)
            e.reset()
            e(f's_mul_i32 s57, s{sF}, {44*1024}\ns_mul_i32 s58, s{sW}, {11*1024}\ns_add_u32 s57, s57, s58\ns_add_u32 s57, s57, {HH}')
            for k in range(11):
                if k and k % 4 == 0: e('s_add_u32 s57, s57, 4096')
                e(f'buffer_load_dwordx4 {v(RING+4*k,4)}, v{L16}, {WSR}, s57 offen offset:{1024*(k%4)} sc1')
            for k in range(11):
                for p in (0, 1):
                    d = v(AF + 4 * p, 4)
                    e(f'v_mfma_f32_16x16x32_bf16 {d}, {R(WD(p,k),4)}, {v(RING+4*k,4)}, {"0" if k == 0 else d}')
            e.label(L); e('s_waitcnt vmcnt(0) lgkmcnt(0)')
        prepA(); prepF()
        e(f's_lshl_b32 s{sQL}, s{sH}, 7\ns_add_u32 s{sQL}, s{sQL}, {F_PROG}')
        DA = 162
        e(f'v_mov_b32 v{DA}, 32768')
        e.label('L_task')
        e.reset()
        e(f's_lshr_b32 s54, s{sF}, 1\ns_min_u32 s54, s54, s{sA}\ns_cmp_ge_u32 s54, 64\ns_cbranch_scc1 L_WEND')
        e(f's_cmp_lg_u32 s{sW}, 0\ns_cbranch_scc1 L_join')
        e(f's_min_u32 s57, s{sF}, 127\ns_lshl_b32 s57, s57, 8\ns_add_u32 s57, s57, {F_OFL}\ns_lshr_b32 s54, s{sF}, 1')
        e.label('L_poll')
        e(f'buffer_load_dword v12, v{PG}, {WSR}, s{sQL} offen sc1')
        e(f'buffer_load_dword v13, v{FO}, {WSR}, s57 offen sc1')
        e('s_waitcnt vmcnt(0)')
        e(f's_cmp_ge_u32 s{sA}, 64\ns_cbranch_scc1 L_noattn')
        e(f's_mov_b32 s56, 1\nv_cmp_ge_u32 vcc, s{sA}, v12\ns_cbranch_vccz L_dec')
        e(f's_cmp_le_u32 s{sA}, s54\ns_cbranch_scc1 L_idle')
        e(f's_cmp_lt_u32 s{sA}, {self.o.get("hfrom", 36)}\ns_cbranch_scc1 L_noattn')
        e(f'v_readfirstlane_b32 s55, v12\ns_add_u32 s55, s55, {self.o.get("hold", 0)}\ns_min_u32 s58, s{sA}, 61\ns_cmp_le_u32 s58, s55\ns_cbranch_scc1 L_idle')
        e.label('L_noattn')
        e(f's_mov_b32 s56, 0\ns_cmp_ge_u32 s{sF}, 128\ns_cbranch_scc1 L_dec')
        e(f's_mov_b32 s56, 2\nv_cmp_eq_u32 vcc, 0, v13\ns_cbranch_vccz L_dec')
        e.label('L_idle')
        e(f's_mov_b32 s56, 0\ns_add_u32 s{sSPIN}, s{sSPIN}, 1\ns_cmp_gt_u32 s{sSPIN}, {1 << 17}\ns_cbranch_scc1 L_dec')
        e(f's_sleep {self.o.get("slp", 2)}\ns_branch L_poll')
        e.label('L_dec')
        e(f'v_mov_b32 v12, s56\nds_write_b32 v{DA}, v12\ns_waitcnt lgkmcnt(0)')
        e.label('L_join')
        e(f's_barrier\nds_read_b32 v12, v{DA}\ns_waitcnt lgkmcnt(0)\nv_xor_b32 v{DA}, 4, v{DA}\nv_readfirstlane_b32 s56, v12')
        e('s_cmp_eq_u32 s56, 1\ns_cbranch_scc1 L_attn\ns_cmp_eq_u32 s56, 0\ns_cbranch_scc1 L_WEND')
        e.label('L_final')
        e.reset()
        self.stamp2(3)
        e(f's_lshl_b32 s57, s{sF}, 17\ns_lshl_b32 s58, s{sW}, 15\ns_add_u32 s57, s57, s58\ns_add_u32 s57, s57, {OO}')
        def old(k):
            if k and k % 4 == 0: e('s_add_u32 s57, s57, 4096')
            e(f'buffer_load_dwordx4 {v(RING+4*(k%NR),4)}, v{L16}, {WSR}, s57 offen offset:{1024*(k%4)} sc1')
        for k in range(NR): old(k)
        for k in range(32):
            for p in (0, 1):
                d = v(AS + 4 * p, 4)
                e(f'v_mfma_f32_16x16x32_bf16 {d}, {R(WO(p,k),4)}, {v(RING+4*(k%NR),4)}, {"0" if k == 0 else d}')
            if k + NR < 32: old(k + NR)
        self.stamp2(4)
        for q in range(4): e(f'ds_write_b128 v{RW}, {v(AS+4*q,4)} offset:{1024*q}')
        e('s_waitcnt lgkmcnt(0)\ns_barrier')
        self.stamp2(5)
        T = RING
        for w in range(4):
            for q in range(4): e(f'ds_read_b32 v{T+4*w+q}, v{RR} offset:{4096*w+1024*q}')
        e(f'v_xor_b32 v{RW}, 0x4000, v{RW}')
        for q in range(4): e(f'v_add_f32 v{T+q}, v{T+q}, v{T+4+q}')
        for q in range(4): e(f'v_add_f32 v{T+8+q}, v{T+8+q}, v{T+12+q}')
        e(f'v_xor_b32 v{RR}, 0x4000, v{RR}')
        for q in range(4): e(f'v_add_f32 v{T+q}, v{T+q}, v{T+8+q}')
        a0, a1, f0, f1, t0, t1, u0, u1 = range(T, T + 8)
        e(f'v_cvt_pk_bf16_f32 v{t0}, v{a0}, v{a1}\nv_cvt_pk_bf16_f32 v{t1}, v{f0}, v{f1}')
        e(f'v_lshlrev_b32 v{a0}, 16, v{t0}\nv_and_b32 v{a1}, s71, v{t0}\nv_lshlrev_b32 v{f0}, 16, v{t1}\nv_and_b32 v{f1}, s71, v{t1}')
        e(f's_mov_b32 s57, {fbits(-math.log2(math.e)):#x}\ns_lshl_b32 s56, s{sF}, 14')
        e(f'v_mul_f32 v{u0}, s57, v{f0}\nv_mul_f32 v{u1}, s57, v{f1}\nv_exp_f32 v{u0}, v{u0}\nv_exp_f32 v{u1}, v{u1}')
        e(f'v_add_f32 v{u0}, 1.0, v{u0}\nv_add_f32 v{u1}, 1.0, v{u1}\nv_rcp_f32 v{u0}, v{u0}\nv_rcp_f32 v{u1}, v{u1}')
        e(f'v_mul_f32 v{f0}, v{f0}, v{u0}\nv_mul_f32 v{f1}, v{f1}, v{u1}\nv_cvt_pk_bf16_f32 v{t1}, v{f0}, v{f1}')
        e(f'v_lshlrev_b32 v{f0}, 16, v{t1}\nv_and_b32 v{f1}, s71, v{t1}\nv_mul_f32 v{a0}, v{a0}, v{f0}\nv_mul_f32 v{a1}, v{a1}, v{f1}')
        e(f'v_cvt_pk_bf16_f32 v{t0}, v{a0}, v{a1}\nv_lshlrev_b32 v{a0}, 16, v{t0}\nv_and_b32 v{a1}, s71, v{t0}')
        e(f'v_lshlrev_b32 v{f0}, 16, v{XR}\nv_and_b32 v{f1}, s71, v{XR}\nv_add_f32 v{a0}, v{a0}, v{f0}\nv_add_f32 v{a1}, v{a1}, v{f1}')
        e(f'v_cvt_pk_bf16_f32 v{t0}, v{a0}, v{a1}')
        e(f'buffer_store_dword v{t0}, v{XO}, {s(SRD_A,4)}, s56 offen')
        e(f's_add_u32 s{sF}, s{sF}, 14')
        prepF()
        e('s_branch L_task')
        e.label('L_attn')
        e.reset()
        self.stamp2(0)
        e(f's_lshl_b32 s56, s{sA}, 18\ns_lshl_b32 s57, s{sH}, 13\ns_add_u32 s56, s56, s57\ns_add_u32 s56, s56, {KVM}')
        e(f's_add_u32 s57, s56, 4096\ns_lshl_b32 s58, s{sEH}, 12\ns_add_u32 s58, s58, s56')
        for k in range(4):
            e(f'buffer_load_dwordx4 {v(KM+4*k,4)}, v{KMA}, {WSR}, s{56+k//2} offen offset:{2048*(k%2)} sc1')
        for u in (0, 1):
            e(f'buffer_load_dwordx2 {v(VM+4*u,2)}, v{L8}, {WSR}, s58 offen offset:{2048*u+1024} sc1')
        e(f's_lshl_b32 s56, s{sA}, 1\ns_add_u32 s56, s56, s{sQT}\ns_lshl_b32 s57, s56, 17\ns_lshl_b32 s58, s{sH}, 12\ns_add_u32 s57, s57, s58')
        e(f's_lshl_b32 s58, s{sEH}, 11\ns_add_u32 s57, s57, s58\ns_add_u32 s57, s57, {OO}')
        e(f's_lshl_b32 s56, s56, 8\ns_lshl_b32 s58, s{sH}, 3\ns_add_u32 s56, s56, s58\ns_lshl_b32 s58, s{sEH}, 2\ns_add_u32 s56, s56, s58\ns_add_u32 s56, s56, {F_OFL}')
        e(f'v_mov_b32 v{PM+1}, 0')
        for k in range(4):
            e(f'v_mfma_f32_16x16x32_bf16 {v(SMm,4)}, {v(KM+4*k,4)}, {v(Q+4*k,4)}, {"0" if k == 0 else v(SMm,4)}')
        for u in (0, 1): e(f'v_mov_b32 v{VM+4*u+2}, v{VM+4*u+1}\nv_mov_b32 v{VM+4*u+3}, v{VM+4*u}')
        self.stamp2(1)
        e(f'v_mul_f32 v{SMm}, s{sSC}, v{SMm}\nv_mul_f32 v{SMm+1}, s{sSC}, v{SMm+1}\nv_max3_f32 v14, v{MX}, v{SMm}, v{SMm+1}')
        self.red_g('v_max_f32', 14, 15)
        vals = [S0 + i for i in range(4)] + [S1 + i for i in range(4)] + [SMm, SMm + 1]
        for x in vals: e(f'v_sub_f32 v{x}, v{x}, v14')
        for x in vals: e(f'v_exp_f32 v{x}, v{x}')
        e(f'v_add_f32 v14, v{vals[0]}, v{vals[1]}')
        for x in vals[2:]: e(f'v_add_f32 v14, v14, v{x}')
        self.red_g('v_add_f32', 14, 15)
        e('v_rcp_f32 v14, v14')
        for x in vals: e(f'v_mul_f32 v{x}, v{x}, v14')
        for tk, S_ in ((0, S0), (1, S1)):
            for hh in (0, 1): e(f'v_cvt_pk_bf16_f32 v{PX+2*tk+hh}, v{S_+2*hh}, v{S_+2*hh+1}')
        e(f'v_cvt_pk_bf16_f32 v{PM}, v{SMm}, v{SMm+1}')
        for u in (0, 1):
            for p in (0, 1):
                e(f'v_mfma_f32_16x16x32_bf16 {v(OA + 8 * u + 4 * p, 4)}, {v(V+8*u+4*p,4)}, {v(PX,4)}, 0')
        for u in (0, 1):
            for p in (0, 1):
                d = v(OA + 8 * u + 4 * p, 4)
                e(f'v_mfma_f32_16x16x16_bf16 {d}, {v(VM+4*u+2*p,2)}, {v(PM,2)}, {d}')
        for u in (0, 1):
            for i in range(4): e(f'v_cvt_pk_bf16_f32 v{KM+4*u+i}, v{OA+8*u+i}, v{OA+8*u+4+i}')
            e(f'buffer_store_dwordx4 {v(KM+4*u,4)}, v{L16}, {WSR}, s57 offen offset:{1024*u} sc1')
        self.stamp2(6)
        e('s_waitcnt vmcnt(0)')
        self.stamp2(2)
        e(f's_mov_b64 exec, 1\nbuffer_store_dword v{ONE}, off, {WSR}, s56 sc1\ns_mov_b64 exec, -1')
        e(f's_add_u32 s{sA}, s{sA}, 7')
        prepA()
        e('s_branch L_task')
        e.label('L_WEND')
        e.reset()
        self.stamp(7)
        if self.dev:
            for idx in range(7):
                e.raw(f'v_mov_b32 v112, s{4+2*idx}'); e.raw(f'buffer_store_dword v112, off, {WSR}, s97 offset:{4*(idx+1)}')
        e('s_branch L_END')

    def chain(self):
        e = self.e; o = self.o
        e.label('L_CHAIN'); e.reset()
        sH = sJ
        LW, LMEM, LTR, LZ = 0, 131072, 139264, 152064
        TRS = 1280
        L16, L8, IDX, H1S, H2S, MEMW, MEMR, WST, TRW, KTR, Q0R, Q1R, QQR, K2R, LN0, OW, OR_, PFA, PFL, FLGV, VMK = \
            0, 1, 2, 3, 4, 5, 6, 9, 10, 11, 12, 13, 14, 15, 16, 17, 18, 19, 20, 21, 22
        SEL, ONES, MEMA, ACK, ACQ, ACV, KX, VX, SX, SM_, ST = 24, 28, 32, 64, 72, 80, 88, 96, 104, 108, 112
        seq = []
        for m in 'qkv':
            for sl in (0, 1):
                for p in (0, 1): seq.append((m, sl, p))
        for m in 'qkv':
            for sl in range(2, 8):
                for p in (0, 1): seq.append((m, sl, p))
        for b in range(4): seq.append(('o', 0, b))
        for b in range(4):
            for sl in (1, 2, 3): seq.append(('o', sl, b))
        bA, bB, bC, bD = ST, ST + 8, KX, VX
        bE, bF, bG = MEMA + 8, MEMA + 16, MEMA + 24
        staged = {1: bC, 3: bD, 5: bA, 7: bB, 2: bE, 4: bF, 6: bG, 23: bA, 27: bB, 39: bA, 38: bB, 48: bB, 49: bA, 59: bD, 61: bA, 63: bB}
        slot = {n: i for i, n in enumerate(sorted(staged))}
        pool = list(range(256, 512, 8)) + list(range(128, 256, 8))
        home = {}; pos = {key: n for n, key in enumerate(seq)}
        gorder = [(m, sl) for m in 'kqv' for sl in (0, 2, 4, 6, 1, 3, 5, 7)]
        for key in [(m, sl, p) for m, sl in gorder for p in (0, 1)] + [k_ for k_ in seq if k_[0] == 'o']:
            home[key] = None if pos[key] in staged else pool.pop(0)
        assert not pool
        LN = 111
        G, C = 110, 109
        e(f'v_mov_b32 v{LN}, v0\nv_lshrrev_b32 v{G}, 4, v0\nv_and_b32 v{C}, 15, v0')
        e(f'v_lshlrev_b32 v{L8}, 3, v{LN}\nv_lshlrev_b32 v{L16}, 4, v{LN}')
        e(f's_lshl_b32 s54, s{sW}, 15\nv_add_u32 v{WST}, s54, v{L16}')
        sH1S, sH1S2, sH1L, sH2S, sH2L, sKV, sKVM, sT, sSEN, sSC, sPROG, sFL = 60, 61, 62, 63, 64, 65, 66, 67, 68, 69, 70, 71
        e(f's_mov_b32 s{sSEN}, {SENT:#x}\ns_mov_b32 s{sSC}, {fbits(CSC):#x}\ns_mov_b32 s58, 0')
        e(f's_lshl_b32 s54, s{sH}, 2\ns_add_u32 s54, s54, s{sW}\ns_lshl_b32 s{sH1L}, s54, 11\ns_add_u32 s{sH1L}, s{sH1L}, {H1}')
        e(f's_mov_b32 s{sH1S}, {H1}\ns_mov_b32 s{sH1S2}, {H1+4096}')
        for i in range(4): e(f'v_mov_b32 v{SX+i}, s{sSEN}')
        e(f's_xor_b32 s55, s{sH1L}, 0x40000')
        for sb in (sH1L, 55):
            for m in (0, 1): e(f'buffer_store_dwordx4 {v(SX,4)}, v{L16}, {WSR}, s{sb} offen offset:{1024*m}')
        e(f's_lshr_b32 s54, s{sH}, 3\ns_bfe_u32 s55, s{sH}, 0x20001\ns_and_b32 s56, s{sH}, 1')
        e(f's_lshr_b32 s59, s55, 1\ns_and_b32 s55, s55, 1')
        e(f's_lshl_b32 s57, s{sW}, 1\ns_add_u32 s57, s57, s56\ns_lshl_b32 s57, s57, 10\ns_lshl_b32 s58, s54, 8\ns_add_u32 s57, s57, s58\ns_lshl_b32 s58, s55, 7\ns_add_u32 s57, s57, s58\ns_lshl_b32 s58, s59, 5\ns_add_u32 s57, s57, s58')
        e(f'v_lshrrev_b32 v100, 1, v{G}\nv_lshlrev_b32 v100, 6, v100\nv_and_b32 v102, 1, v{G}\nv_lshlrev_b32 v102, 4, v102\nv_add_u32 v100, v100, v102')
        e(f'v_lshlrev_b32 v101, 2, v{C}\nv_add3_u32 v{H2S}, v100, v101, s57')
        e(f's_mov_b32 s{sH2S}, {H2}\ns_lshl_b32 s{sH2L}, s{sW}, 11\ns_add_u32 s{sH2L}, s{sH2L}, {H2}')
        self.srd(SRD_A, sMEM, 8192)
        e(f's_lshl_b32 s57, s55, 12\ns_lshl_b32 s58, s54, 8\ns_add_u32 s57, s57, s58\ns_lshl_b32 s58, s56, 7\ns_add_u32 s57, s57, s58\ns_lshl_b32 s58, s{sW}, 2\ns_add_u32 s57, s57, s58\ns_lshl_b32 s58, s59, 1\ns_add_u32 s57, s57, s58')
        e(f'v_lshlrev_b32 v100, 10, v{G}\nv_lshlrev_b32 v101, 5, v{C}\nv_add_u32 v100, v100, v101')
        e(f's_mov_b32 s72, 0x000f000f\ns_mov_b32 s73, 0x000f000f\ns_mov_b32 s74, 0x00ff00ff\ns_mov_b32 s75, 0x00ff00ff')
        e(f's_mov_b64 exec, s[72:73]')
        e(f'buffer_load_ushort v20, v100, {s(SRD_A,4)}, s57 offen\nbuffer_load_ushort v21, v100, {s(SRD_A,4)}, s57 offen offset:16')
        e(f's_xor_b32 s55, s{sH2S}, 0x2000')
        e(f'buffer_store_dword v{SX}, v{H2S}, {WSR}, s55 offen')
        e(f's_mov_b64 exec, -1')
        def pub0():
            e(f'v_lshl_or_b32 v20, v21, 16, v20\nv_mov_b32 v21, -1\nv_cmp_eq_u32 vcc, s{sSEN}, v20\nv_cndmask_b32 v20, v20, v21, vcc')
            e(f's_mov_b64 exec, s[72:73]\nbuffer_store_dword v20, v{H2S}, {WSR}, s{sH2S} offen\ns_mov_b64 exec, -1')
        self.srd(SRD_A, sWO, 1 << 22)
        e(f'v_lshlrev_b32 v100, 12, v{G}\nv_lshlrev_b32 v101, 4, v{C}')
        e(f's_lshl_b32 s54, s{sH}, 17\ns_lshl_b32 s55, s{sW}, 8\ns_add_u32 s54, s54, s55\nv_add3_u32 v100, v100, v101, s54')
        TB = 24
        def stage_write(key, regs):
            sl = slot[pos[key]]
            e(f'ds_write_b128 v{WST}, {v(regs,4)} offset:{sl*2048}\nds_write_b128 v{WST}, {v(regs+4,4)} offset:{sl*2048+1024}')
        def arrive():
            e('s_barrier')
            L = self.lab('arr')
            e(f's_cmp_lg_u32 s{sW}, 0\ns_cbranch_scc1 {L}')
            e.raw(f'v_mov_b32 v102, 4'); e.raw('v_mov_b32 v103, 1'); e.raw('s_mov_b64 exec, 1')
            e.raw(f'global_atomic_add v102, v103, {s(sDBG,2)}'); e.raw('s_mov_b64 exec, -1')
            e.label(L)
        for u in range(4):
            e(f's_add_u32 s{56+u}, s{sW}, {u}\ns_and_b32 s{56+u}, s{56+u}, 3\ns_lshl_b32 s{80+u}, s{56+u}, 14\ns_lshl_b32 s{56+u}, s{56+u}, 15')
        SRD_K = 84
        self.srd(SRD_K, sWK, 1 << 22); self.srd(SRD_B, sWQ, 1 << 22); self.srd(SRD_X, sWV, 1 << 22)
        PV_, BW, BR = 101, 104, 105
        e(f's_lshr_b32 s54, s{sW}, 1\ns_lshl_b32 s54, s54, 20\ns_and_b32 s55, s{sW}, 1\ns_lshl_b32 s89, s55, 18\ns_add_u32 s54, s54, s89\ns_lshl_b32 s89, s{sH}, 8\ns_add_u32 s54, s54, s89')
        e(f'v_lshlrev_b32 v102, 13, v{G}\nv_lshlrev_b32 v103, 4, v{C}\nv_add3_u32 v{PV_}, v102, v103, s54')
        e(f's_lshl_b32 s55, s55, 6\nv_xor_b32 v102, s55, v{L16}\ns_lshl_b32 s54, s{sW}, 12\ns_add_u32 s54, s54, {LMEM}\nv_add_u32 v{BW}, s54, v102')
        e(f'v_lshlrev_b32 v102, 2, v{C}\ns_lshl_b32 s54, s{sW}, 6\nv_add_u32 v102, s54, v102\nv_and_b32 v103, 1, v{G}\nv_lshlrev_b32 v103, 6, v103\nv_xor_b32 v102, v102, v103')
        e(f'v_lshlrev_b32 v103, 12, v{G}\nv_add_u32 v102, v102, v103')
        for u in range(4): e(f's_lshr_b32 s54, s{80+u}, 5\ns_add_u32 s54, s54, {LMEM}\nv_add_u32 v{BR+u}, s54, v102')
        RB, TT = 2, 102
        rbk = list(range(88, 100)) + [12, 13, 14, 15]
        def put(d, Y, X, sel):
            if d < 256: e(f'v_perm_b32 v{d}, v{Y}, v{X}, s{sel}')
            else: e(f'v_perm_b32 v{TT + (d & 1)}, v{Y}, v{X}, s{sel}\nv_accvgpr_write_b32 a{d-256}, v{TT + (d & 1)}')
        def wo_issue(sl, t0):
            for rp in range(4):
                row = 16 * (rp >> 1) + 2 * (rp & 1)
                e(f's_add_u32 s54, s{56+sl}, {row*1024}')
                e(f'buffer_load_dwordx4 {v(t0+8*rp,4)}, v100, {s(SRD_A,4)}, s54 offen')
                e(f'buffer_load_dwordx4 {v(t0+8*rp+4,4)}, v100, {s(SRD_A,4)}, s54 offen offset:1024')
        def wo_finish(sl, t0):
            for bb in range(4):
                key = ('o', sl, bb); d = home[key]; dd = ST + 8 * (bb & 1) if d is None else d
                for rho in range(8):
                    t_ = t0 + 8 * (rho >> 1)
                    put(dd + rho, t_ + 4 + bb, t_ + bb, sPHI if rho & 1 else sPLO)
                if d is None: stage_write(key, dd)
            e('s_waitcnt lgkmcnt(0)')
        corder = [(m, x, j) for m in 'kqv' for x in (0, 1) for j in range(4)]
        def pj_issue(k, t0):
            m, x, j = corder[k]; srd = {'k': SRD_K, 'q': SRD_B, 'v': SRD_X}[m]
            for i in range(4):
                row = 256 * (j >> 1) + 16 * (j & 1) + 64 * x + 4 * i
                e(f's_mov_b32 s54, {row*8192}')
                e(f'buffer_load_dwordx4 {R(t0+4*i,4)}, v{PV_}, {s(srd,4)}, s54 offen')
        def pj_finish(k, t0):
            m, x, j = corder[k]; bo = (k & 1) * 16384
            for i in range(4): e(f'ds_write_b128 v{BW}, {R(t0+4*i,4)} offset:{bo + 1024*i}')
            e('s_waitcnt lgkmcnt(0)\ns_barrier')
            for u in range(4):
                for hf in (0, 1):
                    e(f'ds_read2st64_b32 {v(rbk[4*u+2*hf],2)}, v{BR+u} offset0:{bo//256 + hf} offset1:{bo//256 + hf + 8}')
            for u in range(4):
                for p in (0, 1):
                    key = (m, 2 * u + x, p); d = home[key]; t_ = ST + 4 * u + 2 * p
                    for hf in (0, 1):
                        put(d + 2 * j + hf if d is not None else t_ + hf, rbk[4*u+2*hf] + 1, rbk[4*u+2*hf], sPHI if p else sPLO)
                    if d is None:
                        e(f'ds_write_b64 v{WST}, {v(t_,2)} offset:{slot[pos[key]]*2048 + 1024*(j>>1) + 8*(j&1)}')
        first_user = {}
        for k, (m, x, j) in enumerate(corder):
            for u in range(4):
                for p in (0, 1):
                    h_ = home[(m, 2 * u + x, p)]
                    if h_ is not None: first_user.setdefault(h_ & ~15, k)
        free = list(range(496, 255, -16))
        land = {}; nxt_g = [0]
        def pump(cap):
            while nxt_g[0] < 24 and len(e.vmq) + 4 <= cap:
                k = nxt_g[0]
                c_ = [b_ for b_ in free if first_user.get(b_, 99) >= k]
                if not c_: break
                b_ = min(c_, key=lambda x: first_user.get(x, 99)); free.remove(b_); land[k] = b_
                pj_issue(k, b_); nxt_g[0] += 1
        cap = o.get('cap', 12)
        e('s_movk_i32 s88, 0x80')
        e(f's_lshl_b32 s54, s{sH}, 10\ns_lshl_b32 s55, s{sW}, 8\ns_add_u32 s{sFL}, s54, s55\ns_add_u32 s{sFL}, s{sFL}, {F_KVX}')
        wo_issue(0, 24); wo_issue(1, 56)
        if cap >= 24: wo_issue(2, 128)
        pump(cap)
        pub0()
        wo_finish(0, 24)
        if cap < 24: wo_issue(2, 128)
        else: wo_issue(3, 24)
        pump(cap)
        wo_finish(1, 56); free += [56, 72]
        if cap < 24: wo_issue(3, 24)
        pump(cap)
        wo_finish(2, 128); free += [128, 144]; pump(cap)
        done3 = False
        for k in range(24):
            if not done3 and (k not in land or not any(('v', 24) in d_ or ('v', 55) in d_ for d_ in e.vmq) or ('v', 24) in e.vmq[0]):
                wo_finish(3, 24); free += [24, 40]; done3 = True; arrive(); pump(cap)
                if o.get('wst'): self.stamp2(4)
            pj_finish(k, land[k]); free.append(land[k]); pump(cap)
            if o.get('wst') and k in (7, 15): self.stamp2(5 if k == 7 else 6)
            if k == 9:
                e(f'v_mov_b32 v18, 0\nglobal_load_dword v16, v18, {s(sDBG,2)} offset:4 sc1\nglobal_load_dword v17, v18, {s(sDBG,2)} offset:192 sc1')
            if k == 18:
                e(f'v_cmp_gt_u32 vcc, 32, v16\nv_cmp_gt_u32 s[76:77], 0x80, v17'.replace('0x80', 's88'))
                e('s_or_b64 vcc, vcc, s[76:77]\ns_cbranch_vccz L_cok')
                q_ = (list(e.dsq), list(e.vmq))
                self.wait_counter(4, 32, 16); self.wait_counter(192, 128, 16)
                e.label('L_cok'); e.reset(*q_)
                e(f'buffer_load_dwordx2 v[22:23], off, {WSR}, s{sFL} sc1')
        assert done3
        e('s_waitcnt lgkmcnt(0)\ns_barrier')
        self.stamp(2, (100,))
        if self.dev and o.get('wst'):
            for idx in (4, 5, 6):
                e.raw(f'v_mov_b32 v100, s{4+2*idx}'); e.raw(f'buffer_store_dword v100, off, {WSR}, s97 offset:{4*(idx-2)}')
            e.raw('s_waitcnt vmcnt(0)')
        e(f'v_bfe_u32 v100, v{C}, 1, 1\nv_mov_b32 v101, 0x4444\nv_mov_b32 v102, 0xeeee\nv_cmp_eq_u32 vcc, 1, v100\nv_cndmask_b32 v{IDX}, v101, v102, vcc')
        e(f'v_cmp_lt_u32 vcc, 7, v{C}\nv_cndmask_b32 v101, v101, v102, vcc\nv_lshl_or_b32 v{IDX}, v101, 16, v{IDX}')
        e(f'v_lshlrev_b32 v101, 1, v{G}\nv_lshrrev_b32 v102, 3, v{C}\nv_add_u32 v101, v101, v102\nv_lshlrev_b32 v101, 13, v101')
        e(f'v_and_b32 v103, 7, v{C}\nv_lshlrev_b32 v104, 3, v103\ns_lshl_b32 s54, s{sW}, 16\ns_lshl_b32 s55, s{sH}, 6\ns_add_u32 s54, s54, s55\nv_add3_u32 v{H1S}, v101, v104, s54')
        e(f's_lshl_b32 s54, s{sW}, 11\ns_add_u32 s54, s54, {LMEM}\nv_add_u32 v{MEMW}, s54, v{L16}')
        for u in (1, 2, 3):
            e(f's_add_u32 s54, s{sW}, {u}\ns_and_b32 s54, s54, 3\ns_lshl_b32 s54, s54, 11\ns_add_u32 s54, s54, {LMEM}\nv_add_u32 v{MEMR+u-1}, s54, v{L16}')
        e(f's_mul_i32 s56, s{sW}, {TRS}\ns_add_u32 s56, s56, {LTR}')
        e(f'v_lshrrev_b32 v101, 2, v{C}\nv_mul_u32_u24 v101, 144, v101\nv_lshlrev_b32 v104, 5, v{G}\nv_and_b32 v105, 3, v{C}\nv_lshlrev_b32 v105, 2, v105')
        e(f'v_add3_u32 v101, v101, v104, v105\nv_add_u32 v{TRW}, s56, v101')
        e(f'v_lshrrev_b32 v101, 2, v{C}\nv_lshlrev_b32 v101, 1, v101\nv_and_b32 v104, 1, v{C}\nv_add_u32 v106, v101, v104')
        e(f'v_mul_u32_u24 v107, 144, v{G}\nv_lshlrev_b32 v101, 7, v{G}\nv_lshlrev_b32 v104, 2, v{C}\nv_add_u32 v{KTR}, v101, v104')
        e(f'v_lshlrev_b32 v101, 4, v103\ns_add_u32 s57, s56, 640\nv_add3_u32 v{QQR}, v107, v101, s57')
        e(f'v_mov_b32 v101, {LZ}\nv_cmp_eq_u32 vcc, 0, v102\nv_cndmask_b32 v{Q0R}, v101, v{QQR}, vcc\nv_cndmask_b32 v{Q1R}, v{QQR}, v101, vcc')
        e(f'v_mul_u32_u24 v101, {TRS}, v102\nv_lshlrev_b32 v104, 4, v103\nv_add3_u32 v101, v101, v104, v107\nv_add_u32 v{QQR}, {LTR+640}, v101')
        e(f'v_mul_u32_u24 v101, {TRS}, v100\nv_lshlrev_b32 v104, 4, v106\nv_add3_u32 v101, v101, v104, v107\nv_add_u32 v{K2R}, {LTR}, v101')
        e(f'v_lshlrev_b32 v101, 3, v{G}\nv_add_u32 v101, v101, v103')
        e(f'v_lshlrev_b32 v{PFA}, 7, v{LN}\nv_mov_b32 v101, {WS_BYTES:#x}\nv_cmp_lt_u32 vcc, 31, v{LN}\nv_cndmask_b32 v{PFA}, v{PFA}, v101, vcc')
        e(f'v_mov_b32 v101, 0x3f80\nv_mov_b32 v104, 0x3f800000\nv_mov_b32 v105, 0')
        for i in range(4):
            c0 = 4 * (2 * (i & 1)) + (i >> 1); c1 = c0 + 4
            e(f'v_cmp_eq_u32 vcc, {c0}, v{C}\nv_cndmask_b32 v{SEL+i}, v105, v101, vcc\nv_cmp_eq_u32 vcc, {c1}, v{C}\nv_cndmask_b32 v{SEL+i}, v{SEL+i}, v104, vcc')
        for i in range(4): e(f'v_mov_b32 v{ONES+i}, 0x3f803f80')
        for i in range(4): e(f'v_mov_b32 v{SX+i}, 0')
        e(f'v_mov_b32 v101, {LZ}\nds_write_b128 v101, {v(SX,4)}')
        FLA = L8
        e(f's_lshl_b32 s54, s{sH}, 14\ns_lshl_b32 s55, s{sW}, 12\ns_add_u32 s{sKV}, s54, s55\ns_add_u32 s{sKV}, s{sKV}, {KV}')
        e(f's_lshl_b32 s54, s{sH}, 13\ns_lshl_b32 s55, s{sW}, 11\ns_add_u32 s{sKVM}, s54, s55\ns_add_u32 s{sKVM}, s{sKVM}, {KVM - 0x40000}')
        e(f's_lshl_b32 s54, s{sH}, 7\ns_lshl_b32 s55, s{sW}, 2\ns_add_u32 s{sPROG}, s54, s55\ns_add_u32 s{sPROG}, s{sPROG}, {F_PROG}')
        e(f's_mov_b32 s{sT}, 0')
        e('s_waitcnt lgkmcnt(0)')
        def flag_spin(off):
            L = self.lab('fs'); D = self.lab('fsd')
            e.label(L)
            e.raw(f'buffer_load_dword v{FLGV}, off, {WSR}, s{sFL} offset:{off} sc1'); e.raw('s_waitcnt vmcnt(0)')
            e.raw(f'v_cmp_eq_u32 vcc, 0, v{FLGV}'); e.raw(f's_cbranch_vccz {D}')
            self.spin_check()
            e.raw('s_sleep 1'); e.raw(f's_branch {L}')
            e.label(D)
        e('s_waitcnt vmcnt(0)\nv_min_u32 v22, v22, v23\nv_cmp_eq_u32 vcc, 0, v22\ns_cbranch_vccz L_f01')
        flag_spin(0); flag_spin(4)
        e.label('L_f01')
        e(f's_add_u32 s{sFL}, s{sFL}, 8')
        e('s_barrier')
        self.stamp(3, (100,))
        def rf(n, half=None):
            r = staged[n]; sl = slot[n]
            t = [f'ds_read_b128 {v(r,4)}, v{WST} offset:{sl*2048}', f'ds_read_b128 {v(r+4,4)}, v{WST} offset:{sl*2048+1024}']
            return '\n'.join(t) if half is None else t[half]
        OAq = 64; WA = MEMA
        def S(n, fill=None):
            m, sl, p = seq[n]
            if m == 'o': d, A = WA + 4 * p, (SX if sl == 0 else OAq + 4 * (sl - 1))
            else: d, A = {'k': ACK, 'q': ACQ, 'v': ACV}[m] + 4 * p, MEMA + 4 * sl
            hm = home[seq[n]]
            B = R(hm, 8) if hm is not None else v(staged[n], 8)
            e(f'v_smfmac_f32_16x16x64_bf16 {v(d,4)}, {v(A,4)}, {B}, v{IDX}' + (' abid:1' if m == 'o' else ''))
            if fill: e(fill)
        def zero(r0, n):
            for r in range(r0, r0 + n, 2): e(f'v_mov_b64 {v(r,2)}, 0')
        def nops(cyc):
            n = cyc // 4
            while n > 0:
                k = min(n, 16); e(f's_nop {k-1}'); n -= k
        for n in (1, 3, 5, 7, 2, 6): e(rf(n))
        zero(ACK, 24)
        sTC, sTT, sTM = 74, 75, 57
        e(f's_mov_b32 s{sTC}, 0x10000\ns_mov_b32 s{sTT}, 0\ns_mov_b32 s{sTM}, 0\nv_mov_b32 v{OW}, s{sSEN}\nv_mov_b32 v{OR_}, 0xfffe0000')
        e(f'v_mov_b32 v{FLGV}, 0\nv_mov_b32 v{LN0}, {WS_BYTES:#x}\nv_mov_b32 v{SM_}, v{H2S}\nv_mov_b32 v{H2S}, {WS_BYTES:#x}\nv_mov_b64 {v(VMK,2)}, 0')
        e(f's_mov_b64 exec, 1\nv_mov_b32 v{LN0}, 0\ns_mov_b64 exec, s[72:73]\nv_mov_b32 v{H2S}, v{SM_}\ns_mov_b64 exec, -1')
        if self.dev: e('s_mov_b32 s93, 0\ns_mov_b32 s94, 0\ns_memtime s[100:101]\ns_waitcnt lgkmcnt(0)')
        self.ct_init()
        e('s_waitcnt lgkmcnt(0)')
        add = lambda x: f'v_add_f32 v{x}, v{x}, v{x+2}'
        z1 = lambda r0: f'v_mov_b64 {v(r0,2)}, 0'
        J = lambda *t: '\n'.join(t)
        def nxt():
            e(f's_xor_b32 s{sH2S}, s{sH2S}, 0x2000')
            e(f's_bfe_u32 s{sTM}, s{sT}, 0x10001\ns_lshl_b32 s{sTT}, s{sTM}, 16\ns_xor_b32 s{sTC}, s{sTT}, 0x10000')
            e(f's_add_u32 s55, s{sKV}, 0x80000\ns_add_u32 s56, s{sKVM}, 0x40000')
        nxt()
        y1, y2 = o.get('y1', 96), o.get('y2', 96)
        P1, RD = MEMA + 16, MEMA + 24
        p2 = lambda: [e(f'buffer_load_dwordx4 {v(MEMA+4*m,4)}, v{L16}, {WSR}, s{sH2L} offen offset:{1024*m} sc1') for m in (0, 1)]
        p1 = lambda: [e(f'buffer_load_dwordx4 {v(P1+4*m,4)}, v{L16}, {WSR}, s{sH1L} offen offset:{1024*m} sc1') for m in (0, 1)]
        red1 = f'v_mfma_f32_16x16x32_bf16 {v(RD,4)}, {v(SEL,4)}, {v(P1,4)}, 0'
        red2 = f'v_mfma_f32_16x16x32_bf16 {v(RD,4)}, {v(SEL,4)}, {v(P1+4,4)}, {v(RD,4)}'
        def wait_check(r, x, fail, m1='', m2=''):
            e(f's_waitcnt vmcnt({x+1})')
            e(f'v_max3_u32 v{SM_}, v{r}, v{r+1}, v{r+2}\nv_max_u32 v{SM_}, v{SM_}, v{r+3}')
            e(m1)
            e(f's_waitcnt vmcnt({x})')
            e(f'v_max3_u32 v{SM_}, v{SM_}, v{r+4}, v{r+5}\nv_max3_u32 v{SM_}, v{SM_}, v{r+6}, v{r+7}')
            e(m2)
            e(f'v_cmp_le_u32 vcc, s{sSEN}, v{SM_}\ns_cbranch_vccnz {fail}')
        def wait_check1(x, fail):
            r = P1
            e(f's_waitcnt vmcnt({x+1})')
            e(f'v_bitop3_b32 v{SM_}, v{r}, v{r+2}, s{sTM} bitop3:0x7e')
            e(red1)
            e(f's_waitcnt vmcnt({x})')
            e(f'v_bitop3_b32 v{SM_+1}, v{r+4}, v{r+6}, s{sTM} bitop3:0x7e')
            e(red2)
            e(f'v_bitop3_b32 v{SM_}, v{SM_}, v{SM_+1}, 1 bitop3:0xa8')
            e(f'v_cmp_ne_u32 vcc, 0, v{SM_}\ns_cbranch_vccnz {fail}')
        def publish():
            for sh in (4, 8):
                e(f'v_add_f32_dpp v{RD}, v{RD}, v{RD} row_ror:{sh} row_mask:0xf bank_mask:0xf\nv_add_f32_dpp v{RD+1}, v{RD+1}, v{RD+1} row_ror:{sh} row_mask:0xf bank_mask:0xf')
            e(f'v_cvt_pk_bf16_f32 v{PFL}, v{RD}, v{RD+1}')
            e(f'buffer_store_dword v{PFL}, v{H2S}, {WSR}, s{sH2S} offen')
        e.raw('.p2align 6')
        e.label('L_step')
        e.reset(); e.track = False
        p2()
        if y2:
            nops(y2); p2()
        e(f's_waitcnt vmcnt({4 if y2 else 2})')
        e(rf(4))
        dsq0 = list(e.dsq)
        wait_check(MEMA, 2 if y2 else 0, 'L_f2')
        e.label('L_ok2')
        e.track = True
        e.reset(dsq=dsq0, vmq=[set(), set()] if y2 else [])
        self.ct('01.got2')
        S(0, f'ds_write_b128 v{MEMW}, {v(MEMA,4)}')
        S(1, f'ds_write_b128 v{MEMW}, {v(MEMA+4,4)} offset:1024')
        S(2); S(3)
        S(4)
        self.ct('1.s4')
        e.lgkm_for_writes()
        e('s_barrier')
        self.ct('1.bar')
        mr = lambda u, m: f'ds_read_b128 {v(MEMA+8+8*u+4*m,4)}, v{MEMR+u} offset:{1024*m}'
        kvl = lambda i: f'buffer_load_dwordx4 {v(KX+4*i,4)}, v{L16}, {WSR}, s{sKV} offen offset:{1024*i} sc1'
        RM = 108
        e(mr(0, 0))
        S(5, mr(0, 1)); S(6, J(mr(1, 0), f'buffer_store_dword v{OW}, v{H2S}, {WSR}, s{sH2S} offen')); S(7, mr(1, 1)); S(8, J(mr(2, 0), kvl(0)))
        S(9, mr(2, 1))
        S(10, f'v_mov_b32 v{RM}, 0xff800000')
        S(11, f'v_mov_b32 v{RM+1}, 0xff800000')
        self.ct('1.s11')
        S(12, kvl(1))
        S(13, rf(23, 0))
        S(14)
        S(15, rf(23, 1))
        S(16, kvl(2))
        S(17, rf(27, 0))
        S(18)
        self.ct('1.s18')
        S(19, rf(27, 1))
        S(20, kvl(3))
        S(21)
        S(22, f'buffer_store_dword v{FLGV}, v{LN0}, {WSR}, s{sPROG} offen sc1')
        S(23, rf(39, 0))
        S(24, f'buffer_store_dwordx2 {v(VMK,2)}, v{L8}, {WSR}, s{sKVM} offen offset:1024 sc1')
        S(25, J(rf(39, 1), 's_nop 0'))
        self.ct('1.s25')
        S(26, J(add(ACQ), add(ACQ + 1)))
        S(27, J(f'buffer_load_dword v{FLGV}, off, {WSR}, s{sFL} sc1', add(ACQ + 4), add(ACQ + 5)))
        S(28, f'v_cvt_pk_bf16_f32 v{ACQ+2}, v{ACQ}, v{ACQ+4}\nv_cvt_pk_bf16_f32 v{ACQ+3}, v{ACQ+1}, v{ACQ+5}')
        QB0, QB1 = ACQ, ACQ + 4
        S(29, J(f'ds_write2_b32 v{TRW}, v{ACQ+2}, v{ACQ+3} offset0:160 offset1:164', f'ds_read_b128 {v(QB0,4)}, v{Q0R}'))
        S(30, f'ds_read_b128 {v(QB1,4)}, v{Q1R}')
        self.ct('1.s30')
        S(31, f'buffer_load_dword v{PFL}, v{PFA}, {WSR}, s55 offen sc1')
        S(32, 's_waitcnt vmcnt(6)')
        S(33)
        e.lgkm_for_writes()
        e('s_barrier')
        Q2 = MEMA
        S(34, f'ds_read_b128 {v(Q2,4)}, v{QQR}')
        S(35, f'ds_read_b128 {v(Q2+4,4)}, v{QQR} offset:{2*TRS}')
        self.ct('015.kend')
        KP = 110
        e(f'v_mfma_f32_16x16x32_bf16 {v(SX,4)}, {v(KX,4)}, {v(QB0,4)}, 0')
        e(f'v_mfma_f32_16x16x32_bf16 {v(SX,4)}, {v(KX+4,4)}, {v(QB1,4)}, {v(SX,4)}')
        e(J(add(ACK), add(ACK + 1), add(ACK + 4), add(ACK + 5)))
        e(f'v_cvt_pk_bf16_f32 v{KP}, v{ACK}, v{ACK+4}\nv_cvt_pk_bf16_f32 v{KP+1}, v{ACK+1}, v{ACK+5}')
        self.ct('5.kp')
        S(36, J(f'ds_write2_b32 v{TRW}, v{KP}, v{KP+1} offset0:0 offset1:4', f'ds_write_b128 v{MEMW}, {v(SX,4)}'))
        self.ct('5.w')
        S(37, f's_cmp_eq_u32 s{sT}, 63')
        S(39)
        S(40)
        self.ct('5.s40')
        e.lgkm_for_writes()
        e('s_barrier')
        e('s_cbranch_scc1 L_CEND')
        st63 = (list(e.dsq), list(e.vmq))
        self.ct('0125.barS')
        K2 = ACK
        RX = [88, 72, 92]; SMD = 76
        kst = lambda i: f'buffer_store_dword v{KP+i}, v{KTR}, {WSR}, s56 offen offset:{64*i} sc1'
        e(f'ds_read_b128 {v(K2,4)}, v{K2R}\nds_read_b128 {v(K2+4,4)}, v{K2R} offset:{2*TRS}')
        S(41, f'ds_read_b128 {v(RX[0],4)}, v{MEMR}')
        S(42, J(f'ds_read_b128 {v(RX[1],4)}, v{MEMR+1}', kst(0)))
        S(43, J(f'ds_read_b128 {v(RX[2],4)}, v{MEMR+2}', kst(1)))
        self.ct('2.s43')
        e(f'v_mfma_f32_16x16x32_bf16 {v(SMD,4)}, {v(K2,4)}, {v(Q2,4)}, 0')
        e(rf(38, 0))
        e(f'v_mfma_f32_16x16x32_bf16 {v(SMD,4)}, {v(K2+4,4)}, {v(Q2+4,4)}, {v(SMD,4)}')
        e(rf(38, 1))
        self.ct('2.m2')
        for i in range(4): e(f'v_add_f32 v{SX+i}, v{SX+i}, v{RX[0]+i}')
        for i in range(4): e(f'v_add_f32 v{SX+i}, v{SX+i}, v{RX[1]+i}')
        e(f'v_add_f32_dpp v{RM}, v{SMD+2}, v{SMD} row_ror:8 row_mask:0xf bank_mask:0x3\nv_add_f32_dpp v{RM+1}, v{SMD+3}, v{SMD+1} row_ror:8 row_mask:0xf bank_mask:0x3')
        for i in range(4): e(f'v_add_f32 v{SX+i}, v{SX+i}, v{RX[2]+i}')
        self.ct('2.sum')
        M0, M1 = 64, 65
        e(f'v_max3_f32 v{M0}, v{SX}, v{RM}, v{RM+1}\nv_max3_f32 v{M0}, v{M0}, v{SX+1}, v{SX+2}\nv_max_f32 v{M0}, v{M0}, v{SX+3}')
        S(44, rf(49, 0))
        e(f'v_max_f32_dpp v{M1}, v{M0}, v{M0} row_ror:8 row_mask:0xf bank_mask:0xf')
        e(f'v_max_f32_dpp v{M0}, v{M0}, v{M0} row_ror:8 row_mask:0xf bank_mask:0xf')
        S(45, rf(49, 1))
        e(f'v_permlane16_swap_b32 v{M0}, v{M1}\nv_max_f32 v{M1+1}, v{M0}, v{M1}\nv_max_f32 v{M0}, v{M0}, v{M1}')
        S(38, rf(48, 0))
        e(f'v_permlane32_swap_b32 v{M0}, v{M1+1}\nv_max_f32 v{M0}, v{M0}, v{M1+1}\nv_mul_f32 v{M0}, s{sSC}, v{M0}')
        self.ct('2.red')
        vals = [SX, SX + 1, SX + 2, SX + 3, RM, RM + 1]
        for x in vals: e(f'v_fma_f32 v{x}, v{x}, s{sSC}, -v{M0}')
        for x in vals[:4]: e(f'v_exp_f32 v{x}, v{x}')
        self.ct('2.exp')
        PX, PM, LA, OE, OO_ = 92, 68, 88, 72, 76
        S(46, rf(48, 1))
        e(f'v_cvt_pk_bf16_f32 v{PX}, v{SX}, v{SX+1}\nv_cvt_pk_bf16_f32 v{PX+2}, v{SX}, v{SX+1}\nv_cvt_pk_bf16_f32 v{PX+1}, v{SX+2}, v{SX+3}\nv_cvt_pk_bf16_f32 v{PX+3}, v{SX+2}, v{SX+3}')
        dp = lambda x, bm: f'v_mov_b32_dpp v{x}, v{x} row_ror:8 row_mask:0xf bank_mask:{bm}'
        e(J(dp(PX, '0xc'), dp(PX + 2, '0x3'), dp(PX + 1, '0xc'), dp(PX + 3, '0x3')))
        S(47, 's_nop 0')
        self.ct('023.P')
        e(f'v_mfma_f32_16x16x32_bf16 {v(LA,4)}, {v(ONES,4)}, {v(PX,4)}, 0')
        e(f'v_exp_f32 v{RM}, v{RM}')
        e(f'v_mfma_f32_16x16x32_bf16 {v(OE,4)}, {v(VX,4)}, {v(PX,4)}, 0')
        e(f'v_exp_f32 v{RM+1}, v{RM+1}')
        e(f'v_mfma_f32_16x16x32_bf16 {v(OO_,4)}, {v(VX+4,4)}, {v(PX,4)}, 0')
        e(J(f'v_cvt_pk_bf16_f32 v{PM}, v{RM}, v{RM+1}', add(ACV), add(ACV + 1), dp(PM, '0xc'), f'v_mov_b32 v{PM+1}, 0', f'v_cvt_pk_bf16_f32 v{VMK}, v{ACV}, v{ACV+1}', add(ACV + 4)))
        self.ct('3.x')
        e(f'v_mfma_f32_16x16x16_bf16 {v(LA,4)}, {v(ONES,2)}, {v(PM,2)}, {v(LA,4)}')
        e(J(add(ACV + 5), f'v_cvt_pk_bf16_f32 v{ACV+2}, v{ACV+4}, v{ACV+5}'))
        e(f'v_mfma_f32_16x16x16_bf16 {v(OE,4)}, {v(VMK,2)}, {v(PM,2)}, {v(OE,4)}')
        e(J(f'v_mov_b32 v{ACV+3}, 0', z1(WA)))
        e(f'v_mfma_f32_16x16x16_bf16 {v(OO_,4)}, {v(ACV+2,2)}, {v(PM,2)}, {v(OO_,4)}')
        e(J(z1(WA + 2), z1(WA + 4)))
        self.ct('3.m')
        e(f'v_rcp_f32 v{LA}, v{LA}')
        e(z1(WA + 6))
        for i in range(4): e(f'v_mul_f32 v{OE+i}, v{OE+i}, v{LA}')
        for i in range(4): e(f'v_mul_f32 v{OO_+i}, v{OO_+i}, v{LA}')
        for i in range(4): e(f'v_cvt_pk_bf16_f32 v{SX+i}, v{OE+i}, v{OO_+i}')
        self.ct('3.cvt')
        e(f'ds_write_b128 v{MEMW}, {v(SX,4)} offset:1024')
        S(48, J(f's_mov_b32 s{sKV}, s55', z1(WA + 8)))
        S(49, z1(WA + 10))
        self.ct('3.z')
        e.lgkm_for_writes()
        e('s_barrier')
        self.ct('034.barB')
        for u in range(3): e(f'ds_read_b128 {v(OAq+4*u,4)}, v{MEMR+u} offset:1024')
        S(50, J(f's_mov_b32 s{sKVM}, s56', z1(WA + 12), z1(WA + 14)))
        e(f'v_mov_b32 v{VMK+1}, v{ACV+2}')
        S(51, rf(59, 0))
        PK = 80
        def post(b):
            t0 = WA + 4 * b
            return [f'v_add_u32 v{t0}, s{sTC}, v{t0}', f'v_and_or_b32 v{t0}, v{t0}, v{OR_}, s{sTT}',
                    f'v_cvt_pk_bf16_f32 v{PK+1+2*b}, v{t0+2}, v{t0+3}', f'v_cvt_pk_bf16_f32 v{PK+2*b}, v{t0}, v{t0+1}',
                    f'buffer_store_dwordx2 {v(PK+2*b,2)}, v{H1S}, {WSR}, s{sH1S if b < 2 else sH1S2} offen offset:{2048*(b&1)}']
        P = [post(b) for b in range(4)]
        self.ct('4.pre')
        S(52, rf(59, 1)); self.ct('4.s52'); S(53, rf(61, 0)); S(54, J(rf(61, 1), 's_nop 0'))
        S(55, J(rf(63, 0), 's_nop 0')); S(56, J(rf(63, 1), 's_nop 0', P[0][0], P[0][1])); S(57, J(P[0][2], P[0][3])); self.ct('4.s57')
        S(58, J(P[0][4], 's_nop 0')); S(59, J(P[1][0], P[1][1])); S(60, J(P[1][2], P[1][3])); self.ct('4.s60')
        S(61, J(P[1][4], 's_nop 0')); S(62, J('s_nop 0', P[2][0], P[2][1])); S(63, J(P[2][2], P[2][3], P[2][4])); self.ct('4.b2')
        e(J(*P[3]))
        self.ct('04.wo')
        def stagger(d0, dd, tag):
            nops(d0)
            if dd:
                for w in (1, 2, 3):
                    e(f's_cmp_lt_u32 s{sW}, {w}\ns_cbranch_scc1 L_sg{tag}')
                    nops(dd - 8 + (24 if w == 3 else 0))
            e.label(f'L_sg{tag}')
        for n in (1, 3, 5): e(rf(n))
        stagger(o.get('d1', 80), o.get('g1', 48), 1)
        self.ct('0.d1')
        p1()
        if y1:
            nops(y1); p1()
        for n in (7, 2): e(rf(n))
        for i in range(6): e(J(z1(ACK + 2 * i), 's_nop 0'))
        e.track = False
        wait_check1(2 if y1 else 0, 'L_f1')
        e.label('L_ok1')
        publish()
        e.label('L_pub1')
        e.track = True
        e.reset(dsq=e.dsq)
        self.ct('0.pub')
        e(rf(6))
        for i in range(6, 12): e(z1(ACK + 2 * i))
        e(f's_xor_b32 s{sH1S}, s{sH1S}, 0x40000\ns_xor_b32 s{sH1S2}, s{sH1S2}, 0x40000\ns_xor_b32 s{sH1L}, s{sH1L}, 0x40000\ns_xor_b32 s{sH2L}, s{sH2L}, 0x2000')
        e(f'v_readfirstlane_b32 s54, v{FLGV}\ns_cmp_lg_u32 s54, 0\ns_cbranch_scc0 L_fslow')
        e.label('L_fok')
        e(f'v_mov_b32 v{FLGV}, s{sT}')
        e(f's_add_u32 s{sFL}, s{sFL}, 4\ns_add_u32 s{sT}, s{sT}, 1')
        nxt()
        if self.dev:
            e.raw(f's_cmp_lg_u32 s{sT}, 3'); e.raw('s_cbranch_scc0 L_T0'); e.label('L_T0r')
        e('s_waitcnt lgkmcnt(0)')
        self.ct_acc()
        if self.dev and o.get('trace'):
            e.raw(f's_lshl_b32 s97, s98, 2'); e.raw(f's_add_u32 s97, s97, s{sW}'); e.raw('s_lshl_b32 s97, s97, 6'); e.raw(f's_add_u32 s97, s97, s{sT}'); e.raw('s_lshl_b32 s97, s97, 5'); e.raw(f's_add_u32 s97, s97, {STP+0x40000}')
            if o.get('trace') == 2:
                e.raw('s_memrealtime s[94:95]'); e.raw('s_waitcnt lgkmcnt(0)')
            for i, sr in enumerate((26, 4, 6, 14, 16, 18, 93, 94)):
                e.raw(f'v_mov_b32 v{104+i}, s{sr}')
            e.raw(f'buffer_store_dwordx4 v[104:107], v{LN0}, {WSR}, s97 offen'); e.raw(f'buffer_store_dwordx4 v[108:111], v{LN0}, {WSR}, s97 offen offset:16')
        nops(max(0, o.get('d2', 40) - self.ct_cost() - (72 if o.get('trace') else 0)))
        self.ct_last()
        e('s_branch L_step')
        e.label('L_fslow')
        e(f's_cmp_ge_u32 s{sT}, 62\ns_cbranch_scc1 L_fok')
        flag_spin(0)
        e('s_branch L_fok')
        if self.dev:
            e.label('L_T0'); e.raw('s_memtime s[100:101]'); e.raw('s_mov_b32 s93, 0'); e.raw('s_mov_b32 s94, 0'); e.raw('s_branch L_T0r')
        e.track = False
        def spin(tag):
            if self.dev: e(f's_add_u32 s{92+tag}, s{92+tag}, 1')
            e(f's_add_u32 s{sSPIN}, s{sSPIN}, 1\ns_cmp_gt_u32 s{sSPIN}, {1 << 19}\ns_cbranch_scc1 L_END')
        e.label('L_f1')
        p1(); spin(1)
        wait_check1(2 if y1 else 0, 'L_f1')
        publish(); e('s_branch L_pub1')
        e.label('L_f2')
        p2()
        e(f'v_cmp_lt_u32 vcc, s{sSEN}, v{SM_}')
        spin(2)
        e('s_cbranch_vccnz L_x2')
        wait_check(MEMA, 2 if y2 else 0, 'L_f2')
        e('s_branch L_ok2')
        e.label('L_x2')
        e('s_waitcnt vmcnt(0)')
        e(f'v_cmp_eq_u32 s[76:77], s{sSEN}, v{MEMA}')
        for i in range(1, 8): e(f'v_cmp_eq_u32 vcc, s{sSEN}, v{MEMA+i}\ns_or_b64 s[76:77], s[76:77], vcc')
        e('s_cbranch_scc0 L_ok2\ns_branch L_f2')
        e.track = True
        e.label('L_CEND')
        e.reset(*st63)
        e(J(rf(38), kst(0), kst(1)))
        for n in (41, 42, 43, 44, 45, 46, 47, 38): S(n)
        e(J(add(ACV), add(ACV + 1), add(ACV + 4), add(ACV + 5)))
        e(f'v_cvt_pk_bf16_f32 v{ACV}, v{ACV}, v{ACV+1}\nv_cvt_pk_bf16_f32 v{ACV+1}, v{ACV+4}, v{ACV+5}')
        e(f'buffer_store_dwordx2 {v(ACV,2)}, v{L8}, {WSR}, s56 offen offset:1024 sc1')
        e(f's_waitcnt vmcnt(0) lgkmcnt(0)\nv_mov_b32 v{SM_}, 64\ns_mov_b64 exec, 1\nbuffer_store_dword v{SM_}, off, {WSR}, s{sPROG} sc1\ns_mov_b64 exec, -1')
        if self.dev:
            e('s_memtime s[90:91]\ns_waitcnt lgkmcnt(0)\ns_sub_u32 s90, s90, s100')
            e(f's_lshl_b32 s97, s98, 8\ns_lshl_b32 s99, s{sW}, 6\ns_add_u32 s97, s97, s99\ns_add_u32 s97, s97, {STP+32}')
            e(f'v_mov_b32 v100, s90\nv_mov_b32 v101, s93\nv_mov_b32 v102, s94\nv_mov_b32 v103, s{sSPIN}\nbuffer_store_dwordx4 v[100:103], off, {WSR}, s97')
        self.tick_dump(11, 2, 100, 78)
        self.stamp(7, (100,))

    def build(self):
        e = self.e
        self.prologue()
        self.ln(); self.stamp(1)
        self.qkv(); self.ffn1(); self.tailphase()
        self.chain()
        e.label('L_END')
        e('s_endpgm')
        body = fix_hazards(e.lines)
        hdr = open('recurrent_scan__memory_aug_recurrent_mem_tr__glu_gated_reglu__prompt.s.ref').read().split('\n')
        top = [l for l in hdr if l.startswith(';') and '@launch' not in l and not l.startswith('; Override') and not l.startswith('; grid=')]
        out = top + ['; @launch grid=(256,1,1) block=(256,1,1) lds=163840', '.amdgcn_target "amdgcn-amd-amdhsa--gfx950"', '.text', f'.globl {KNAME}', '.p2align 8', f'.type {KNAME},@function', f'{KNAME}:']
        out += body
        out += ['.section .rodata,"a"', '.p2align 6', f'.amdhsa_kernel {KNAME}', '  .amdhsa_next_free_vgpr 512', '  .amdhsa_next_free_sgpr 102', '  .amdhsa_accum_offset 256',
                '  .amdhsa_group_segment_fixed_size 0', '  .amdhsa_kernarg_size 112', '  .amdhsa_user_sgpr_count 2', '  .amdhsa_user_sgpr_kernarg_segment_ptr 1',
                '  .amdhsa_system_sgpr_workgroup_id_x 1', '  .amdhsa_float_denorm_mode_32 3', '.end_amdhsa_kernel', '']
        return '\n'.join(out)

if __name__ == '__main__':
    import json
    dev = 'dev' in sys.argv[2:]
    opts = {}
    for a_ in sys.argv[2:]:
        if '=' in a_:
            k, x = a_.split('='); opts[k] = int(x)
    open(sys.argv[1], 'w').write(Gen(dev, opts).build())
```

```python
import sys, math
sys.path.insert(0, 'gen')
from asmlib import *

KNAME = 'recurrent_scan__memory_aug_recurrent_mem_tr__glu_gated_reglu__prompt_kernel'
XN   = 0x0000000
FLG  = 0x0200000
F_KVX, F_OFL, F_HFL, F_PROG = FLG, FLG + 0x8000, FLG + 0x10000, FLG + 0x14000
H1   = 0x0300000
H2   = 0x0380000
STP  = 0x0390000
DUM  = 0x0500000
KV   = 0x1000000
KVM  = 0x3040000
OO   = 0x4100000
HH   = 0x5100000
WS_BYTES = 0x10000000
SENT = 0xFFBFFFBF
CSC = (128 ** -0.5) * math.log2(math.e)
import struct
def fbits(x): return struct.unpack('<I', struct.pack('<f', x))[0]

sX, sMEM, sWQ, sWK, sWV, sWO, sWG, sWU, sWD, sOUT, sDBG, sWS = 4, 6, 8, 10, 12, 14, 20, 22, 24, 26, 28, 30
sW, sXCC, sJ = 32, 33, 34
SRD_WS, SRD_A, SRD_B, SRD_X = 36, 40, 44, 48
sPLO, sPHI = 52, 53
sSPIN = 35
WSR = s(SRD_WS, 4)

class Gen:
    def __init__(self, dev=False, opts=None):
        self.e = Emitter(); self.dev = dev; self.o = opts or {}
        self.uid = 0
    def lab(self, p):
        self.uid += 1; return f'L_{p}_{self.uid}'
    def srd(self, d, ptr, nbytes):
        e = self.e
        e(f's_mov_b32 s{d}, s{ptr}\ns_and_b32 s{d+1}, s{ptr+1}, 0xffff\ns_mov_b32 s{d+2}, {nbytes:#x}\ns_mov_b32 s{d+3}, 0x20000')
    def stamp(self, idx, vt=(112,)):
        if not self.dev: return
        e = self.e; t = vt[0]
        sv = (list(e.dsq), list(e.vmq))
        e.raw('s_memrealtime s[96:97]')
        e.raw('s_waitcnt lgkmcnt(0)')
        e.raw(f's_lshl_b32 s97, s98, 8')
        e.raw(f's_lshl_b32 s99, s{sW}, 6')
        e.raw(f's_add_u32 s97, s97, s99')
        e.raw(f's_add_u32 s97, s97, {STP + idx*4}')
        e.raw(f'v_mov_b32 v{t}, s96')
        e.raw(f'buffer_store_dword v{t}, off, {WSR}, s97')
        e.raw('s_waitcnt vmcnt(0)')
        e.reset()
    def stamp2(self, idx):
        if self.dev: self.e.raw(f's_memrealtime s[{4+2*idx}:{5+2*idx}]')
    def tick(self, k, base=76):
        if not self.dev or not self.o.get('tick'): return
        e = self.e
        e.raw('s_memtime s[90:91]'); e.raw('s_waitcnt lgkmcnt(0)'); e.dsq = []
        if k is not None:
            e.raw('s_sub_u32 s91, s90, s88'); e.raw(f's_add_u32 s{base+k}, s{base+k}, s91')
        e.raw('s_mov_b32 s88, s90')
    def tick_init(self, n, base=76):
        if not self.dev or not self.o.get('tick'): return
        for k in range(n): self.e.raw(f's_mov_b32 s{base+k}, 0')
    def tick_dump(self, n, slot, vt, base=76):
        if not self.dev or not self.o.get('tick'): return
        e = self.e
        e.raw(f's_lshl_b32 s97, s98, 8'); e.raw(f's_lshl_b32 s99, s{sW}, 6'); e.raw('s_add_u32 s97, s97, s99')
        e.raw(f's_add_u32 s97, s97, {STP + 0x10000*(slot+1)}')
        for k in range(n):
            e.raw(f'v_mov_b32 v{vt}, s{base+k}'); e.raw(f'buffer_store_dword v{vt}, off, {WSR}, s97 offset:{4*k}')
        e.raw('s_waitcnt vmcnt(0)'); e.vmq = []
    def ct(self, tag):
        if not (self.dev and self.o.get('tick')): return
        z = tag.split('.')[0]
        if z != '*' and str(self.o.get('zoom', 0)) not in z: return
        k = len(self.cts); self.cts.append(tag); assert k < 11
        self.e.raw(f's_memtime s[{4+2*k}:{5+2*k}]')
    def ct_last(self):
        if self.dev and self.o.get('tick'): self.e.raw('s_memtime s[26:27]')
    def ct_init(self):
        self.cts = []
        if self.dev and self.o.get('tick'):
            for k in range(11): self.e.raw(f's_mov_b32 s{78+k}, 0')
            self.ct_last()
    def ct_cost(self):
        return 8 * len(self.cts)
    def ct_acc(self):
        if not (self.dev and self.o.get('tick')): return
        e = self.e
        for k in range(len(self.cts)):
            p = 26 if k == 0 else 4 + 2 * (k - 1)
            e.raw(f's_sub_u32 s91, s{4+2*k}, s{p}'); e.raw(f's_add_u32 s{78+k}, s{78+k}, s91')
        sys.stderr.write('stamps: %s\n' % self.cts)
    def spin_check(self, fail='L_END', lim=1 << 17):
        e = self.e
        e(f's_add_u32 s{sSPIN}, s{sSPIN}, 1\ns_cmp_gt_u32 s{sSPIN}, {lim}\ns_cbranch_scc1 {fail}')
    def wait_counter(self, off, target, vt):
        e = self.e; L = self.lab('wc'); D = self.lab('wcd')
        e(f'v_mov_b32 v{vt}, {off}')
        e.label(L)
        e(f'global_load_dword v{vt+1}, v{vt}, {s(sDBG,2)} sc1')
        e('s_waitcnt vmcnt(0)')
        e(f'v_readfirstlane_b32 s54, v{vt+1}')
        e(f's_cmp_ge_u32 s54, {target}\ns_cbranch_scc1 {D}')
        self.spin_check()
        e(f's_sleep 2\ns_branch {L}')
        e.label(D)
    def wait_flags(self, voff, soff, vt, thr=None):
        e = self.e; L = self.lab('wf'); D = self.lab('wfd')
        e.label(L)
        e(f'buffer_load_dword v{vt}, v{voff}, {WSR}, {soff} offen sc1')
        e('s_waitcnt vmcnt(0)')
        if thr is None: e(f'v_cmp_eq_u32 vcc, 0, v{vt}')
        else: e(f'v_cmp_ge_u32 vcc, {thr}, v{vt}')
        e(f's_cbranch_vccz {D}')
        self.spin_check()
        e(f's_sleep 2\ns_branch {L}')
        e.label(D)
    def red_g(self, op, x, t):
        e = self.e
        e(f'v_mov_b32 v{t}, v{x}\nv_permlane16_swap_b32 v{x}, v{t}\n{op} v{x}, v{x}, v{t}')
        e(f'v_mov_b32 v{t}, v{x}\nv_permlane32_swap_b32 v{x}, v{t}\n{op} v{x}, v{x}, v{t}')
    def rbf(self, d, x):
        self.e(f'v_cvt_pk_bf16_f32 v{d}, v{x}, v{x}\nv_lshlrev_b32 v{d}, 16, v{d}')

    def prologue(self):
        e = self.e
        e('s_cmp_ge_u32 s2, 256\ns_cbranch_scc1 L_END')
        e('s_load_dwordx16 s[4:19], s[0:1], 0\ns_load_dwordx8 s[20:27], s[0:1], 64\ns_load_dwordx4 s[28:31], s[0:1], 96')
        e(f's_getreg_b32 s{sXCC}, hwreg(HW_REG_XCC_ID)\ns_and_b32 s{sXCC}, s{sXCC}, 7')
        e(f'v_lshrrev_b32 v1, 6, v0\nv_readfirstlane_b32 s{sW}, v1\nv_and_b32 v0, 63, v0')
        e(f's_mov_b32 s{sSPIN}, 0\ns_mov_b32 s{sPLO}, 0x05040100\ns_mov_b32 s{sPHI}, 0x07060302')
        e('s_waitcnt lgkmcnt(0)')
        self.srd(SRD_WS, sWS, WS_BYTES)
        e(f's_cmp_lg_u32 s{sW}, 0\ns_cbranch_scc1 L_notick')
        e(f's_lshl_b32 s54, s{sXCC}, 2\ns_add_u32 s54, s54, 128\ns_cmp_eq_u32 s{sXCC}, 0\ns_cselect_b32 s54, 0, s54')
        e(f'v_mov_b32 v2, s54\nv_mov_b32 v3, 1\nv_mov_b32 v5, 0\ns_mov_b64 exec, 1')
        e(f'global_atomic_add v4, v2, v3, {s(sDBG,2)} sc0\ns_waitcnt vmcnt(0)\nds_write_b32 v5, v4\ns_waitcnt lgkmcnt(0)\ns_mov_b64 exec, -1')
        e.label('L_notick')
        e('s_barrier\nv_mov_b32 v5, 0\nds_read_b32 v4, v5\ns_waitcnt lgkmcnt(0)')
        e(f'v_readfirstlane_b32 s{sJ}, v4')
        e('s_barrier')
        e(f's_cmp_ge_u32 s{sJ}, 32\ns_cbranch_scc1 L_END')
        if self.dev:
            e(f's_lshl_b32 s98, s{sXCC}, 5\ns_add_u32 s98, s98, s{sJ}')
            self.stamp(0)
        e(f's_cmp_eq_u32 s{sXCC}, 0\ns_cbranch_scc1 L_CHAIN')
        e(f's_sub_u32 s54, s{sXCC}, 1\ns_lshl_b32 s54, s54, 5\ns_add_u32 s{sJ}, s{sJ}, s54')

    def load_pairs(self, groups, tmp, depth, vA, vB, post=None):
        e = self.e
        n = len(groups[0][1]); T = tmp + depth * 2 * n
        def issue(k):
            srd, ents = groups[k][0], groups[k][1]
            b = tmp + (k % depth) * 2 * n
            for i, (so, _, _) in enumerate(ents):
                e(so)
                e(f'buffer_load_dword v{b+2*i}, v{vA}, {s(srd,4)}, s54 offen')
                e(f'buffer_load_dword v{b+2*i+1}, v{vB}, {s(srd,4)}, s54 offen')
        def finish(k):
            ents = groups[k][1]
            b = tmp + (k % depth) * 2 * n
            for i, (_, dE, dO) in enumerate(ents):
                for d, sel, tt in ((dE, sPLO, T), (dO, sPHI, T + 1)):
                    if d < 256: e(f'v_perm_b32 v{d}, v{b+2*i+1}, v{b+2*i}, s{sel}')
                    else: e(f'v_perm_b32 v{tt}, v{b+2*i+1}, v{b+2*i}, s{sel}\nv_accvgpr_write_b32 a{d-256}, v{tt}')
            if len(groups[k]) > 2 and groups[k][2]: groups[k][2]()
        for k in range(len(groups) + depth - 1):
            if k < len(groups): issue(k)
            if k - (depth - 1) >= 0: finish(k - (depth - 1))
            if post and k == depth - 1: post()

    def touch_qkv(self):
        e = self.e
        e(f'v_lshrrev_b32 v120, 1, v0\nv_lshlrev_b32 v120, 13, v120\nv_and_b32 v121, 1, v0\nv_lshlrev_b32 v121, 7, v121')
        e(f's_lshl_b32 s55, s62, 8\ns_sub_u32 s56, s63, 3\ns_lshl_b32 s56, s56, 2\ns_add_u32 s56, s56, s{sW}\ns_lshl_b32 s56, s56, 18\ns_add_u32 s55, s55, s56\nv_add3_u32 v120, v120, v121, s55')
        for ptr in (sWK, sWV, sWQ):
            self.srd(SRD_A, ptr, 1 << 22)
            e(f'buffer_load_dword v121, v120, {s(SRD_A,4)}, 0 offen')
    def ln(self):
        e = self.e
        sLN = 61
        e(f's_mul_i32 s62, s{sJ}, 9363\ns_lshr_b32 s62, s62, 16\ns_mul_i32 s54, s62, 7\ns_sub_u32 s63, s{sJ}, s54')
        e(f's_cmp_lt_u32 s63, 3\ns_cbranch_scc1 L_skipln')
        e(f's_lshl_b32 s{sLN}, s62, 2\ns_add_u32 s{sLN}, s{sLN}, s63\ns_sub_u32 s{sLN}, s{sLN}, 3')
        self.srd(SRD_X, sX, 2048 * 1024)
        e(f'v_lshlrev_b32 v1, 4, v0')
        e(f's_lshl_b32 s54, s{sLN}, 14\ns_lshl_b32 s55, s{sW}, 12\ns_add_u32 s54, s54, s55')
        for r in range(4):
            e(f'buffer_load_dwordx4 {v(16+4*r,4)}, v1, {s(SRD_X,4)}, s54 offen offset:{1024*r}')
        if self.o.get('touch', 1): self.touch_qkv()
        e(f'v_lshlrev_b32 v2, 2, v0\nv_mov_b32 v3, 0')
        e(f's_lshl_b32 s55, s{sLN}, 10\ns_lshl_b32 s56, s{sW}, 8\ns_add_u32 s55, s55, s56\ns_add_u32 s55, s55, {FLG}')
        e(f'buffer_store_dword v3, v2, {WSR}, s55 offen sc1')
        F = lambda r, i: 32 + 8 * r + i
        Dv = lambda r, i: 64 + 8 * r + i
        SM, VR, T = 96, 100, 104
        e(f's_mov_b32 s56, 0xffff0000\ns_mov_b32 s57, {fbits(1.0/512):#x}\ns_mov_b32 s58, {fbits(1e-5):#x}')
        for r in range(4):
            for i in range(4):
                e(f'v_lshlrev_b32 v{F(r,2*i)}, 16, v{16+4*r+i}\nv_and_b32 v{F(r,2*i+1)}, s56, v{16+4*r+i}')
        def red64(base):
            for sh in (1, 2, 4, 8):
                for r in range(4):
                    e(f'v_add_f32_dpp v{base+r}, v{base+r}, v{base+r} row_ror:{sh} row_mask:0xf bank_mask:0xf')
            for sw in ('16', '32'):
                for r in range(4): e(f'v_mov_b32 v{T+r}, v{base+r}')
                for r in range(4): e(f'v_permlane{sw}_swap_b32 v{base+r}, v{T+r}')
                for r in range(4): e(f'v_add_f32 v{base+r}, v{base+r}, v{T+r}')
        for r in range(4): e(f'v_add_f32 v{SM+r}, v{F(r,0)}, v{F(r,1)}')
        for i in range(2, 8):
            for r in range(4): e(f'v_add_f32 v{SM+r}, v{SM+r}, v{F(r,i)}')
        red64(SM)
        for r in range(4): e(f'v_mul_f32 v{SM+r}, s57, v{SM+r}')
        for r in range(4):
            for i in range(8): e(f'v_sub_f32 v{Dv(r,i)}, v{F(r,i)}, v{SM+r}')
        for r in range(4): e(f'v_mul_f32 v{VR+r}, v{Dv(r,0)}, v{Dv(r,0)}')
        for i in range(1, 8):
            for r in range(4): e(f'v_fmac_f32 v{VR+r}, v{Dv(r,i)}, v{Dv(r,i)}')
        red64(VR)
        for r in range(4):
            e(f'v_mul_f32 v{VR+r}, s57, v{VR+r}')
            self.rbf(VR + r, VR + r); self.rbf(SM + r, SM + r)
            e(f'v_add_f32 v{VR+r}, s58, v{VR+r}')
            self.rbf(VR + r, VR + r)
            e(f'v_sqrt_f32 v{VR+r}, v{VR+r}')
            self.rbf(VR + r, VR + r)
            e(f'v_rcp_f32 v{T+r}, v{VR+r}')
        for r in range(4):
            for i in range(8): e(f'v_sub_f32 v{F(r,i)}, v{F(r,i)}, v{SM+r}')
            for i in range(4):
                e(f'v_cvt_pk_bf16_f32 v108, v{F(r,2*i)}, v{F(r,2*i+1)}')
                e(f'v_lshlrev_b32 v{F(r,2*i)}, 16, v108\nv_and_b32 v{F(r,2*i+1)}, s56, v108')
            for i in range(8): e(f'v_mul_f32 v{Dv(r,i)}, v{F(r,i)}, v{T+r}')
            for i in range(8): e(f'v_fma_f32 v{F(r,i)}, -v{Dv(r,i)}, v{VR+r}, v{F(r,i)}')
            for i in range(8): e(f'v_fmac_f32 v{Dv(r,i)}, v{F(r,i)}, v{T+r}')
            for i in range(4): e(f'v_cvt_pk_bf16_f32 v{16+4*r+i}, v{Dv(r,2*i)}, v{Dv(r,2*i+1)}')
        e(f'v_lshlrev_b32 v2, 8, v0\ns_lshl_b32 s55, s{sW}, 6\nv_add_u32 v2, s55, v2')
        for r in range(4): e(f'ds_write_b128 v2, {v(16+4*r,4)} offset:{16*r}')
        e('s_waitcnt lgkmcnt(0)\ns_barrier')
        e(f's_lshl_b32 s55, s{sW}, 12\nv_add_u32 v2, s55, v1')
        for r in range(4): e(f'ds_read_b128 {v(16+4*r,4)}, v2 offset:{1024*r}')
        for r in range(4): e(f'buffer_store_dwordx4 {v(16+4*r,4)}, v1, {WSR}, s54 offen offset:{1024*r} sc1')
        e('s_waitcnt vmcnt(0)\ns_barrier')
        e(f's_cmp_lg_u32 s{sW}, 0\ns_cbranch_scc1 L_noln')
        e(f'v_mov_b32 v2, 192\nv_mov_b32 v3, 1\ns_mov_b64 exec, 1\nglobal_atomic_add v2, v3, {s(sDBG,2)}\ns_mov_b64 exec, -1')
        e('s_branch L_noln')
        e.label('L_skipln')
        e.label('L_noln')
        e.reset(); e('s_waitcnt vmcnt(0)')

    def row_loop(self, name, sT, step, mf, nacc_desc, epilogue, flagoff):
        e = self.e
        PF, FR = 80, 64
        sSO, sBUF, sPREV = 56, 57, 58
        def pf_issue():
            e(f's_lshl_b32 s{sSO}, s61, 15\ns_lshl_b32 s55, s{sW}, 13\ns_add_u32 s{sSO}, s{sSO}, s55')
            e(f's_add_u32 s55, s{sSO}, 4096')
            for i in range(8):
                e(f'buffer_load_dwordx4 {v(PF+4*i,4)}, v1, {WSR}, s{sSO if i < 4 else 55} offen offset:{1024*(i%4)} sc1')
        e(f'v_lshlrev_b32 v1, 4, v0\ns_lshl_b32 s55, s{sW}, 13\nv_add_u32 v2, s55, v1\nv_mov_b32 v3, v1\nv_mov_b32 v4, 1')
        e(f's_lshl_b32 s{sPREV}, s{sJ}, 2\ns_add_u32 s{sPREV}, s{sPREV}, s{sW}\ns_lshl_b32 s{sPREV}, s{sPREV}, 7\ns_add_u32 s{sPREV}, s{sPREV}, {DUM}')
        e(f's_mov_b32 s61, s{sT}')
        pf_issue()
        nst = self._nst
        e('s_mov_b64 exec, 1')
        for _ in range(nst): e(f'buffer_store_dword v4, off, {WSR}, s{sPREV}')
        e('s_mov_b64 exec, -1')
        e('s_barrier')
        self.tick_init(6); self.tick(None)
        L = f'L_{name}_loop'
        e.label(L)
        q0 = list(e.vmq)
        for i in range(8): e(f'ds_write_b128 v2, {v(PF+4*i,4)} offset:{1024*i}')
        e(f's_add_u32 s61, s{sT}, {step}\ns_min_u32 s61, s61, 63')
        e('s_waitcnt lgkmcnt(0)')
        self.tick(0)
        pf_issue()
        self.tick(1)
        e('s_barrier')
        self.tick(2)
        rd = lambda k: (e(f'ds_read_b128 {v(FR+8*(k%2),4)}, v3 offset:{1024*k}'), e(f'ds_read_b128 {v(FR+8*(k%2)+4,4)}, v3 offset:{16384+1024*k}'))
        rd(0)
        for k in range(16):
            if k < 15: rd(k + 1)
            mf(k, FR + 8 * (k % 2), FR + 8 * (k % 2) + 4)
            if k == 7:
                e('s_waitcnt vmcnt(8)')
                e(f's_mov_b64 exec, 1\nbuffer_store_dword v4, off, {WSR}, s{sPREV} sc1\ns_mov_b64 exec, -1')
        e('v_xor_b32 v2, 0x8000, v2\nv_xor_b32 v3, 0x8000, v3')
        self.tick(3)
        flagoff(sPREV)
        epilogue()
        e('s_waitcnt lgkmcnt(0)')
        self.tick(5)
        assert len(e.vmq) == len(q0), (len(e.vmq), len(q0))
        e(f's_add_u32 s{sT}, s{sT}, {step}\ns_cmp_lt_u32 s{sT}, 64\ns_cbranch_scc1 {L}')
        e('s_waitcnt vmcnt(0)')
        e(f's_mov_b64 exec, 1\nbuffer_store_dword v4, off, {WSR}, s{sPREV} sc1\ns_mov_b64 exec, -1')
        e('s_barrier')
        e.reset(vmq=[set()])
        self.tick_dump(6, 0 if name == 'qkv' else 1, 112)

    def qkv(self):
        e = self.e
        sH, sSUB, sT, sQ = 62, 63, 64, 65
        e(f's_mul_i32 s{sH}, s{sJ}, 9363\ns_lshr_b32 s{sH}, s{sH}, 16\ns_mul_i32 s54, s{sH}, 7\ns_sub_u32 s{sSUB}, s{sJ}, s54')
        self.srd(SRD_A, sWK, 1 << 22); self.srd(SRD_B, sWV, 1 << 22); self.srd(SRD_X, sWQ, 1 << 22)
        e(f'v_lshrrev_b32 v1, 4, v0\nv_lshlrev_b32 v1, 16, v1\nv_and_b32 v2, 15, v0\nv_lshlrev_b32 v2, 2, v2')
        e(f's_lshl_b32 s54, s{sH}, 8\ns_lshl_b32 s55, s{sW}, 6\ns_add_u32 s54, s54, s55\nv_add3_u32 v1, v1, v2, s54\nv_add_u32 v2, 8192, v1')
        W = lambda m, p, k: [256, 384, 128][m] + (k * 2 + p) * 4
        groups = []
        for m, srd in ((0, SRD_A), (1, SRD_B), (2, SRD_X)):
            for k2 in range(8):
                ents = []
                for k in (2 * k2, 2 * k2 + 1):
                    for i in range(4):
                        ents.append((f's_mov_b32 s54, {(32*k + 2*i) * 8192}', W(m, 0, k) + i, W(m, 1, k) + i))
                groups.append((srd, ents))
        self.load_pairs(groups, 16, 3, 1, 2)
        self.stamp(2)
        self.wait_counter(192, 128, 8)
        self.stamp(3)
        ACC = lambda m, p, t: 16 + ((m * 2 + p) * 2 + t) * 4
        def mf(k, X0, X1):
            for m in (0, 1, 2):
                for p in (0, 1):
                    for t, X in ((0, X0), (1, X1)):
                        d = v(ACC(m, p, t), 4); c = '0' if k == 0 else d
                        if m == 1: e(f'v_mfma_f32_16x16x32_bf16 {d}, {v(X,4)}, {R(W(m,p,k),4)}, {c}')
                        else: e(f'v_mfma_f32_16x16x32_bf16 {d}, {R(W(m,p,k),4)}, {v(X,4)}, {c}')
        def flagoff(sd):
            e(f's_lshl_b32 s{sd}, s{sH}, 10\ns_lshl_b32 s55, s{sW}, 8\ns_add_u32 s{sd}, s{sd}, s55\ns_lshl_b32 s55, s{sT}, 2\ns_add_u32 s{sd}, s{sd}, s55\ns_add_u32 s{sd}, s{sd}, {F_KVX}')
        def epi():
            e(f's_lshl_b32 s54, s{sT}, 19\ns_lshl_b32 s55, s{sH}, 14\ns_add_u32 s54, s54, s55\ns_lshl_b32 s55, s{sW}, 12\ns_add_u32 s54, s54, s55\ns_add_u32 s54, s54, {KV}')
            for t in (0, 1):
                o = 112 + 4 * t
                for i in range(4): e(f'v_cvt_pk_bf16_f32 v{o+i}, v{ACC(0,0,t)+i}, v{ACC(0,1,t)+i}')
                e(f'buffer_store_dwordx4 {v(o,4)}, v1, {WSR}, s54 offen offset:{1024*t} sc1')
            for p in (0, 1):
                o = 120 + 4 * p
                for t in (0, 1):
                    for hh in (0, 1): e(f'v_cvt_pk_bf16_f32 v{o+2*t+hh}, v{ACC(1,p,t)+2*hh}, v{ACC(1,p,t)+2*hh+1}')
                e(f'buffer_store_dwordx4 {v(o,4)}, v1, {WSR}, s54 offen offset:{2048+1024*p} sc1')
            for t in (0, 1):
                o = 64 + 4 * t
                for i in range(4): e(f'v_cvt_pk_bf16_f32 v{o+i}, v{ACC(2,0,t)+i}, v{ACC(2,1,t)+i}')
                e(f'ds_write_b128 v6, {v(o,4)} offset:{4096*t}')
            e('v_add_u32 v6, 8192, v6')
        e(f'v_lshlrev_b32 v6, 4, v0\ns_lshl_b32 s55, s{sW}, 10\ns_add_u32 s55, s55, 65536\nv_add_u32 v6, s55, v6')
        e(f's_mov_b32 s{sT}, s{sSUB}')
        self._nst = 5
        self.row_loop('qkv', sT, 7, mf, None, epi, flagoff)
        self.stamp(4)

    def ffn1(self):
        e = self.e
        sT, sPH = 64, 65
        e(f's_cmp_ge_u32 s{sJ}, 220\ns_cbranch_scc1 L_noffn')
        e(f's_mul_i32 s{sT}, s{sJ}, 5958\ns_lshr_b32 s{sT}, s{sT}, 16\ns_mul_i32 s54, s{sT}, 11\ns_sub_u32 s54, s{sJ}, s54')
        e(f's_lshl_b32 s{sPH}, s54, 2\ns_add_u32 s{sPH}, s{sPH}, s{sW}')
        self.srd(SRD_A, sWG, 512 * 2752); self.srd(SRD_B, sWU, 512 * 2752)
        e(f'v_lshrrev_b32 v1, 4, v0\nv_mul_u32_u24 v1, {8*2752}, v1\nv_and_b32 v2, 15, v0\nv_lshlrev_b32 v2, 2, v2')
        e(f's_lshl_b32 s54, s{sPH}, 6\nv_add3_u32 v1, v1, v2, s54\nv_add_u32 v2, 2752, v1')
        W = lambda m, p, k: 256 + m * 128 + (k * 2 + p) * 4
        groups = []
        for m, srd in ((0, SRD_A), (1, SRD_B)):
            for k2 in range(8):
                ents = []
                for k in (2 * k2, 2 * k2 + 1):
                    for i in range(4):
                        ents.append((f's_mov_b32 s54, {(32*k + 2*i) * 2752}', W(m, 0, k) + i, W(m, 1, k) + i))
                groups.append((srd, ents))
        self.load_pairs(groups, 16, 3, 1, 2)
        ACC = lambda m, p, t: 16 + ((m * 2 + p) * 2 + t) * 4
        def mf(k, X0, X1):
            for m in (0, 1):
                for p in (0, 1):
                    for t, X in ((0, X0), (1, X1)):
                        d = v(ACC(m, p, t), 4); c = '0' if k == 0 else d
                        e(f'v_mfma_f32_16x16x32_bf16 {d}, {R(W(m,p,k),4)}, {v(X,4)}, {c}')
        def flagoff(sd):
            e(f's_lshl_b32 s{sd}, s{sT}, 8\ns_lshl_b32 s55, s{sPH}, 2\ns_add_u32 s{sd}, s{sd}, s55\ns_add_u32 s{sd}, s{sd}, {F_HFL}')
        def epi():
            e(f's_mul_i32 s54, s{sT}, {2*44*1024}\ns_lshl_b32 s55, s{sPH}, 10\ns_add_u32 s54, s54, s55\ns_add_u32 s54, s54, {HH}\ns_add_u32 s55, s54, {44*1024}')
            e('s_mov_b32 s59, 0xffff0000')
            for t in (0, 1):
                o = 112 + 4 * t
                for i in range(4):
                    g0, g1, u0, u1 = ACC(0, 0, t) + i, ACC(0, 1, t) + i, ACC(1, 0, t) + i, ACC(1, 1, t) + i
                    e(f'v_cvt_pk_bf16_f32 v120, v{g0}, v{g1}\nv_cvt_pk_bf16_f32 v121, v{u0}, v{u1}')
                    e(f'v_lshlrev_b32 v{g0}, 16, v120\nv_and_b32 v{g1}, s59, v120\nv_lshlrev_b32 v{u0}, 16, v121\nv_and_b32 v{u1}, s59, v121')
                    e(f'v_max_f32 v{g0}, 0, v{g0}\nv_max_f32 v{g1}, 0, v{g1}')
                    e(f'v_mul_f32 v{g0}, v{g0}, v{u0}\nv_mul_f32 v{g1}, v{g1}, v{u1}')
                    e(f'v_cvt_pk_bf16_f32 v{o+i}, v{g0}, v{g1}')
                e(f'buffer_store_dwordx4 {v(o,4)}, v1, {WSR}, s{54+t} offen sc1')
        self._nst = 3
        self.row_loop('ffn', sT, 20, mf, None, epi, flagoff)
        e.label('L_noffn')
        e.reset(); e('s_waitcnt vmcnt(0)')
        self.stamp(5)

    def tailphase(self):
        e = self.e
        sH, sSUB = 62, 63
        sA, sF, sCS, sQT, sEH, sQL, sSC = 64, 65, 66, 67, 68, 69, 70
        MK = 72
        e(f's_lshr_b32 s{sF}, s{sJ}, 4\ns_and_b32 s{sCS}, s{sJ}, 15\ns_mov_b32 s{sA}, s{sSUB}')
        e(f's_lshr_b32 s{sQT}, s{sW}, 1\ns_and_b32 s{sEH}, s{sW}, 1')
        self.srd(SRD_A, sWO, 1 << 22); self.srd(SRD_B, sWD, 1376 * 1024)
        e(f'v_lshrrev_b32 v1, 4, v0\nv_lshlrev_b32 v1, 13, v1\nv_and_b32 v2, 15, v0\nv_lshlrev_b32 v2, 2, v2')
        e(f's_lshl_b32 s54, s{sCS}, 6\nv_add3_u32 v1, v1, v2, s54\nv_add_u32 v2, 1024, v1')
        e(f's_lshl_b32 s56, s{sW}, 20\ns_mul_i32 s57, s{sW}, {11*32*1024}')
        WO = lambda p, k: 256 + (k * 2 + p) * 4
        WD = lambda p, k: 168 + (k * 2 + p) * 4
        groups = []
        for k in range(11):
            groups.append((SRD_B, [(f's_add_u32 s54, s57, {(32*k + 2*i) * 1024}', WD(0, k) + i, WD(1, k) + i) for i in range(4)]))
        for k in range(32):
            groups.append((SRD_A, [(f's_add_u32 s54, s56, {(32*k + 2*i) * 1024}', WO(0, k) + i, WO(1, k) + i) for i in range(4)]))
        self.load_pairs(groups, 16, 7, 1, 2)
        self.srd(SRD_A, sOUT, 2048 * 1024); self.srd(SRD_X, sX, 2048 * 1024)
        L16, L8, ONE, QA, FO, FH, RW, RR, XO, PG = 1, 2, 3, 4, 5, 6, 7, 8, 9, 10
        e(f'v_lshlrev_b32 v{L16}, 4, v0\nv_lshlrev_b32 v{L8}, 3, v0\nv_mov_b32 v{ONE}, 1')
        e(f's_lshl_b32 s54, s{sQT}, 12\ns_add_u32 s54, s54, 65536\nv_add_u32 v{QA}, s54, v{L16}')
        e(f'v_and_b32 v11, 15, v0\nv_lshlrev_b32 v{FO}, 2, v0')
        e(f'v_min_u32 v{FH}, 10, v0\nv_lshlrev_b32 v{FH}, 2, v{FH}\ns_mul_i32 s54, s{sW}, 44\nv_add_u32 v{FH}, s54, v{FH}')
        e(f's_lshl_b32 s54, s{sW}, 12\nv_add_u32 v{RW}, s54, v{L16}')
        e(f'v_lshrrev_b32 v12, 4, v0\nv_bfe_u32 v13, v0, 2, 2\nv_and_b32 v14, 3, v0')
        e(f'v_lshlrev_b32 v13, 8, v13\nv_lshlrev_b32 v15, 4, v12\nv_lshlrev_b32 v14, 2, v14\nv_add3_u32 v{RR}, v13, v15, v14')
        e(f's_lshl_b32 s54, s{sW}, 6\nv_add_u32 v{RR}, s54, v{RR}')
        e(f'v_lshlrev_b32 v12, 10, v12\nv_lshlrev_b32 v13, 2, v11\ns_lshl_b32 s54, s{sW}, 12\ns_lshl_b32 s55, s{sCS}, 6\ns_add_u32 s54, s54, s55\nv_add3_u32 v{XO}, v12, v13, s54')
        e(f'v_and_b32 v{PG}, 3, v0\nv_lshlrev_b32 v{PG}, 2, v{PG}')
        KMA = 160
        e(f'v_lshrrev_b32 v12, 2, v11\nv_lshlrev_b32 v12, 7, v12\nv_and_b32 v13, 1, v11\nv_lshlrev_b32 v13, 6, v13\nv_and_b32 v14, 48, v0\nv_add3_u32 v{KMA}, v12, v13, v14')
        e(f's_lshl_b32 s54, s{sQT}, 4\nv_add_u32 v12, s54, v11\nv_lshrrev_b32 v13, 4, v0\nv_lshlrev_b32 v13, 2, v13\nv_sub_u32 v12, v12, v13')
        for tk in (0, 1):
            for i in range(4):
                e(f'v_cmp_le_i32 {s(MK+2*(4*tk+i),2)}, {16*tk+i}, v12')
        e(f's_mov_b32 s{sSC}, {fbits(CSC):#x}\ns_mov_b32 s71, 0xffff0000')
        self.stamp(6)
        XR = 11; AS, AF = 16, 24
        Q, V, S0, S1, MX = 32, 48, 64, 68, 161
        RING = 72; NR = 22
        K, KM, VM, SMm, PX, PM, OA = 72, 104, 120, 128, 132, 136, 140
        def prepA():
            L = self.lab('pa')
            e(f's_cmp_ge_u32 s{sA}, 64\ns_cbranch_scc1 {L}')
            e(f's_lshl_b32 s56, s{sA}, 19\ns_lshl_b32 s57, s{sH}, 14\ns_add_u32 s56, s56, s57\ns_add_u32 s56, s56, {KV}')
            e(f's_lshl_b32 s57, s{sEH}, 13\ns_add_u32 s57, s57, s56\ns_add_u32 s58, s57, 4096')
            for k in range(4):
                for tk in (0, 1):
                    e(f'buffer_load_dwordx4 {v(K+8*k+4*tk,4)}, v{L16}, {WSR}, s56 offen offset:{1024*tk} sc1')
                if k < 3: e('s_add_u32 s56, s56, 4096')
            for u in (0, 1):
                for p in (0, 1):
                    e(f'buffer_load_dwordx4 {v(V+8*u+4*p,4)}, v{L16}, {WSR}, s{57+u} offen offset:{2048+1024*p} sc1')
            for k in range(4): e(f'ds_read_b128 {v(Q+4*k,4)}, v{QA} offset:{1024*k}')
            for k in range(4):
                for tk, S_ in ((0, S0), (1, S1)):
                    e(f'v_mfma_f32_16x16x32_bf16 {v(S_,4)}, {v(K+8*k+4*tk,4)}, {v(Q+4*k,4)}, {"0" if k == 0 else v(S_,4)}')
            e(f'v_add_u32 v{QA}, 8192, v{QA}')
            e(f'v_mov_b32 v13, {fbits(-1e9*math.log2(math.e)):#x}')
            for tk, S_ in ((0, S0), (1, S1)):
                for i in range(4):
                    e(f'v_mul_f32 v{S_+i}, s{sSC}, v{S_+i}')
                    e(f'v_cndmask_b32 v{S_+i}, v13, v{S_+i}, {s(MK+2*(4*tk+i),2)}')
            e(f'v_max3_f32 v{MX}, v{S0}, v{S0+1}, v{S0+2}\nv_max3_f32 v{MX}, v{MX}, v{S0+3}, v{S1}\nv_max3_f32 v{MX}, v{MX}, v{S1+1}, v{S1+2}\nv_max_f32 v{MX}, v{MX}, v{S1+3}')
            e.label(L); e('s_waitcnt vmcnt(0) lgkmcnt(0)')
        def prepF():
            L = self.lab('pf')
            e(f's_cmp_ge_u32 s{sF}, 128\ns_cbranch_scc1 {L}')
            e(f's_lshl_b32 s56, s{sF}, 14')
            e(f'buffer_load_dword v{XR}, v{XO}, {s(SRD_X,4)}, s56 offen')
            e(f's_lshr_b32 s57, s{sF}, 1\ns_lshl_b32 s57, s57, 8\ns_add_u32 s57, s57, {F_HFL}')
            self.wait_flags(FH, 's57', 12)
            e.reset()
            e(f's_mul_i32 s57, s{sF}, {44*1024}\ns_mul_i32 s58, s{sW}, {11*1024}\ns_add_u32 s57, s57, s58\ns_add_u32 s57, s57, {HH}')
            for k in range(11):
                if k and k % 4 == 0: e('s_add_u32 s57, s57, 4096')
                e(f'buffer_load_dwordx4 {v(RING+4*k,4)}, v{L16}, {WSR}, s57 offen offset:{1024*(k%4)} sc1')
            for k in range(11):
                for p in (0, 1):
                    d = v(AF + 4 * p, 4)
                    e(f'v_mfma_f32_16x16x32_bf16 {d}, {R(WD(p,k),4)}, {v(RING+4*k,4)}, {"0" if k == 0 else d}')
            e.label(L); e('s_waitcnt vmcnt(0) lgkmcnt(0)')
        prepA(); prepF()
        e(f's_lshl_b32 s{sQL}, s{sH}, 7\ns_add_u32 s{sQL}, s{sQL}, {F_PROG}')
        DA = 162
        e(f'v_mov_b32 v{DA}, 32768')
        e.label('L_task')
        e.reset()
        e(f's_lshr_b32 s54, s{sF}, 1\ns_min_u32 s54, s54, s{sA}\ns_cmp_ge_u32 s54, 64\ns_cbranch_scc1 L_WEND')
        e(f's_cmp_lg_u32 s{sW}, 0\ns_cbranch_scc1 L_join')
        e(f's_min_u32 s57, s{sF}, 127\ns_lshl_b32 s57, s57, 8\ns_add_u32 s57, s57, {F_OFL}\ns_lshr_b32 s54, s{sF}, 1')
        e.label('L_poll')
        e(f'buffer_load_dword v12, v{PG}, {WSR}, s{sQL} offen sc1')
        e(f'buffer_load_dword v13, v{FO}, {WSR}, s57 offen sc1')
        e('s_waitcnt vmcnt(0)')
        e(f's_cmp_ge_u32 s{sA}, 64\ns_cbranch_scc1 L_noattn')
        e(f's_mov_b32 s56, 1\nv_cmp_ge_u32 vcc, s{sA}, v12\ns_cbranch_vccz L_dec')
        e(f's_cmp_le_u32 s{sA}, s54\ns_cbranch_scc1 L_idle')
        e(f's_cmp_lt_u32 s{sA}, {self.o.get("hfrom", 36)}\ns_cbranch_scc1 L_noattn')
        e(f'v_readfirstlane_b32 s55, v12\ns_add_u32 s55, s55, {self.o.get("hold", 0)}\ns_min_u32 s58, s{sA}, 61\ns_cmp_le_u32 s58, s55\ns_cbranch_scc1 L_idle')
        e.label('L_noattn')
        e(f's_mov_b32 s56, 0\ns_cmp_ge_u32 s{sF}, 128\ns_cbranch_scc1 L_dec')
        e(f's_mov_b32 s56, 2\nv_cmp_eq_u32 vcc, 0, v13\ns_cbranch_vccz L_dec')
        e.label('L_idle')
        e(f's_mov_b32 s56, 0\ns_add_u32 s{sSPIN}, s{sSPIN}, 1\ns_cmp_gt_u32 s{sSPIN}, {1 << 17}\ns_cbranch_scc1 L_dec')
        e(f's_sleep {self.o.get("slp", 2)}\ns_branch L_poll')
        e.label('L_dec')
        e(f'v_mov_b32 v12, s56\nds_write_b32 v{DA}, v12\ns_waitcnt lgkmcnt(0)')
        e.label('L_join')
        e(f's_barrier\nds_read_b32 v12, v{DA}\ns_waitcnt lgkmcnt(0)\nv_xor_b32 v{DA}, 4, v{DA}\nv_readfirstlane_b32 s56, v12')
        e('s_cmp_eq_u32 s56, 1\ns_cbranch_scc1 L_attn\ns_cmp_eq_u32 s56, 0\ns_cbranch_scc1 L_WEND')
        e.label('L_final')
        e.reset()
        self.stamp2(3)
        e(f's_lshl_b32 s57, s{sF}, 17\ns_lshl_b32 s58, s{sW}, 15\ns_add_u32 s57, s57, s58\ns_add_u32 s57, s57, {OO}')
        def old(k):
            if k and k % 4 == 0: e('s_add_u32 s57, s57, 4096')
            e(f'buffer_load_dwordx4 {v(RING+4*(k%NR),4)}, v{L16}, {WSR}, s57 offen offset:{1024*(k%4)} sc1')
        for k in range(NR): old(k)
        for k in range(32):
            for p in (0, 1):
                d = v(AS + 4 * p, 4)
                e(f'v_mfma_f32_16x16x32_bf16 {d}, {R(WO(p,k),4)}, {v(RING+4*(k%NR),4)}, {"0" if k == 0 else d}')
            if k + NR < 32: old(k + NR)
        self.stamp2(4)
        for q in range(4): e(f'ds_write_b128 v{RW}, {v(AS+4*q,4)} offset:{1024*q}')
        e('s_waitcnt lgkmcnt(0)\ns_barrier')
        self.stamp2(5)
        T = RING
        for w in range(4):
            for q in range(4): e(f'ds_read_b32 v{T+4*w+q}, v{RR} offset:{4096*w+1024*q}')
        e(f'v_xor_b32 v{RW}, 0x4000, v{RW}')
        for q in range(4): e(f'v_add_f32 v{T+q}, v{T+q}, v{T+4+q}')
        for q in range(4): e(f'v_add_f32 v{T+8+q}, v{T+8+q}, v{T+12+q}')
        e(f'v_xor_b32 v{RR}, 0x4000, v{RR}')
        for q in range(4): e(f'v_add_f32 v{T+q}, v{T+q}, v{T+8+q}')
        a0, a1, f0, f1, t0, t1, u0, u1 = range(T, T + 8)
        e(f'v_cvt_pk_bf16_f32 v{t0}, v{a0}, v{a1}\nv_cvt_pk_bf16_f32 v{t1}, v{f0}, v{f1}')
        e(f'v_lshlrev_b32 v{a0}, 16, v{t0}\nv_and_b32 v{a1}, s71, v{t0}\nv_lshlrev_b32 v{f0}, 16, v{t1}\nv_and_b32 v{f1}, s71, v{t1}')
        e(f's_mov_b32 s57, {fbits(-math.log2(math.e)):#x}\ns_lshl_b32 s56, s{sF}, 14')
        e(f'v_mul_f32 v{u0}, s57, v{f0}\nv_mul_f32 v{u1}, s57, v{f1}\nv_exp_f32 v{u0}, v{u0}\nv_exp_f32 v{u1}, v{u1}')
        e(f'v_add_f32 v{u0}, 1.0, v{u0}\nv_add_f32 v{u1}, 1.0, v{u1}\nv_rcp_f32 v{u0}, v{u0}\nv_rcp_f32 v{u1}, v{u1}')
        e(f'v_mul_f32 v{f0}, v{f0}, v{u0}\nv_mul_f32 v{f1}, v{f1}, v{u1}\nv_cvt_pk_bf16_f32 v{t1}, v{f0}, v{f1}')
        e(f'v_lshlrev_b32 v{f0}, 16, v{t1}\nv_and_b32 v{f1}, s71, v{t1}\nv_mul_f32 v{a0}, v{a0}, v{f0}\nv_mul_f32 v{a1}, v{a1}, v{f1}')
        e(f'v_cvt_pk_bf16_f32 v{t0}, v{a0}, v{a1}\nv_lshlrev_b32 v{a0}, 16, v{t0}\nv_and_b32 v{a1}, s71, v{t0}')
        e(f'v_lshlrev_b32 v{f0}, 16, v{XR}\nv_and_b32 v{f1}, s71, v{XR}\nv_add_f32 v{a0}, v{a0}, v{f0}\nv_add_f32 v{a1}, v{a1}, v{f1}')
        e(f'v_cvt_pk_bf16_f32 v{t0}, v{a0}, v{a1}')
        e(f'buffer_store_dword v{t0}, v{XO}, {s(SRD_A,4)}, s56 offen')
        e(f's_add_u32 s{sF}, s{sF}, 14')
        prepF()
        e('s_branch L_task')
        e.label('L_attn')
        e.reset()
        self.stamp2(0)
        e(f's_lshl_b32 s56, s{sA}, 18\ns_lshl_b32 s57, s{sH}, 13\ns_add_u32 s56, s56, s57\ns_add_u32 s56, s56, {KVM}')
        e(f's_add_u32 s57, s56, 4096\ns_lshl_b32 s58, s{sEH}, 12\ns_add_u32 s58, s58, s56')
        for k in range(4):
            e(f'buffer_load_dwordx4 {v(KM+4*k,4)}, v{KMA}, {WSR}, s{56+k//2} offen offset:{2048*(k%2)} sc1')
        for u in (0, 1):
            e(f'buffer_load_dwordx2 {v(VM+4*u,2)}, v{L8}, {WSR}, s58 offen offset:{2048*u+1024} sc1')
        e(f's_lshl_b32 s56, s{sA}, 1\ns_add_u32 s56, s56, s{sQT}\ns_lshl_b32 s57, s56, 17\ns_lshl_b32 s58, s{sH}, 12\ns_add_u32 s57, s57, s58')
        e(f's_lshl_b32 s58, s{sEH}, 11\ns_add_u32 s57, s57, s58\ns_add_u32 s57, s57, {OO}')
        e(f's_lshl_b32 s56, s56, 8\ns_lshl_b32 s58, s{sH}, 3\ns_add_u32 s56, s56, s58\ns_lshl_b32 s58, s{sEH}, 2\ns_add_u32 s56, s56, s58\ns_add_u32 s56, s56, {F_OFL}')
        e(f'v_mov_b32 v{PM+1}, 0')
        for k in range(4):
            e(f'v_mfma_f32_16x16x32_bf16 {v(SMm,4)}, {v(KM+4*k,4)}, {v(Q+4*k,4)}, {"0" if k == 0 else v(SMm,4)}')
        for u in (0, 1): e(f'v_mov_b32 v{VM+4*u+2}, v{VM+4*u+1}\nv_mov_b32 v{VM+4*u+3}, v{VM+4*u}')
        self.stamp2(1)
        e(f'v_mul_f32 v{SMm}, s{sSC}, v{SMm}\nv_mul_f32 v{SMm+1}, s{sSC}, v{SMm+1}\nv_max3_f32 v14, v{MX}, v{SMm}, v{SMm+1}')
        self.red_g('v_max_f32', 14, 15)
        vals = [S0 + i for i in range(4)] + [S1 + i for i in range(4)] + [SMm, SMm + 1]
        for x in vals: e(f'v_sub_f32 v{x}, v{x}, v14')
        for x in vals: e(f'v_exp_f32 v{x}, v{x}')
        e(f'v_add_f32 v14, v{vals[0]}, v{vals[1]}')
        for x in vals[2:]: e(f'v_add_f32 v14, v14, v{x}')
        self.red_g('v_add_f32', 14, 15)
        e('v_rcp_f32 v14, v14')
        for x in vals: e(f'v_mul_f32 v{x}, v{x}, v14')
        for tk, S_ in ((0, S0), (1, S1)):
            for hh in (0, 1): e(f'v_cvt_pk_bf16_f32 v{PX+2*tk+hh}, v{S_+2*hh}, v{S_+2*hh+1}')
        e(f'v_cvt_pk_bf16_f32 v{PM}, v{SMm}, v{SMm+1}')
        for u in (0, 1):
            for p in (0, 1):
                e(f'v_mfma_f32_16x16x32_bf16 {v(OA + 8 * u + 4 * p, 4)}, {v(V+8*u+4*p,4)}, {v(PX,4)}, 0')
        for u in (0, 1):
            for p in (0, 1):
                d = v(OA + 8 * u + 4 * p, 4)
                e(f'v_mfma_f32_16x16x16_bf16 {d}, {v(VM+4*u+2*p,2)}, {v(PM,2)}, {d}')
        for u in (0, 1):
            for i in range(4): e(f'v_cvt_pk_bf16_f32 v{KM+4*u+i}, v{OA+8*u+i}, v{OA+8*u+4+i}')
            e(f'buffer_store_dwordx4 {v(KM+4*u,4)}, v{L16}, {WSR}, s57 offen offset:{1024*u} sc1')
        self.stamp2(6)
        e('s_waitcnt vmcnt(0)')
        self.stamp2(2)
        e(f's_mov_b64 exec, 1\nbuffer_store_dword v{ONE}, off, {WSR}, s56 sc1\ns_mov_b64 exec, -1')
        e(f's_add_u32 s{sA}, s{sA}, 7')
        prepA()
        e('s_branch L_task')
        e.label('L_WEND')
        e.reset()
        self.stamp(7)
        if self.dev:
            for idx in range(7):
                e.raw(f'v_mov_b32 v112, s{4+2*idx}'); e.raw(f'buffer_store_dword v112, off, {WSR}, s97 offset:{4*(idx+1)}')
        e('s_branch L_END')

    def chain(self):
        e = self.e; o = self.o
        e.label('L_CHAIN'); e.reset()
        sH = sJ
        LW, LMEM, LTR, LZ = 0, 131072, 139264, 152064
        TRS = 1280
        L16, L8, IDX, H1S, H2S, MEMW, MEMR, WST, TRW, KTR, Q0R, Q1R, QQR, K2R, LN0, OW, OR_, PFA, PFL, FLGV, VMK = \
            0, 1, 2, 3, 4, 5, 6, 9, 10, 11, 12, 13, 14, 15, 16, 17, 18, 19, 20, 21, 22
        SEL, ONES, MEMA, ACK, ACQ, ACV, KX, VX, SX, SM_, ST = 24, 28, 32, 64, 72, 80, 88, 96, 104, 108, 112
        seq = []
        for m in 'qkv':
            for sl in (0, 1):
                for p in (0, 1): seq.append((m, sl, p))
        for m in 'qkv':
            for sl in range(2, 8):
                for p in (0, 1): seq.append((m, sl, p))
        for b in range(4): seq.append(('o', 0, b))
        for b in range(4):
            for sl in (1, 2, 3): seq.append(('o', sl, b))
        bA, bB, bC, bD = ST, ST + 8, KX, VX
        bE, bF, bG = MEMA + 8, MEMA + 16, MEMA + 24
        staged = {1: bC, 3: bD, 5: bA, 7: bB, 2: bE, 4: bF, 6: bG, 23: bA, 27: bB, 39: bA, 38: bB, 48: bB, 49: bA, 61: bD, 62: bA, 63: bB}
        slot = {n: i for i, n in enumerate(sorted(staged))}
        pool = list(range(256, 512, 8)) + list(range(128, 256, 8))
        home = {}; pos = {key: n for n, key in enumerate(seq)}
        gorder = [(m, sl) for m in 'kqv' for sl in (0, 2, 4, 6, 1, 3, 5, 7)]
        for key in [(m, sl, p) for m, sl in gorder for p in (0, 1)] + [k_ for k_ in seq if k_[0] == 'o']:
            home[key] = None if pos[key] in staged else pool.pop(0)
        assert not pool
        LN = 111
        G, C = 110, 109
        e(f'v_mov_b32 v{LN}, v0\nv_lshrrev_b32 v{G}, 4, v0\nv_and_b32 v{C}, 15, v0')
        e(f'v_lshlrev_b32 v{L8}, 3, v{LN}\nv_lshlrev_b32 v{L16}, 4, v{LN}')
        e(f's_lshl_b32 s54, s{sW}, 15\nv_add_u32 v{WST}, s54, v{L16}')
        sH1S, sH1S2, sH1L, sH2S, sH2L, sKV, sKVM, sT, sSEN, sSC, sPROG, sFL = 60, 61, 62, 63, 64, 65, 66, 67, 68, 69, 70, 71
        e(f's_mov_b32 s{sSEN}, {SENT:#x}\ns_mov_b32 s{sSC}, {fbits(CSC):#x}\ns_mov_b32 s58, 0')
        e(f's_lshl_b32 s54, s{sH}, 2\ns_add_u32 s54, s54, s{sW}\ns_lshl_b32 s{sH1L}, s54, 11\ns_add_u32 s{sH1L}, s{sH1L}, {H1}')
        e(f's_mov_b32 s{sH1S}, {H1}\ns_mov_b32 s{sH1S2}, {H1+4096}')
        for i in range(4): e(f'v_mov_b32 v{SX+i}, s{sSEN}')
        e(f's_xor_b32 s55, s{sH1L}, 0x40000')
        for sb in (sH1L, 55):
            for m in (0, 1): e(f'buffer_store_dwordx4 {v(SX,4)}, v{L16}, {WSR}, s{sb} offen offset:{1024*m}')
        e(f's_lshr_b32 s54, s{sH}, 3\ns_bfe_u32 s55, s{sH}, 0x20001\ns_and_b32 s56, s{sH}, 1')
        e(f's_lshr_b32 s59, s55, 1\ns_and_b32 s55, s55, 1')
        e(f's_lshl_b32 s57, s{sW}, 1\ns_add_u32 s57, s57, s56\ns_lshl_b32 s57, s57, 10\ns_lshl_b32 s58, s54, 8\ns_add_u32 s57, s57, s58\ns_lshl_b32 s58, s55, 7\ns_add_u32 s57, s57, s58\ns_lshl_b32 s58, s59, 5\ns_add_u32 s57, s57, s58')
        e(f'v_lshrrev_b32 v100, 1, v{G}\nv_lshlrev_b32 v100, 6, v100\nv_and_b32 v102, 1, v{G}\nv_lshlrev_b32 v102, 4, v102\nv_add_u32 v100, v100, v102')
        e(f'v_lshlrev_b32 v101, 2, v{C}\nv_add3_u32 v{H2S}, v100, v101, s57')
        e(f's_mov_b32 s{sH2S}, {H2}\ns_lshl_b32 s{sH2L}, s{sW}, 11\ns_add_u32 s{sH2L}, s{sH2L}, {H2}')
        self.srd(SRD_A, sMEM, 8192)
        e(f's_lshl_b32 s57, s55, 12\ns_lshl_b32 s58, s54, 8\ns_add_u32 s57, s57, s58\ns_lshl_b32 s58, s56, 7\ns_add_u32 s57, s57, s58\ns_lshl_b32 s58, s{sW}, 2\ns_add_u32 s57, s57, s58\ns_lshl_b32 s58, s59, 1\ns_add_u32 s57, s57, s58')
        e(f'v_lshlrev_b32 v100, 10, v{G}\nv_lshlrev_b32 v101, 5, v{C}\nv_add_u32 v100, v100, v101')
        e(f's_mov_b32 s72, 0x000f000f\ns_mov_b32 s73, 0x000f000f\ns_mov_b32 s74, 0x00ff00ff\ns_mov_b32 s75, 0x00ff00ff')
        e(f's_mov_b64 exec, s[72:73]')
        e(f'buffer_load_ushort v20, v100, {s(SRD_A,4)}, s57 offen\nbuffer_load_ushort v21, v100, {s(SRD_A,4)}, s57 offen offset:16')
        e(f's_xor_b32 s55, s{sH2S}, 0x2000')
        e(f'buffer_store_dword v{SX}, v{H2S}, {WSR}, s55 offen')
        e(f's_mov_b64 exec, -1')
        def pub0():
            e(f'v_lshl_or_b32 v20, v21, 16, v20\nv_mov_b32 v21, -1\nv_cmp_eq_u32 vcc, s{sSEN}, v20\nv_cndmask_b32 v20, v20, v21, vcc')
            e(f's_mov_b64 exec, s[72:73]\nbuffer_store_dword v20, v{H2S}, {WSR}, s{sH2S} offen\ns_mov_b64 exec, -1')
        self.srd(SRD_A, sWO, 1 << 22)
        e(f'v_lshlrev_b32 v100, 12, v{G}\nv_lshlrev_b32 v101, 4, v{C}')
        e(f's_lshl_b32 s54, s{sH}, 17\ns_lshl_b32 s55, s{sW}, 8\ns_add_u32 s54, s54, s55\nv_add3_u32 v100, v100, v101, s54')
        TB = 24
        def stage_write(key, regs):
            sl = slot[pos[key]]
            e(f'ds_write_b128 v{WST}, {v(regs,4)} offset:{sl*2048}\nds_write_b128 v{WST}, {v(regs+4,4)} offset:{sl*2048+1024}')
        def arrive():
            e('s_barrier')
            L = self.lab('arr')
            e(f's_cmp_lg_u32 s{sW}, 0\ns_cbranch_scc1 {L}')
            e.raw(f'v_mov_b32 v102, 4'); e.raw('v_mov_b32 v103, 1'); e.raw('s_mov_b64 exec, 1')
            e.raw(f'global_atomic_add v102, v103, {s(sDBG,2)}'); e.raw('s_mov_b64 exec, -1')
            e.label(L)
        for u in range(4):
            e(f's_add_u32 s{56+u}, s{sW}, {u}\ns_and_b32 s{56+u}, s{56+u}, 3\ns_lshl_b32 s{80+u}, s{56+u}, 14\ns_lshl_b32 s{56+u}, s{56+u}, 15')
        SRD_K = 84
        self.srd(SRD_K, sWK, 1 << 22); self.srd(SRD_B, sWQ, 1 << 22); self.srd(SRD_X, sWV, 1 << 22)
        PV_, BW, BR = 101, 104, 105
        e(f's_lshr_b32 s54, s{sW}, 1\ns_lshl_b32 s54, s54, 20\ns_and_b32 s55, s{sW}, 1\ns_lshl_b32 s89, s55, 18\ns_add_u32 s54, s54, s89\ns_lshl_b32 s89, s{sH}, 8\ns_add_u32 s54, s54, s89')
        e(f'v_lshlrev_b32 v102, 13, v{G}\nv_lshlrev_b32 v103, 4, v{C}\nv_add3_u32 v{PV_}, v102, v103, s54')
        e(f's_lshl_b32 s55, s55, 6\nv_xor_b32 v102, s55, v{L16}\ns_lshl_b32 s54, s{sW}, 12\ns_add_u32 s54, s54, {LMEM}\nv_add_u32 v{BW}, s54, v102')
        e(f'v_lshlrev_b32 v102, 2, v{C}\ns_lshl_b32 s54, s{sW}, 6\nv_add_u32 v102, s54, v102\nv_and_b32 v103, 1, v{G}\nv_lshlrev_b32 v103, 6, v103\nv_xor_b32 v102, v102, v103')
        e(f'v_lshlrev_b32 v103, 12, v{G}\nv_add_u32 v102, v102, v103')
        for u in range(4): e(f's_lshr_b32 s54, s{80+u}, 5\ns_add_u32 s54, s54, {LMEM}\nv_add_u32 v{BR+u}, s54, v102')
        RB, TT = 2, 102
        rbk = list(range(88, 100)) + [12, 13, 14, 15]
        def put(d, Y, X, sel):
            if d < 256: e(f'v_perm_b32 v{d}, v{Y}, v{X}, s{sel}')
            else: e(f'v_perm_b32 v{TT + (d & 1)}, v{Y}, v{X}, s{sel}\nv_accvgpr_write_b32 a{d-256}, v{TT + (d & 1)}')
        def wo_issue(sl, t0):
            for rp in range(4):
                row = 16 * (rp >> 1) + 2 * (rp & 1)
                e(f's_add_u32 s54, s{56+sl}, {row*1024}')
                e(f'buffer_load_dwordx4 {v(t0+8*rp,4)}, v100, {s(SRD_A,4)}, s54 offen')
                e(f'buffer_load_dwordx4 {v(t0+8*rp+4,4)}, v100, {s(SRD_A,4)}, s54 offen offset:1024')
        def wo_finish(sl, t0):
            for bb in range(4):
                key = ('o', sl, bb); d = home[key]; dd = ST + 8 * (bb & 1) if d is None else d
                for rho in range(8):
                    t_ = t0 + 8 * (rho >> 1)
                    put(dd + rho, t_ + 4 + bb, t_ + bb, sPHI if rho & 1 else sPLO)
                if d is None: stage_write(key, dd)
            e('s_waitcnt lgkmcnt(0)')
        corder = [(m, x, j) for m in 'kqv' for x in (0, 1) for j in range(4)]
        def pj_issue(k, t0):
            m, x, j = corder[k]; srd = {'k': SRD_K, 'q': SRD_B, 'v': SRD_X}[m]
            for i in range(4):
                row = 256 * (j >> 1) + 16 * (j & 1) + 64 * x + 4 * i
                e(f's_mov_b32 s54, {row*8192}')
                e(f'buffer_load_dwordx4 {R(t0+4*i,4)}, v{PV_}, {s(srd,4)}, s54 offen')
        def pj_finish(k, t0):
            m, x, j = corder[k]; bo = (k & 1) * 16384
            for i in range(4): e(f'ds_write_b128 v{BW}, {R(t0+4*i,4)} offset:{bo + 1024*i}')
            e('s_waitcnt lgkmcnt(0)\ns_barrier')
            for u in range(4):
                for hf in (0, 1):
                    e(f'ds_read2st64_b32 {v(rbk[4*u+2*hf],2)}, v{BR+u} offset0:{bo//256 + hf} offset1:{bo//256 + hf + 8}')
            for u in range(4):
                for p in (0, 1):
                    key = (m, 2 * u + x, p); d = home[key]; t_ = ST + 4 * u + 2 * p
                    for hf in (0, 1):
                        put(d + 2 * j + hf if d is not None else t_ + hf, rbk[4*u+2*hf] + 1, rbk[4*u+2*hf], sPHI if p else sPLO)
                    if d is None:
                        e(f'ds_write_b64 v{WST}, {v(t_,2)} offset:{slot[pos[key]]*2048 + 1024*(j>>1) + 8*(j&1)}')
        first_user = {}
        for k, (m, x, j) in enumerate(corder):
            for u in range(4):
                for p in (0, 1):
                    h_ = home[(m, 2 * u + x, p)]
                    if h_ is not None: first_user.setdefault(h_ & ~15, k)
        free = list(range(496, 255, -16))
        land = {}; nxt_g = [0]
        def pump(cap):
            while nxt_g[0] < 24 and len(e.vmq) + 4 <= cap:
                k = nxt_g[0]
                c_ = [b_ for b_ in free if first_user.get(b_, 99) >= k]
                if not c_: break
                b_ = min(c_, key=lambda x: first_user.get(x, 99)); free.remove(b_); land[k] = b_
                pj_issue(k, b_); nxt_g[0] += 1
        cap = o.get('cap', 12)
        e('s_movk_i32 s88, 0x80')
        e(f's_lshl_b32 s54, s{sH}, 10\ns_lshl_b32 s55, s{sW}, 8\ns_add_u32 s{sFL}, s54, s55\ns_add_u32 s{sFL}, s{sFL}, {F_KVX}')
        wo_issue(0, 24); wo_issue(1, 56)
        if cap >= 24: wo_issue(2, 128)
        pump(cap)
        pub0()
        wo_finish(0, 24)
        if cap < 24: wo_issue(2, 128)
        else: wo_issue(3, 24)
        pump(cap)
        wo_finish(1, 56); free += [56, 72]
        if cap < 24: wo_issue(3, 24)
        pump(cap)
        wo_finish(2, 128); free += [128, 144]; pump(cap)
        done3 = False
        for k in range(24):
            if not done3 and (k not in land or not any(('v', 24) in d_ or ('v', 55) in d_ for d_ in e.vmq) or ('v', 24) in e.vmq[0]):
                wo_finish(3, 24); free += [24, 40]; done3 = True; arrive(); pump(cap)
                if o.get('wst'): self.stamp2(4)
            pj_finish(k, land[k]); free.append(land[k]); pump(cap)
            if o.get('wst') and k in (7, 15): self.stamp2(5 if k == 7 else 6)
            if k == 9:
                e(f'v_mov_b32 v18, 0\nglobal_load_dword v16, v18, {s(sDBG,2)} offset:4 sc1\nglobal_load_dword v17, v18, {s(sDBG,2)} offset:192 sc1')
            if k == 18:
                e(f'v_cmp_gt_u32 vcc, 32, v16\nv_cmp_gt_u32 s[76:77], 0x80, v17'.replace('0x80', 's88'))
                e('s_or_b64 vcc, vcc, s[76:77]\ns_cbranch_vccz L_cok')
                q_ = (list(e.dsq), list(e.vmq))
                self.wait_counter(4, 32, 16); self.wait_counter(192, 128, 16)
                e.label('L_cok'); e.reset(*q_)
                e(f'buffer_load_dwordx2 v[22:23], off, {WSR}, s{sFL} sc1')
        assert done3
        e('s_waitcnt lgkmcnt(0)\ns_barrier')
        self.stamp(2, (100,))
        if self.dev and o.get('wst'):
            for idx in (4, 5, 6):
                e.raw(f'v_mov_b32 v100, s{4+2*idx}'); e.raw(f'buffer_store_dword v100, off, {WSR}, s97 offset:{4*(idx-2)}')
            e.raw('s_waitcnt vmcnt(0)')
        e(f'v_bfe_u32 v100, v{C}, 1, 1\nv_mov_b32 v101, 0x4444\nv_mov_b32 v102, 0xeeee\nv_cmp_eq_u32 vcc, 1, v100\nv_cndmask_b32 v{IDX}, v101, v102, vcc')
        e(f'v_cmp_lt_u32 vcc, 7, v{C}\nv_cndmask_b32 v101, v101, v102, vcc\nv_lshl_or_b32 v{IDX}, v101, 16, v{IDX}')
        e(f'v_lshlrev_b32 v101, 1, v{G}\nv_lshrrev_b32 v102, 3, v{C}\nv_add_u32 v101, v101, v102\nv_lshlrev_b32 v101, 13, v101')
        e(f'v_and_b32 v103, 7, v{C}\nv_lshlrev_b32 v104, 3, v103\ns_lshl_b32 s54, s{sW}, 16\ns_lshl_b32 s55, s{sH}, 6\ns_add_u32 s54, s54, s55\nv_add3_u32 v{H1S}, v101, v104, s54')
        e(f's_lshl_b32 s54, s{sW}, 11\ns_add_u32 s54, s54, {LMEM}\nv_add_u32 v{MEMW}, s54, v{L16}')
        for u in (1, 2, 3):
            e(f's_add_u32 s54, s{sW}, {u}\ns_and_b32 s54, s54, 3\ns_lshl_b32 s54, s54, 11\ns_add_u32 s54, s54, {LMEM}\nv_add_u32 v{MEMR+u-1}, s54, v{L16}')
        e(f's_mul_i32 s56, s{sW}, {TRS}\ns_add_u32 s56, s56, {LTR}')
        e(f'v_lshrrev_b32 v101, 2, v{C}\nv_mul_u32_u24 v101, 144, v101\nv_lshlrev_b32 v104, 5, v{G}\nv_and_b32 v105, 3, v{C}\nv_lshlrev_b32 v105, 2, v105')
        e(f'v_add3_u32 v101, v101, v104, v105\nv_add_u32 v{TRW}, s56, v101')
        e(f'v_lshrrev_b32 v101, 2, v{C}\nv_lshlrev_b32 v101, 1, v101\nv_and_b32 v104, 1, v{C}\nv_add_u32 v106, v101, v104')
        e(f'v_mul_u32_u24 v107, 144, v{G}\nv_lshlrev_b32 v101, 7, v{G}\nv_lshlrev_b32 v104, 2, v{C}\nv_add_u32 v{KTR}, v101, v104')
        e(f'v_lshlrev_b32 v101, 4, v103\ns_add_u32 s57, s56, 640\nv_add3_u32 v{QQR}, v107, v101, s57')
        e(f'v_mov_b32 v101, {LZ}\nv_cmp_eq_u32 vcc, 0, v102\nv_cndmask_b32 v{Q0R}, v101, v{QQR}, vcc\nv_cndmask_b32 v{Q1R}, v{QQR}, v101, vcc')
        e(f'v_mul_u32_u24 v101, {TRS}, v102\nv_lshlrev_b32 v104, 4, v103\nv_add3_u32 v101, v101, v104, v107\nv_add_u32 v{QQR}, {LTR+640}, v101')
        e(f'v_mul_u32_u24 v101, {TRS}, v100\nv_lshlrev_b32 v104, 4, v106\nv_add3_u32 v101, v101, v104, v107\nv_add_u32 v{K2R}, {LTR}, v101')
        e(f'v_lshlrev_b32 v101, 3, v{G}\nv_add_u32 v101, v101, v103')
        e(f'v_lshlrev_b32 v{PFA}, 7, v{LN}\nv_mov_b32 v101, {WS_BYTES:#x}\nv_cmp_lt_u32 vcc, 31, v{LN}\nv_cndmask_b32 v{PFA}, v{PFA}, v101, vcc')
        e(f'v_mov_b32 v101, 0x3f80\nv_mov_b32 v104, 0x3f800000\nv_mov_b32 v105, 0')
        for i in range(4):
            c0 = 4 * (2 * (i & 1)) + (i >> 1); c1 = c0 + 4
            e(f'v_cmp_eq_u32 vcc, {c0}, v{C}\nv_cndmask_b32 v{SEL+i}, v105, v101, vcc\nv_cmp_eq_u32 vcc, {c1}, v{C}\nv_cndmask_b32 v{SEL+i}, v{SEL+i}, v104, vcc')
        for i in range(4): e(f'v_mov_b32 v{ONES+i}, 0x3f803f80')
        for i in range(4): e(f'v_mov_b32 v{SX+i}, 0')
        e(f'v_mov_b32 v101, {LZ}\nds_write_b128 v101, {v(SX,4)}')
        FLA = L8
        e(f's_lshl_b32 s54, s{sH}, 14\ns_lshl_b32 s55, s{sW}, 12\ns_add_u32 s{sKV}, s54, s55\ns_add_u32 s{sKV}, s{sKV}, {KV}')
        e(f's_lshl_b32 s54, s{sH}, 13\ns_lshl_b32 s55, s{sW}, 11\ns_add_u32 s{sKVM}, s54, s55\ns_add_u32 s{sKVM}, s{sKVM}, {KVM - 0x40000}')
        e(f's_lshl_b32 s54, s{sH}, 7\ns_lshl_b32 s55, s{sW}, 2\ns_add_u32 s{sPROG}, s54, s55\ns_add_u32 s{sPROG}, s{sPROG}, {F_PROG}')
        e(f's_mov_b32 s{sT}, 0')
        e('s_waitcnt lgkmcnt(0)')
        def flag_spin(off):
            L = self.lab('fs'); D = self.lab('fsd')
            e.label(L)
            e.raw(f'buffer_load_dword v{FLGV}, off, {WSR}, s{sFL} offset:{off} sc1'); e.raw('s_waitcnt vmcnt(0)')
            e.raw(f'v_cmp_eq_u32 vcc, 0, v{FLGV}'); e.raw(f's_cbranch_vccz {D}')
            self.spin_check()
            e.raw('s_sleep 1'); e.raw(f's_branch {L}')
            e.label(D)
        e('s_waitcnt vmcnt(0)\nv_min_u32 v22, v22, v23\nv_cmp_eq_u32 vcc, 0, v22\ns_cbranch_vccz L_f01')
        flag_spin(0); flag_spin(4)
        e.label('L_f01')
        e(f's_add_u32 s{sFL}, s{sFL}, 8')
        e('s_barrier')
        self.stamp(3, (100,))
        def rf(n, half=None):
            r = staged[n]; sl = slot[n]
            t = [f'ds_read_b128 {v(r,4)}, v{WST} offset:{sl*2048}', f'ds_read_b128 {v(r+4,4)}, v{WST} offset:{sl*2048+1024}']
            return '\n'.join(t) if half is None else t[half]
        OAq = 64; WA = MEMA
        def S(n, fill=None):
            m, sl, p = seq[n]
            if m == 'o': d, A = WA + 4 * p, (SX if sl == 0 else OAq + 4 * (sl - 1))
            else: d, A = {'k': ACK, 'q': ACQ, 'v': ACV}[m] + 4 * p, MEMA + 4 * sl
            hm = home[seq[n]]
            B = R(hm, 8) if hm is not None else v(staged[n], 8)
            e(f'v_smfmac_f32_16x16x64_bf16 {v(d,4)}, {v(A,4)}, {B}, v{IDX}' + (' abid:1' if m == 'o' else ''))
            if fill: e(fill)
            if n in o.get('at', ()): self.ct(f'*.n{n}')
        def zero(r0, n):
            for r in range(r0, r0 + n, 2): e(f'v_mov_b64 {v(r,2)}, 0')
        def nops(cyc):
            n = cyc // 4
            while n > 0:
                k = min(n, 16); e(f's_nop {k-1}'); n -= k
        for n in (1, 3, 5, 7, 2, 6): e(rf(n))
        zero(ACK, 24)
        sTC, sTT, sTM = 74, 75, 57
        e(f's_mov_b32 s{sTC}, 0x10000\ns_mov_b32 s{sTT}, 0\ns_mov_b32 s{sTM}, 0\nv_mov_b32 v{OW}, s{sSEN}\nv_mov_b32 v{OR_}, 0xfffe0000')
        e(f'v_mov_b32 v{FLGV}, 0\nv_mov_b32 v{LN0}, {WS_BYTES:#x}\nv_mov_b32 v{SM_}, v{H2S}\nv_mov_b32 v{H2S}, {WS_BYTES:#x}\nv_mov_b64 {v(VMK,2)}, 0')
        e(f's_mov_b64 exec, 1\nv_mov_b32 v{LN0}, 0\ns_mov_b64 exec, s[72:73]\nv_mov_b32 v{H2S}, v{SM_}\ns_mov_b64 exec, -1')
        e('s_mov_b32 s58, 0')
        if self.dev: e('s_mov_b32 s93, 0\ns_mov_b32 s94, 0\ns_memtime s[100:101]\ns_waitcnt lgkmcnt(0)')
        self.ct_init()
        e('s_waitcnt lgkmcnt(0)')
        add = lambda x: f'v_add_f32 v{x}, v{x}, v{x+2}'
        z1 = lambda r0: f'v_mov_b64 {v(r0,2)}, 0'
        J = lambda *t: '\n'.join(t)
        def nxt():
            e(f's_xor_b32 s{sH2S}, s{sH2S}, 0x2000')
            e(f's_bfe_u32 s{sTM}, s{sT}, 0x10001\ns_lshl_b32 s{sTT}, s{sTM}, 16\ns_xor_b32 s{sTC}, s{sTT}, 0x10000')
            e(f's_add_u32 s55, s{sKV}, 0x80000\ns_add_u32 s56, s{sKVM}, 0x40000')
        nxt()
        y1, y2 = o.get('y1', 140), o.get('y2', 120)
        P1, RD = MEMA + 16, MEMA + 24
        p2 = lambda: [e(f'buffer_load_dwordx4 {v(MEMA+4*m,4)}, v{L16}, {WSR}, s{sH2L} offen offset:{1024*m} sc1') for m in (0, 1)]
        p1 = lambda: [e(f'buffer_load_dwordx4 {v(P1+4*m,4)}, v{L16}, {WSR}, s{sH1L} offen offset:{1024*m} sc1') for m in (0, 1)]
        red1 = f'v_mfma_f32_16x16x32_bf16 {v(RD,4)}, {v(SEL,4)}, {v(P1,4)}, 0'
        red2 = f'v_mfma_f32_16x16x32_bf16 {v(RD,4)}, {v(SEL,4)}, {v(P1+4,4)}, {v(RD,4)}'
        def wait_check(r, x, fail, m1='', m2=''):
            e(f's_waitcnt vmcnt({x+1})')
            e(f'v_max3_u32 v{SM_}, v{r}, v{r+1}, v{r+2}\nv_max_u32 v{SM_}, v{SM_}, v{r+3}')
            e(m1)
            e(f's_waitcnt vmcnt({x})')
            e(f'v_max3_u32 v{SM_}, v{SM_}, v{r+4}, v{r+5}\nv_max3_u32 v{SM_}, v{SM_}, v{r+6}, v{r+7}')
            e(m2)
            e(f'v_cmp_le_u32 vcc, s{sSEN}, v{SM_}\ns_cbranch_vccnz {fail}')
        def wait_check1(x, fail):
            r = P1
            e(f's_waitcnt vmcnt({x+1})')
            e(f'v_bitop3_b32 v{SM_}, v{r}, v{r+2}, s{sTM} bitop3:0x7e')
            e(red1)
            e(f's_waitcnt vmcnt({x})')
            e(f'v_bitop3_b32 v{SM_+1}, v{r+4}, v{r+6}, s{sTM} bitop3:0x7e')
            e(red2)
            e(f'v_bitop3_b32 v{SM_}, v{SM_}, v{SM_+1}, 1 bitop3:0xa8')
            e(f'v_cmp_ne_u32 vcc, 0, v{SM_}\ns_cbranch_vccnz {fail}')
        def publish():
            for sh in (4, 8):
                e(f'v_add_f32_dpp v{RD}, v{RD}, v{RD} row_ror:{sh} row_mask:0xf bank_mask:0xf\nv_add_f32_dpp v{RD+1}, v{RD+1}, v{RD+1} row_ror:{sh} row_mask:0xf bank_mask:0xf')
            e(f'v_cvt_pk_bf16_f32 v{PFL}, v{RD}, v{RD+1}')
            e(f'buffer_store_dword v{PFL}, v{H2S}, {WSR}, s{sH2S} offen')
        e.raw('.p2align 6')
        for _ in range(o.get('al', 0)): e.raw('s_nop 0')
        e.label('L_step')
        e.reset(); e.track = False
        p2()
        if y2:
            nops(y2); p2()
        e(f's_waitcnt vmcnt({4 if y2 else 2})')
        e(rf(4))
        dsq0 = list(e.dsq)
        mw = lambda i: f'ds_write_b64 v{MEMW}, {v(MEMA+2*i,2)} offset:{1024*(i>>1)+8*(i&1)}'
        spec = o.get('spec', 0)
        def head(x, chk):
            r = MEMA
            if chk: e(f's_waitcnt vmcnt({x+1})\nv_max3_u32 v{SM_}, v{r}, v{r+1}, v{r+2}\nv_max_u32 v{SM_}, v{SM_}, v{r+3}')
            S(0, J(mw(0), mw(1)))
            if chk: e(f's_waitcnt vmcnt({x})\nv_max3_u32 v{SM_}, v{SM_}, v{r+4}, v{r+5}\nv_max3_u32 v{SM_}, v{SM_}, v{r+6}, v{r+7}')
            S(1, mw(2))
            if chk: e(f'v_cmp_le_u32 vcc, s{sSEN}, v{SM_}')
            S(2, mw(3))
            if chk: e('s_cbranch_vccnz L_f2')
        if spec:
            e.label('L_w2')
            head(2 if y2 else 0, True)
            dsq0 = dsq0 + [set()] * 4
        else:
            wait_check(MEMA, 2 if y2 else 0, 'L_f2')
        e.label('L_ok2')
        e.track = True
        e.reset(dsq=dsq0, vmq=[set(), set()] if y2 else [])
        self.ct('01.got2')
        mr = lambda u, m: f'ds_read_b128 {v(MEMA+8+8*u+4*m,4)}, v{MEMR+u} offset:{1024*m}'
        kvl = lambda i: f'buffer_load_dwordx4 {v(KX+4*i,4)}, v{L16}, {WSR}, s{sKV} offen offset:{1024*i} sc1'
        RM = 108; KP = 110
        kst = lambda i, sr: f'buffer_store_dword v{KP+i}, v{KTR}, {WSR}, s{sr} offen offset:{64*i} sc1'
        nb = o.get('nb', 8)
        fl = {n: [] for n in range(64)}
        if spec: pass
        elif o.get('w64', 1) == 1:
            e(mw(0)); fl[0].append(mw(1)); fl[1].append(mw(2)); fl[2].append(mw(3))
        elif o.get('w64', 1) == 2:
            e(J(mw(0), mw(1))); fl[0] += [mw(2), mw(3)]
        elif o.get('w64', 1) == 3:
            e(f'ds_write_b128 v{MEMW}, {v(MEMA,4)}'); fl[0].append(f'ds_write_b128 v{MEMW}, {v(MEMA+4,4)} offset:1024')
        else:
            fl[0].append(f'ds_write_b128 v{MEMW}, {v(MEMA,4)}'); fl[1].append(f'ds_write_b128 v{MEMW}, {v(MEMA+4,4)} offset:1024')
        for i, n in enumerate((max(7, nb), 9, 11, 13, 15)): fl[n].append(mr((i + 1) >> 1, (i + 1) & 1))
        for n, t_ in ((3, f'buffer_store_dword v{OW}, v{H2S}, {WSR}, s{sH2S} offen'), (3, kvl(0)), (4, kvl(1)), (5, kvl(2)), (6, kvl(3)),
                      (8, kst(0, sKVM)), (10, kst(1, sKVM)), (12, f'buffer_store_dwordx2 {v(VMK,2)}, v{L8}, {WSR}, s{sKVM} offen offset:1024 sc1'),
                      (16, f'buffer_store_dword v{SX}, v{LN0}, {WSR}, s{sPROG} offen sc1'), (18, f'buffer_load_dword v{FLGV}, off, {WSR}, s{sFL} sc1'),
                      (20, f'buffer_load_dword v{PFL}, v{PFA}, {WSR}, s55 offen sc1'),
                      (14, rf(23, 0)), (17, rf(23, 1)), (19, rf(27, 0)), (21, rf(27, 1)), (22, 's_waitcnt vmcnt(6)'), (23, rf(39, 0)), (23, 's_nop 0'), (24, rf(39, 1)), (24, 's_nop 0'),
                      (25, add(ACQ)), (25, add(ACQ + 1)), (26, add(ACQ + 4)), (26, add(ACQ + 5)),
                      (9, f'v_mov_b32 v{RM}, 0xff800000'), (11, f'v_mov_b32 v{RM+1}, 0xff800000'), (13, f'v_mov_b32 v{SX}, s58')):
            fl[n].append(t_)
        for n in range(3 if spec else 0, 27):
            if n == nb:
                self.ct('1.s4')
                e.lgkm_for_writes()
                e('s_barrier')
                self.ct('1.bar')
                e(mr(0, 0))
            S(n, J(*fl[n]))
            if n in (11, 18, 25): self.ct(f'1.s{n}')
        S(27, f'v_cvt_pk_bf16_f32 v{ACQ+2}, v{ACQ}, v{ACQ+4}\nv_cvt_pk_bf16_f32 v{ACQ+3}, v{ACQ+1}, v{ACQ+5}')
        QB0, QB1 = ACQ, ACQ + 4
        S(28, J(f'ds_write2_b32 v{TRW}, v{ACQ+2}, v{ACQ+3} offset0:160 offset1:164', f'ds_read_b128 {v(QB0,4)}, v{Q0R}'))
        S(29, f'ds_read_b128 {v(QB1,4)}, v{Q1R}')
        S(30)
        self.ct('1.s30')
        S(31)
        S(32)
        e.lgkm_for_writes()
        e('s_barrier')
        Q2 = MEMA
        S(33, f'ds_read_b128 {v(Q2,4)}, v{QQR}')
        S(34, f'ds_read_b128 {v(Q2+4,4)}, v{QQR} offset:{2*TRS}')
        S(35)
        self.ct('015.kend')
        KP = 110
        sxw = lambda i: f'ds_write_b64 v{MEMW}, {v(SX+2*i,2)} offset:{8*i}'
        e(f'v_mfma_f32_16x16x32_bf16 {v(SX,4)}, {v(KX,4)}, {v(QB0,4)}, 0')
        e(f'v_mfma_f32_16x16x32_bf16 {v(SX,4)}, {v(KX+4,4)}, {v(QB1,4)}, {v(SX,4)}')
        e(J(add(ACK), add(ACK + 1), add(ACK + 4), add(ACK + 5)))
        e(f'v_cvt_pk_bf16_f32 v{KP}, v{ACK}, v{ACK+4}\nv_cvt_pk_bf16_f32 v{KP+1}, v{ACK+1}, v{ACK+5}')
        self.ct('5.kp')
        if o.get('sx64', 0):
            S(36, J(f'ds_write2_b32 v{TRW}, v{KP}, v{KP+1} offset0:0 offset1:4', sxw(0), sxw(1)))
        else:
            S(36, J(f'ds_write2_b32 v{TRW}, v{KP}, v{KP+1} offset0:0 offset1:4', f'ds_write_b128 v{MEMW}, {v(SX,4)}'))
        self.ct('5.w')
        S(37, f's_cmp_eq_u32 s{sT}, 63')
        S(39)
        S(40)
        self.ct('5.s40')
        e.lgkm_for_writes()
        e('s_barrier')
        e('s_cbranch_scc1 L_CEND')
        st63 = (list(e.dsq), list(e.vmq))
        self.ct('0125.barS')
        K2 = ACK
        RX = [88, 72, 92]; SMD = 76
        pka = lambda d, x: f'v_pk_add_f32 {v(d,2)}, {v(d,2)}, {v(x,2)}'
        e(f'ds_read_b128 {v(K2,4)}, v{K2R}\nds_read_b128 {v(K2+4,4)}, v{K2R} offset:{2*TRS}')
        S(41, J(f'ds_read_b128 {v(RX[0],4)}, v{MEMR}', f'ds_read_b128 {v(RX[1],4)}, v{MEMR+1}'))
        S(42, f'ds_read_b128 {v(RX[2],4)}, v{MEMR+2}')
        S(43)
        self.ct('2.s43')
        e(f'v_mfma_f32_16x16x32_bf16 {v(SMD,4)}, {v(K2,4)}, {v(Q2,4)}, 0')
        e(rf(38, 0))
        e(f'v_mfma_f32_16x16x32_bf16 {v(SMD,4)}, {v(K2+4,4)}, {v(Q2+4,4)}, {v(SMD,4)}')
        e(rf(38, 1))
        self.ct('2.m2')
        for i in range(4): e(f'v_add_f32 v{SX+i}, v{SX+i}, v{RX[0]+i}')
        if o.get('pk', 1):
            e(J(pka(SX, RX[1]), pka(SX + 2, RX[1] + 2), pka(SX, RX[2]), pka(SX + 2, RX[2] + 2)))
        else:
            for u in (1, 2):
                for i in range(4): e(f'v_add_f32 v{SX+i}, v{SX+i}, v{RX[u]+i}')
        e(f'v_add_f32_dpp v{RM}, v{SMD+2}, v{SMD} row_ror:8 row_mask:0xf bank_mask:0x3\nv_add_f32_dpp v{RM+1}, v{SMD+3}, v{SMD+1} row_ror:8 row_mask:0xf bank_mask:0x3')
        self.ct('2.sum')
        M0, M1 = 64, 65
        e(f'v_max3_f32 v{M0}, v{SX}, v{SX+1}, v{SX+2}\nv_max3_f32 v{M0}, v{M0}, v{SX+3}, v{RM}\nv_max_f32 v{M0}, v{M0}, v{RM+1}')
        S(44, rf(49, 0))
        e(f'v_max_f32_dpp v{M1}, v{M0}, v{M0} row_ror:8 row_mask:0xf bank_mask:0xf')
        e(f'v_max_f32_dpp v{M0}, v{M0}, v{M0} row_ror:8 row_mask:0xf bank_mask:0xf')
        S(45, rf(49, 1))
        e(f'v_permlane16_swap_b32 v{M0}, v{M1}\nv_max_f32 v{M1+1}, v{M0}, v{M1}\nv_max_f32 v{M0}, v{M0}, v{M1}')
        S(38, rf(48, 0))
        e(f'v_permlane32_swap_b32 v{M0}, v{M1+1}\nv_max_f32 v{M0}, v{M0}, v{M1+1}\nv_mul_f32 v{M0}, s{sSC}, v{M0}')
        self.ct('2.red')
        fma = lambda x: f'v_fma_f32 v{x}, v{x}, s{sSC}, -v{M0}'
        ex = lambda x: f'v_exp_f32 v{x}, v{x}'
        e(J(fma(SX), fma(SX + 1), fma(SX + 2), fma(SX + 3), ex(SX), ex(SX + 1), ex(SX + 2), ex(SX + 3)))
        self.ct('2.exp')
        PX, PM, LA, OE, OO_ = 92, 68, 88, 72, 76
        e(f'v_cvt_pk_bf16_f32 v{PX}, v{SX}, v{SX+1}\nv_cvt_pk_bf16_f32 v{PX+2}, v{SX}, v{SX+1}\nv_cvt_pk_bf16_f32 v{PX+1}, v{SX+2}, v{SX+3}\nv_cvt_pk_bf16_f32 v{PX+3}, v{SX+2}, v{SX+3}')
        dp = lambda x, bm: f'v_mov_b32_dpp v{x}, v{x} row_ror:8 row_mask:0xf bank_mask:{bm}'
        e(J(dp(PX, '0xc'), dp(PX + 2, '0x3'), dp(PX + 1, '0xc'), dp(PX + 3, '0x3')))
        S(46, J(rf(48, 1), fma(RM)))
        S(47, fma(RM + 1))
        self.ct('023.P')
        e(f'v_mfma_f32_16x16x32_bf16 {v(LA,4)}, {v(ONES,4)}, {v(PX,4)}, 0')
        e(ex(RM))
        e(f'v_mfma_f32_16x16x32_bf16 {v(OE,4)}, {v(VX,4)}, {v(PX,4)}, 0')
        e(ex(RM + 1))
        e(f'v_mfma_f32_16x16x32_bf16 {v(OO_,4)}, {v(VX+4,4)}, {v(PX,4)}, 0')
        e(J(f'v_cvt_pk_bf16_f32 v{PM}, v{RM}, v{RM+1}', add(ACV), add(ACV + 1), dp(PM, '0xc'), f'v_mov_b32 v{PM+1}, 0', f'v_cvt_pk_bf16_f32 v{VMK}, v{ACV}, v{ACV+1}', add(ACV + 4)))
        self.ct('3.x')
        e(f'v_mfma_f32_16x16x16_bf16 {v(LA,4)}, {v(ONES,2)}, {v(PM,2)}, {v(LA,4)}')
        e(J(add(ACV + 5), f'v_cvt_pk_bf16_f32 v{ACV+2}, v{ACV+4}, v{ACV+5}'))
        e(f'v_mfma_f32_16x16x16_bf16 {v(OE,4)}, {v(VMK,2)}, {v(PM,2)}, {v(OE,4)}')
        e(J(f'v_mov_b32 v{ACV+3}, 0', z1(WA)))
        e(f'v_mfma_f32_16x16x16_bf16 {v(OO_,4)}, {v(ACV+2,2)}, {v(PM,2)}, {v(OO_,4)}')
        e(J(z1(WA + 2), z1(WA + 4)))
        self.ct('3.m')
        e(f'v_rcp_f32 v{LA}, v{LA}')
        e(z1(WA + 6))
        if o.get('pk', 1):
            for x in (OE, OE + 2, OO_, OO_ + 2): e(f'v_pk_mul_f32 {v(x,2)}, {v(x,2)}, {v(LA,2)} op_sel_hi:[1,0]')
        else:
            for i in range(4): e(f'v_mul_f32 v{OE+i}, v{OE+i}, v{LA}')
            for i in range(4): e(f'v_mul_f32 v{OO_+i}, v{OO_+i}, v{LA}')
        for i in range(4): e(f'v_cvt_pk_bf16_f32 v{SX+i}, v{OE+i}, v{OO_+i}')
        self.ct('3.cvt')
        if o.get('o64', 0):
            e(f'ds_write_b64 v{MEMW}, {v(SX,2)} offset:1024\nds_write_b64 v{MEMW}, {v(SX+2,2)} offset:1032')
        else:
            e(f'ds_write_b128 v{MEMW}, {v(SX,4)} offset:1024')
        S(48, J(f's_mov_b32 s{sKV}, s55', z1(WA + 8), z1(WA + 10)))
        S(49, J(f's_mov_b32 s{sKVM}, s56', z1(WA + 12), z1(WA + 14)))
        self.ct('3.z')
        e.lgkm_for_writes()
        e('s_barrier')
        self.ct('034.barB')
        for u in range(3): e(f'ds_read_b128 {v(OAq+4*u,4)}, v{MEMR+u} offset:1024')
        S(50, f'v_mov_b32 v{VMK+1}, v{ACV+2}')
        S(51)
        PK = 80
        def post(b):
            t0 = WA + 4 * b
            return [f'v_add_u32 v{t0}, s{sTC}, v{t0}', f'v_and_or_b32 v{t0}, v{t0}, v{OR_}, s{sTT}',
                    f'v_cvt_pk_bf16_f32 v{PK+1+2*b}, v{t0+2}, v{t0+3}', f'v_cvt_pk_bf16_f32 v{PK+2*b}, v{t0}, v{t0+1}',
                    f'buffer_store_dwordx2 {v(PK+2*b,2)}, v{H1S}, {WSR}, s{sH1S if b < 2 else sH1S2} offen offset:{2048*(b&1)}']
        P = [post(b) for b in range(4)]
        self.ct('4.pre')
        S(52); self.ct('4.s52'); S(53); S(54, 's_nop 1')
        S(55, J('s_nop 3', *P[0][:4])); S(56, J(P[0][4], rf(61, 0))); self.ct('4.st0')
        S(57, J(rf(61, 1), rf(62, 0))); S(58, J(rf(62, 1), rf(63, 0))); S(59, J(rf(63, 1), *P[1][:4])); S(60, J(P[1][4], 's_nop 0')); self.ct('4.s60')
        S(61, 's_nop 1'); S(62, J('s_nop 0', *P[2][:4])); S(63, P[2][4]); self.ct('4.b2')
        e(J(*P[3]))
        self.ct('04.wo')
        def stagger(d0, dd, tag):
            nops(d0)
            if dd:
                for w in (1, 2, 3):
                    e(f's_cmp_lt_u32 s{sW}, {w}\ns_cbranch_scc1 L_sg{tag}')
                    nops(dd - 8 + (24 if w == 3 else 0))
            e.label(f'L_sg{tag}')
        nr = o.get('nr', 3)
        for n in (1, 3, 5)[:nr]: e(rf(n))
        stagger(o.get('d1', 20), o.get('g1', 48), 1)
        self.ct('0.d1')
        p1()
        for i in range(6): e(J(z1(ACK + 2 * i), 's_nop 0'))
        if y1:
            nops(y1 - 48); p1()
        for n in (1, 3, 5)[nr:] + (7, 2): e(rf(n))
        e.track = False
        wait_check1(2 if y1 else 0, 'L_f1')
        e.label('L_ok1')
        publish()
        e.label('L_pub1')
        e.track = True
        e.reset(dsq=e.dsq)
        self.ct('0.pub')
        e(rf(6))
        for i in range(6, 12): e(z1(ACK + 2 * i))
        e(f's_xor_b32 s{sH1S}, s{sH1S}, 0x40000\ns_xor_b32 s{sH1S2}, s{sH1S2}, 0x40000\ns_xor_b32 s{sH1L}, s{sH1L}, 0x40000\ns_xor_b32 s{sH2L}, s{sH2L}, 0x2000')
        e(f'v_readfirstlane_b32 s54, v{FLGV}\ns_cmp_lg_u32 s54, 0\ns_cbranch_scc0 L_fslow')
        e.label('L_fok')
        e(f's_mov_b32 s58, s{sT}')
        e(f's_add_u32 s{sFL}, s{sFL}, 4\ns_add_u32 s{sT}, s{sT}, 1')
        nxt()
        if self.dev:
            e.raw(f's_cmp_lg_u32 s{sT}, 3'); e.raw('s_cbranch_scc0 L_T0'); e.label('L_T0r')
        e('s_waitcnt lgkmcnt(0)')
        self.ct_acc()
        if self.dev and o.get('trace'):
            e.raw(f's_lshl_b32 s97, s98, 2'); e.raw(f's_add_u32 s97, s97, s{sW}'); e.raw('s_lshl_b32 s97, s97, 6'); e.raw(f's_add_u32 s97, s97, s{sT}'); e.raw('s_lshl_b32 s97, s97, 5'); e.raw(f's_add_u32 s97, s97, {STP+0x40000}')
            if o.get('trace') == 2:
                e.raw('s_memrealtime s[94:95]'); e.raw('s_waitcnt lgkmcnt(0)')
            for i, sr in enumerate((26, 4, 6, 14, 16, 18, 93, 94)):
                e.raw(f'v_mov_b32 v{32+i}, s{sr}')
            e.raw(f'buffer_store_dwordx4 v[32:35], v{LN0}, {WSR}, s97 offen'); e.raw(f'buffer_store_dwordx4 v[36:39], v{LN0}, {WSR}, s97 offen offset:16')
        nops(max(0, o.get('d2', 44) - self.ct_cost() - (72 if o.get('trace') else 0)))
        self.ct_last()
        e('s_branch L_step')
        e.label('L_fslow')
        e(f's_cmp_ge_u32 s{sT}, 62\ns_cbranch_scc1 L_fok')
        flag_spin(0)
        e('s_branch L_fok')
        if self.dev:
            e.label('L_T0'); e.raw('s_memtime s[100:101]'); e.raw('s_mov_b32 s93, 0'); e.raw('s_mov_b32 s94, 0'); e.raw('s_branch L_T0r')
        e.track = False
        def spin(tag):
            if self.dev: e(f's_add_u32 s{92+tag}, s{92+tag}, 1')
            e(f's_add_u32 s{sSPIN}, s{sSPIN}, 1\ns_cmp_gt_u32 s{sSPIN}, {1 << 19}\ns_cbranch_scc1 L_END')
        e.label('L_f1')
        p1(); spin(1)
        wait_check1(2 if y1 else 0, 'L_f1')
        publish(); e('s_branch L_pub1')
        e.label('L_f2')
        p2()
        e(f'v_cmp_lt_u32 vcc, s{sSEN}, v{SM_}')
        spin(2)
        e('s_cbranch_vccnz L_x2')
        if spec:
            e('s_nop 1'); zero(ACQ, 8); e('s_nop 0\ns_branch L_w2')
        else:
            wait_check(MEMA, 2 if y2 else 0, 'L_f2')
            e('s_branch L_ok2')
        e.label('L_x2')
        e('s_waitcnt vmcnt(0)')
        e(f'v_cmp_eq_u32 s[76:77], s{sSEN}, v{MEMA}')
        for i in range(1, 8): e(f'v_cmp_eq_u32 vcc, s{sSEN}, v{MEMA+i}\ns_or_b64 s[76:77], s[76:77], vcc')
        if spec:
            e('s_cbranch_scc1 L_f2'); zero(ACQ, 8); e('s_waitcnt lgkmcnt(0)'); head(0, False); e('s_branch L_ok2')
        else:
            e('s_cbranch_scc0 L_ok2\ns_branch L_f2')
        e.track = True
        e.label('L_CEND')
        e.reset(*st63)
        e(J(rf(38), kst(0, 56), kst(1, 56)))
        for n in (41, 42, 43, 44, 45, 46, 47, 38): S(n)
        e(J(add(ACV), add(ACV + 1), add(ACV + 4), add(ACV + 5)))
        e(f'v_cvt_pk_bf16_f32 v{ACV}, v{ACV}, v{ACV+1}\nv_cvt_pk_bf16_f32 v{ACV+1}, v{ACV+4}, v{ACV+5}')
        e(f'buffer_store_dwordx2 {v(ACV,2)}, v{L8}, {WSR}, s56 offen offset:1024 sc1')
        e(f's_waitcnt vmcnt(0) lgkmcnt(0)\nv_mov_b32 v{SM_}, 64\ns_mov_b64 exec, 1\nbuffer_store_dword v{SM_}, off, {WSR}, s{sPROG} sc1\ns_mov_b64 exec, -1')
        if self.dev:
            e('s_memtime s[90:91]\ns_waitcnt lgkmcnt(0)\ns_sub_u32 s90, s90, s100')
            e(f's_lshl_b32 s97, s98, 8\ns_lshl_b32 s99, s{sW}, 6\ns_add_u32 s97, s97, s99\ns_add_u32 s97, s97, {STP+32}')
            e(f'v_mov_b32 v100, s90\nv_mov_b32 v101, s93\nv_mov_b32 v102, s94\nv_mov_b32 v103, s{sSPIN}\nbuffer_store_dwordx4 v[100:103], off, {WSR}, s97')
        self.tick_dump(11, 2, 100, 78)
        self.stamp(7, (100,))

    def build(self):
        e = self.e
        self.prologue()
        self.ln(); self.stamp(1)
        self.qkv(); self.ffn1(); self.tailphase()
        self.chain()
        e.label('L_END')
        e('s_endpgm')
        if self.o.get('drop'):
            out_ = []; on = False
            for l in e.lines:
                if l == 'L_ok2:': on = True
                if l.startswith('s_cbranch_scc1 L_CEND'): on = False
                d = self.o['drop']
                if on and ((d & 1 and l.startswith('buffer_load_dwordx4')) or (d & 2 and l.startswith('buffer_store') and 'sc1' in l and 's70' not in l) or (d & 4 and l.startswith('buffer_load_dword v20')) or (d & 8 and l.startswith('ds_read_b128') and 'v9 ' in l) or (d & 16 and l.startswith('buffer_load_dword v21'))): l = 's_nop 0'
                out_.append(l)
            e.lines = out_
        body = fix_hazards(e.lines)
        hdr = open('recurrent_scan__memory_aug_recurrent_mem_tr__glu_gated_reglu__prompt.s.ref').read().split('\n')
        top = [l for l in hdr if l.startswith(';') and '@launch' not in l and not l.startswith('; Override') and not l.startswith('; grid=')]
        out = top + ['; @launch grid=(256,1,1) block=(256,1,1) lds=163840', '.amdgcn_target "amdgcn-amd-amdhsa--gfx950"', '.text', f'.globl {KNAME}', '.p2align 8', f'.type {KNAME},@function', f'{KNAME}:']
        out += body
        out += ['.section .rodata,"a"', '.p2align 6', f'.amdhsa_kernel {KNAME}', '  .amdhsa_next_free_vgpr 512', '  .amdhsa_next_free_sgpr 102', '  .amdhsa_accum_offset 256',
                '  .amdhsa_group_segment_fixed_size 0', '  .amdhsa_kernarg_size 112', '  .amdhsa_user_sgpr_count 2', '  .amdhsa_user_sgpr_kernarg_segment_ptr 1',
                '  .amdhsa_system_sgpr_workgroup_id_x 1', '  .amdhsa_float_denorm_mode_32 3', '.end_amdhsa_kernel', '']
        return '\n'.join(out)

if __name__ == '__main__':
    import json
    dev = 'dev' in sys.argv[2:]
    opts = {}
    for a_ in sys.argv[2:]:
        if '=' in a_:
            k, x = a_.split('='); opts[k] = int(x)
    open(sys.argv[1], 'w').write(Gen(dev, opts).build())
```

```python
import sys, math
sys.path.insert(0, 'gen')
from asmlib import *

KNAME = 'recurrent_scan__memory_aug_recurrent_mem_tr__glu_gated_reglu__prompt_kernel'
XN   = 0x0000000
FLG  = 0x0200000
F_KVX, F_OFL, F_HFL, F_PROG = FLG, FLG + 0x8000, FLG + 0x10000, FLG + 0x14000
H1   = 0x0300000
H2   = 0x0380000
STP  = 0x0390000
DUM  = 0x0500000
KV   = 0x1000000
KVM  = 0x3040000
OO   = 0x4100000
HH   = 0x5100000
WS_BYTES = 0x10000000
SENT = 0xFFBFFFBF
CSC = (128 ** -0.5) * math.log2(math.e)
import struct
def fbits(x): return struct.unpack('<I', struct.pack('<f', x))[0]

sX, sMEM, sWQ, sWK, sWV, sWO, sWG, sWU, sWD, sOUT, sDBG, sWS = 4, 6, 8, 10, 12, 14, 20, 22, 24, 26, 28, 30
sW, sXCC, sJ = 32, 33, 34
SRD_WS, SRD_A, SRD_B, SRD_X = 36, 40, 44, 48
sPLO, sPHI = 52, 53
sSPIN = 35
WSR = s(SRD_WS, 4)

class Gen:
    def __init__(self, dev=False, opts=None):
        self.e = Emitter(); self.dev = dev; self.o = opts or {}
        self.uid = 0
    def lab(self, p):
        self.uid += 1; return f'L_{p}_{self.uid}'
    def srd(self, d, ptr, nbytes):
        e = self.e
        e(f's_mov_b32 s{d}, s{ptr}\ns_and_b32 s{d+1}, s{ptr+1}, 0xffff\ns_mov_b32 s{d+2}, {nbytes:#x}\ns_mov_b32 s{d+3}, 0x20000')
    def stamp(self, idx, vt=(112,)):
        if not self.dev: return
        e = self.e; t = vt[0]
        sv = (list(e.dsq), list(e.vmq))
        e.raw('s_memrealtime s[96:97]')
        e.raw('s_waitcnt lgkmcnt(0)')
        e.raw(f's_lshl_b32 s97, s98, 8')
        e.raw(f's_lshl_b32 s99, s{sW}, 6')
        e.raw(f's_add_u32 s97, s97, s99')
        e.raw(f's_add_u32 s97, s97, {STP + idx*4}')
        e.raw(f'v_mov_b32 v{t}, s96')
        e.raw(f'buffer_store_dword v{t}, off, {WSR}, s97')
        e.raw('s_waitcnt vmcnt(0)')
        e.reset()
    def dstamp(self, idx, vt, inv=False):
        if not self.o.get('dbg'): return
        e = self.e
        L = self.lab('ds')
        e.raw(f's_cmp_lg_u32 s{sW}, 0'); e.raw(f's_cbranch_scc1 {L}')
        e.raw('s_memrealtime s[96:97]'); e.raw('s_waitcnt lgkmcnt(0)')
        if inv: e.raw('s_not_b32 s96, s96')
        e.raw(f'v_mov_b32 v{vt}, {4*idx}'); e.raw(f'v_mov_b32 v{vt+1}, s96'); e.raw('s_mov_b64 exec, 1')
        e.raw(f'global_atomic_umax v{vt}, v{vt+1}, {s(sDBG,2)}'); e.raw('s_mov_b64 exec, -1')
        e.label(L); e.raw('s_waitcnt lgkmcnt(0)'); e.dsq = []
    def stamp2(self, idx):
        if self.dev: self.e.raw(f's_memrealtime s[{4+2*idx}:{5+2*idx}]')
    def tick(self, k, base=76):
        if not self.dev or not self.o.get('tick'): return
        e = self.e
        e.raw('s_memtime s[90:91]'); e.raw('s_waitcnt lgkmcnt(0)'); e.dsq = []
        if k is not None:
            e.raw('s_sub_u32 s91, s90, s88'); e.raw(f's_add_u32 s{base+k}, s{base+k}, s91')
        e.raw('s_mov_b32 s88, s90')
    def tick_init(self, n, base=76):
        if not self.dev or not self.o.get('tick'): return
        for k in range(n): self.e.raw(f's_mov_b32 s{base+k}, 0')
    def tick_dump(self, n, slot, vt, base=76):
        if not self.dev or not self.o.get('tick'): return
        e = self.e
        e.raw(f's_lshl_b32 s97, s98, 8'); e.raw(f's_lshl_b32 s99, s{sW}, 6'); e.raw('s_add_u32 s97, s97, s99')
        e.raw(f's_add_u32 s97, s97, {STP + 0x10000*(slot+1)}')
        for k in range(n):
            e.raw(f'v_mov_b32 v{vt}, s{base+k}'); e.raw(f'buffer_store_dword v{vt}, off, {WSR}, s97 offset:{4*k}')
        e.raw('s_waitcnt vmcnt(0)'); e.vmq = []
    def ct(self, tag):
        if not (self.dev and self.o.get('tick')): return
        z = tag.split('.')[0]
        if z != '*' and str(self.o.get('zoom', 0)) not in z: return
        k = len(self.cts); self.cts.append(tag); assert k < 11
        self.e.raw(f's_memtime s[{4+2*k}:{5+2*k}]')
    def ct_last(self):
        if self.dev and self.o.get('tick'): self.e.raw('s_memtime s[26:27]')
    def ct_init(self):
        self.cts = []
        if self.dev and self.o.get('tick'):
            for k in range(11): self.e.raw(f's_mov_b32 s{78+k}, 0')
            self.ct_last()
    def ct_cost(self):
        return 8 * len(self.cts)
    def ct_acc(self):
        if not (self.dev and self.o.get('tick')): return
        e = self.e
        for k in range(len(self.cts)):
            p = 26 if k == 0 else 4 + 2 * (k - 1)
            e.raw(f's_sub_u32 s91, s{4+2*k}, s{p}'); e.raw(f's_add_u32 s{78+k}, s{78+k}, s91')
        sys.stderr.write('stamps: %s\n' % self.cts)
    def spin_check(self, fail='L_END', lim=1 << 17):
        e = self.e
        e(f's_add_u32 s{sSPIN}, s{sSPIN}, 1\ns_cmp_gt_u32 s{sSPIN}, {lim}\ns_cbranch_scc1 {fail}')
    def wait_counter(self, off, target, vt):
        e = self.e; L = self.lab('wc'); D = self.lab('wcd')
        e(f'v_mov_b32 v{vt}, {off}')
        e.label(L)
        e(f'global_load_dword v{vt+1}, v{vt}, {s(sDBG,2)} sc1')
        e('s_waitcnt vmcnt(0)')
        e(f'v_readfirstlane_b32 s54, v{vt+1}')
        e(f's_cmp_ge_u32 s54, {target}\ns_cbranch_scc1 {D}')
        self.spin_check()
        e(f's_sleep 2\ns_branch {L}')
        e.label(D)
    def wait_flags(self, voff, soff, vt, thr=None):
        e = self.e; L = self.lab('wf'); D = self.lab('wfd')
        e.label(L)
        e(f'buffer_load_dword v{vt}, v{voff}, {WSR}, {soff} offen sc1')
        e('s_waitcnt vmcnt(0)')
        if thr is None: e(f'v_cmp_eq_u32 vcc, 0, v{vt}')
        else: e(f'v_cmp_ge_u32 vcc, {thr}, v{vt}')
        e(f's_cbranch_vccz {D}')
        self.spin_check()
        e(f's_sleep 2\ns_branch {L}')
        e.label(D)
    def red_g(self, op, x, t):
        e = self.e
        e(f'v_mov_b32 v{t}, v{x}\nv_permlane16_swap_b32 v{x}, v{t}\n{op} v{x}, v{x}, v{t}')
        e(f'v_mov_b32 v{t}, v{x}\nv_permlane32_swap_b32 v{x}, v{t}\n{op} v{x}, v{x}, v{t}')
    def rbf(self, d, x):
        self.e(f'v_cvt_pk_bf16_f32 v{d}, v{x}, v{x}\nv_lshlrev_b32 v{d}, 16, v{d}')

    def prologue(self):
        e = self.e
        e('s_cmp_ge_u32 s2, 256\ns_cbranch_scc1 L_END')
        e('s_load_dwordx16 s[4:19], s[0:1], 0\ns_load_dwordx8 s[20:27], s[0:1], 64\ns_load_dwordx4 s[28:31], s[0:1], 96')
        e(f's_getreg_b32 s{sXCC}, hwreg(HW_REG_XCC_ID)\ns_and_b32 s{sXCC}, s{sXCC}, 7')
        e(f'v_lshrrev_b32 v1, 6, v0\nv_readfirstlane_b32 s{sW}, v1\nv_and_b32 v0, 63, v0')
        e(f's_mov_b32 s{sSPIN}, 0\ns_mov_b32 s{sPLO}, 0x05040100\ns_mov_b32 s{sPHI}, 0x07060302')
        e('s_waitcnt lgkmcnt(0)')
        self.srd(SRD_WS, sWS, WS_BYTES)
        if self.o.get('dbg'):
            e(f's_cmp_lg_u32 s{sXCC}, 0\ns_cbranch_scc1 L_nod'); self.dstamp(2, 6, True); e.label('L_nod')
        e(f's_cmp_lg_u32 s{sW}, 0\ns_cbranch_scc1 L_notick')
        e(f's_lshl_b32 s54, s{sXCC}, 2\ns_add_u32 s54, s54, 128\ns_cmp_eq_u32 s{sXCC}, 0\ns_cselect_b32 s54, 0, s54')
        e(f'v_mov_b32 v2, s54\nv_mov_b32 v3, 1\nv_mov_b32 v5, 0\ns_mov_b64 exec, 1')
        e(f'global_atomic_add v4, v2, v3, {s(sDBG,2)} sc0\ns_waitcnt vmcnt(0)\nds_write_b32 v5, v4\ns_waitcnt lgkmcnt(0)\ns_mov_b64 exec, -1')
        e.label('L_notick')
        e('s_barrier\nv_mov_b32 v5, 0\nds_read_b32 v4, v5\ns_waitcnt lgkmcnt(0)')
        e(f'v_readfirstlane_b32 s{sJ}, v4')
        e('s_barrier')
        e(f's_cmp_ge_u32 s{sJ}, 32\ns_cbranch_scc1 L_END')
        if self.dev:
            e(f's_lshl_b32 s98, s{sXCC}, 5\ns_add_u32 s98, s98, s{sJ}')
            self.stamp(0)
        e(f's_cmp_eq_u32 s{sXCC}, 0\ns_cbranch_scc1 L_CHAIN')
        e(f's_sub_u32 s54, s{sXCC}, 1\ns_lshl_b32 s54, s54, 5\ns_add_u32 s{sJ}, s{sJ}, s54')

    def load_pairs(self, groups, tmp, depth, vA, vB, post=None):
        e = self.e
        n = len(groups[0][1]); T = tmp + depth * 2 * n
        def issue(k):
            srd, ents = groups[k][0], groups[k][1]
            b = tmp + (k % depth) * 2 * n
            for i, (so, _, _) in enumerate(ents):
                e(so)
                e(f'buffer_load_dword v{b+2*i}, v{vA}, {s(srd,4)}, s54 offen')
                e(f'buffer_load_dword v{b+2*i+1}, v{vB}, {s(srd,4)}, s54 offen')
        def finish(k):
            ents = groups[k][1]
            b = tmp + (k % depth) * 2 * n
            for i, (_, dE, dO) in enumerate(ents):
                for d, sel, tt in ((dE, sPLO, T), (dO, sPHI, T + 1)):
                    if d < 256: e(f'v_perm_b32 v{d}, v{b+2*i+1}, v{b+2*i}, s{sel}')
                    else: e(f'v_perm_b32 v{tt}, v{b+2*i+1}, v{b+2*i}, s{sel}\nv_accvgpr_write_b32 a{d-256}, v{tt}')
            if len(groups[k]) > 2 and groups[k][2]: groups[k][2]()
        for k in range(len(groups) + depth - 1):
            if k < len(groups): issue(k)
            if k - (depth - 1) >= 0: finish(k - (depth - 1))
            if post and k == depth - 1: post()

    def touch_qkv(self):
        e = self.e
        e(f'v_lshrrev_b32 v120, 1, v0\nv_lshlrev_b32 v120, 13, v120\nv_and_b32 v121, 1, v0\nv_lshlrev_b32 v121, 7, v121')
        e(f's_lshl_b32 s55, s62, 8\ns_sub_u32 s56, s63, 3\ns_lshl_b32 s56, s56, 2\ns_add_u32 s56, s56, s{sW}\ns_lshl_b32 s56, s56, 18\ns_add_u32 s55, s55, s56\nv_add3_u32 v120, v120, v121, s55')
        for ptr in (sWK, sWV, sWQ):
            self.srd(SRD_A, ptr, 1 << 22)
            e(f'buffer_load_dword v121, v120, {s(SRD_A,4)}, 0 offen')
    def ln(self):
        e = self.e
        sLN = 61
        e(f's_mul_i32 s62, s{sJ}, 9363\ns_lshr_b32 s62, s62, 16\ns_mul_i32 s54, s62, 7\ns_sub_u32 s63, s{sJ}, s54')
        e(f's_cmp_lt_u32 s63, 3\ns_cbranch_scc1 L_skipln')
        e(f's_lshl_b32 s{sLN}, s62, 2\ns_add_u32 s{sLN}, s{sLN}, s63\ns_sub_u32 s{sLN}, s{sLN}, 3')
        self.srd(SRD_X, sX, 2048 * 1024)
        e(f'v_lshlrev_b32 v1, 4, v0')
        e(f's_lshl_b32 s54, s{sLN}, 14\ns_lshl_b32 s55, s{sW}, 12\ns_add_u32 s54, s54, s55')
        for r in range(4):
            e(f'buffer_load_dwordx4 {v(16+4*r,4)}, v1, {s(SRD_X,4)}, s54 offen offset:{1024*r}')
        if self.o.get('touch', 1): self.touch_qkv()
        e(f'v_lshlrev_b32 v2, 2, v0\nv_mov_b32 v3, 0')
        e(f's_lshl_b32 s55, s{sLN}, 10\ns_lshl_b32 s56, s{sW}, 8\ns_add_u32 s55, s55, s56\ns_add_u32 s55, s55, {FLG}')
        e(f'buffer_store_dword v3, v2, {WSR}, s55 offen sc1')
        F = lambda r, i: 32 + 8 * r + i
        Dv = lambda r, i: 64 + 8 * r + i
        SM, VR, T = 96, 100, 104
        e(f's_mov_b32 s56, 0xffff0000\ns_mov_b32 s57, {fbits(1.0/512):#x}\ns_mov_b32 s58, {fbits(1e-5):#x}')
        for r in range(4):
            for i in range(4):
                e(f'v_lshlrev_b32 v{F(r,2*i)}, 16, v{16+4*r+i}\nv_and_b32 v{F(r,2*i+1)}, s56, v{16+4*r+i}')
        def red64(base):
            for sh in (1, 2, 4, 8):
                for r in range(4):
                    e(f'v_add_f32_dpp v{base+r}, v{base+r}, v{base+r} row_ror:{sh} row_mask:0xf bank_mask:0xf')
            for sw in ('16', '32'):
                for r in range(4): e(f'v_mov_b32 v{T+r}, v{base+r}')
                for r in range(4): e(f'v_permlane{sw}_swap_b32 v{base+r}, v{T+r}')
                for r in range(4): e(f'v_add_f32 v{base+r}, v{base+r}, v{T+r}')
        for r in range(4): e(f'v_add_f32 v{SM+r}, v{F(r,0)}, v{F(r,1)}')
        for i in range(2, 8):
            for r in range(4): e(f'v_add_f32 v{SM+r}, v{SM+r}, v{F(r,i)}')
        red64(SM)
        for r in range(4): e(f'v_mul_f32 v{SM+r}, s57, v{SM+r}')
        for r in range(4):
            for i in range(8): e(f'v_sub_f32 v{Dv(r,i)}, v{F(r,i)}, v{SM+r}')
        for r in range(4): e(f'v_mul_f32 v{VR+r}, v{Dv(r,0)}, v{Dv(r,0)}')
        for i in range(1, 8):
            for r in range(4): e(f'v_fmac_f32 v{VR+r}, v{Dv(r,i)}, v{Dv(r,i)}')
        red64(VR)
        for r in range(4):
            e(f'v_mul_f32 v{VR+r}, s57, v{VR+r}')
            self.rbf(VR + r, VR + r); self.rbf(SM + r, SM + r)
            e(f'v_add_f32 v{VR+r}, s58, v{VR+r}')
            self.rbf(VR + r, VR + r)
            e(f'v_sqrt_f32 v{VR+r}, v{VR+r}')
            self.rbf(VR + r, VR + r)
            e(f'v_rcp_f32 v{T+r}, v{VR+r}')
        for r in range(4):
            for i in range(8): e(f'v_sub_f32 v{F(r,i)}, v{F(r,i)}, v{SM+r}')
            for i in range(4):
                e(f'v_cvt_pk_bf16_f32 v108, v{F(r,2*i)}, v{F(r,2*i+1)}')
                e(f'v_lshlrev_b32 v{F(r,2*i)}, 16, v108\nv_and_b32 v{F(r,2*i+1)}, s56, v108')
            for i in range(8): e(f'v_mul_f32 v{Dv(r,i)}, v{F(r,i)}, v{T+r}')
            for i in range(8): e(f'v_fma_f32 v{F(r,i)}, -v{Dv(r,i)}, v{VR+r}, v{F(r,i)}')
            for i in range(8): e(f'v_fmac_f32 v{Dv(r,i)}, v{F(r,i)}, v{T+r}')
            for i in range(4): e(f'v_cvt_pk_bf16_f32 v{16+4*r+i}, v{Dv(r,2*i)}, v{Dv(r,2*i+1)}')
        e(f'v_lshlrev_b32 v2, 8, v0\ns_lshl_b32 s55, s{sW}, 6\nv_add_u32 v2, s55, v2')
        for r in range(4): e(f'ds_write_b128 v2, {v(16+4*r,4)} offset:{16*r}')
        e('s_waitcnt lgkmcnt(0)\ns_barrier')
        e(f's_lshl_b32 s55, s{sW}, 12\nv_add_u32 v2, s55, v1')
        for r in range(4): e(f'ds_read_b128 {v(16+4*r,4)}, v2 offset:{1024*r}')
        for r in range(4): e(f'buffer_store_dwordx4 {v(16+4*r,4)}, v1, {WSR}, s54 offen offset:{1024*r} sc1')
        e('s_waitcnt vmcnt(0)\ns_barrier')
        e(f's_cmp_lg_u32 s{sW}, 0\ns_cbranch_scc1 L_noln')
        e(f'v_mov_b32 v2, 192\nv_mov_b32 v3, 1\ns_mov_b64 exec, 1\nglobal_atomic_add v2, v3, {s(sDBG,2)}\ns_mov_b64 exec, -1')
        e('s_branch L_noln')
        e.label('L_skipln')
        e.label('L_noln')
        e.reset(); e('s_waitcnt vmcnt(0)')

    def row_loop(self, name, sT, step, mf, nacc_desc, epilogue, flagoff):
        e = self.e
        PF, FR = 80, 64
        sSO, sBUF, sPREV = 56, 57, 58
        def pf_issue():
            e(f's_lshl_b32 s{sSO}, s61, 15\ns_lshl_b32 s55, s{sW}, 13\ns_add_u32 s{sSO}, s{sSO}, s55')
            e(f's_add_u32 s55, s{sSO}, 4096')
            for i in range(8):
                e(f'buffer_load_dwordx4 {v(PF+4*i,4)}, v1, {WSR}, s{sSO if i < 4 else 55} offen offset:{1024*(i%4)} sc1')
        e(f'v_lshlrev_b32 v1, 4, v0\ns_lshl_b32 s55, s{sW}, 13\nv_add_u32 v2, s55, v1\nv_mov_b32 v3, v1\nv_mov_b32 v4, 1')
        e(f's_lshl_b32 s{sPREV}, s{sJ}, 2\ns_add_u32 s{sPREV}, s{sPREV}, s{sW}\ns_lshl_b32 s{sPREV}, s{sPREV}, 7\ns_add_u32 s{sPREV}, s{sPREV}, {DUM}')
        e(f's_mov_b32 s61, s{sT}')
        pf_issue()
        nst = self._nst
        e('s_mov_b64 exec, 1')
        for _ in range(nst): e(f'buffer_store_dword v4, off, {WSR}, s{sPREV}')
        e('s_mov_b64 exec, -1')
        e('s_barrier')
        self.tick_init(6); self.tick(None)
        L = f'L_{name}_loop'
        e.label(L)
        q0 = list(e.vmq)
        for i in range(8): e(f'ds_write_b128 v2, {v(PF+4*i,4)} offset:{1024*i}')
        e(f's_add_u32 s61, s{sT}, {step}\ns_min_u32 s61, s61, 63')
        e('s_waitcnt lgkmcnt(0)')
        self.tick(0)
        pf_issue()
        self.tick(1)
        e('s_barrier')
        self.tick(2)
        rd = lambda k: (e(f'ds_read_b128 {v(FR+8*(k%2),4)}, v3 offset:{1024*k}'), e(f'ds_read_b128 {v(FR+8*(k%2)+4,4)}, v3 offset:{16384+1024*k}'))
        rd(0)
        for k in range(16):
            if k < 15: rd(k + 1)
            mf(k, FR + 8 * (k % 2), FR + 8 * (k % 2) + 4)
            if k == 7:
                e('s_waitcnt vmcnt(8)')
                e(f's_mov_b64 exec, 1\nbuffer_store_dword v4, off, {WSR}, s{sPREV} sc1\ns_mov_b64 exec, -1')
        e('v_xor_b32 v2, 0x8000, v2\nv_xor_b32 v3, 0x8000, v3')
        self.tick(3)
        flagoff(sPREV)
        epilogue()
        e('s_waitcnt lgkmcnt(0)')
        self.tick(5)
        assert len(e.vmq) == len(q0), (len(e.vmq), len(q0))
        e(f's_add_u32 s{sT}, s{sT}, {step}\ns_cmp_lt_u32 s{sT}, 64\ns_cbranch_scc1 {L}')
        e('s_waitcnt vmcnt(0)')
        e(f's_mov_b64 exec, 1\nbuffer_store_dword v4, off, {WSR}, s{sPREV} sc1\ns_mov_b64 exec, -1')
        e('s_barrier')
        e.reset(vmq=[set()])
        self.tick_dump(6, 0 if name == 'qkv' else 1, 112)

    def qkv(self):
        e = self.e
        sH, sSUB, sT, sQ = 62, 63, 64, 65
        e(f's_mul_i32 s{sH}, s{sJ}, 9363\ns_lshr_b32 s{sH}, s{sH}, 16\ns_mul_i32 s54, s{sH}, 7\ns_sub_u32 s{sSUB}, s{sJ}, s54')
        self.srd(SRD_A, sWK, 1 << 22); self.srd(SRD_B, sWV, 1 << 22); self.srd(SRD_X, sWQ, 1 << 22)
        e(f'v_lshrrev_b32 v1, 4, v0\nv_lshlrev_b32 v1, 16, v1\nv_and_b32 v2, 15, v0\nv_lshlrev_b32 v2, 2, v2')
        e(f's_lshl_b32 s54, s{sH}, 8\ns_lshl_b32 s55, s{sW}, 6\ns_add_u32 s54, s54, s55\nv_add3_u32 v1, v1, v2, s54\nv_add_u32 v2, 8192, v1')
        W = lambda m, p, k: [256, 384, 128][m] + (k * 2 + p) * 4
        groups = []
        for m, srd in ((0, SRD_A), (1, SRD_B), (2, SRD_X)):
            for k2 in range(8):
                ents = []
                for k in (2 * k2, 2 * k2 + 1):
                    for i in range(4):
                        ents.append((f's_mov_b32 s54, {(32*k + 2*i) * 8192}', W(m, 0, k) + i, W(m, 1, k) + i))
                groups.append((srd, ents))
        self.load_pairs(groups, 16, 3, 1, 2)
        self.stamp(2)
        self.wait_counter(192, 128, 8)
        self.stamp(3)
        self.dstamp(8, 112)
        ACC = lambda m, p, t: 16 + ((m * 2 + p) * 2 + t) * 4
        def mf(k, X0, X1):
            for m in (0, 1, 2):
                for p in (0, 1):
                    for t, X in ((0, X0), (1, X1)):
                        d = v(ACC(m, p, t), 4); c = '0' if k == 0 else d
                        if m == 1: e(f'v_mfma_f32_16x16x32_bf16 {d}, {v(X,4)}, {R(W(m,p,k),4)}, {c}')
                        else: e(f'v_mfma_f32_16x16x32_bf16 {d}, {R(W(m,p,k),4)}, {v(X,4)}, {c}')
        def flagoff(sd):
            e(f's_lshl_b32 s{sd}, s{sH}, 10\ns_lshl_b32 s55, s{sW}, 8\ns_add_u32 s{sd}, s{sd}, s55\ns_lshl_b32 s55, s{sT}, 2\ns_add_u32 s{sd}, s{sd}, s55\ns_add_u32 s{sd}, s{sd}, {F_KVX}')
        def epi():
            e(f's_lshl_b32 s54, s{sT}, 19\ns_lshl_b32 s55, s{sH}, 14\ns_add_u32 s54, s54, s55\ns_lshl_b32 s55, s{sW}, 12\ns_add_u32 s54, s54, s55\ns_add_u32 s54, s54, {KV}')
            for t in (0, 1):
                o = 112 + 4 * t
                for i in range(4): e(f'v_cvt_pk_bf16_f32 v{o+i}, v{ACC(0,0,t)+i}, v{ACC(0,1,t)+i}')
                e(f'buffer_store_dwordx4 {v(o,4)}, v1, {WSR}, s54 offen offset:{1024*t} sc1')
            for p in (0, 1):
                o = 120 + 4 * p
                for t in (0, 1):
                    for hh in (0, 1): e(f'v_cvt_pk_bf16_f32 v{o+2*t+hh}, v{ACC(1,p,t)+2*hh}, v{ACC(1,p,t)+2*hh+1}')
                e(f'buffer_store_dwordx4 {v(o,4)}, v1, {WSR}, s54 offen offset:{2048+1024*p} sc1')
            for t in (0, 1):
                o = 64 + 4 * t
                for i in range(4): e(f'v_cvt_pk_bf16_f32 v{o+i}, v{ACC(2,0,t)+i}, v{ACC(2,1,t)+i}')
                e(f'ds_write_b128 v6, {v(o,4)} offset:{4096*t}')
            e('v_add_u32 v6, 8192, v6')
        e(f'v_lshlrev_b32 v6, 4, v0\ns_lshl_b32 s55, s{sW}, 10\ns_add_u32 s55, s55, 65536\nv_add_u32 v6, s55, v6')
        e(f's_mov_b32 s{sT}, s{sSUB}')
        self._nst = 5
        self.row_loop('qkv', sT, 7, mf, None, epi, flagoff)
        self.stamp(4)

    def ffn1(self):
        e = self.e
        sT, sPH = 64, 65
        e(f's_cmp_ge_u32 s{sJ}, 220\ns_cbranch_scc1 L_noffn')
        e(f's_mul_i32 s{sT}, s{sJ}, 5958\ns_lshr_b32 s{sT}, s{sT}, 16\ns_mul_i32 s54, s{sT}, 11\ns_sub_u32 s54, s{sJ}, s54')
        e(f's_lshl_b32 s{sPH}, s54, 2\ns_add_u32 s{sPH}, s{sPH}, s{sW}')
        self.srd(SRD_A, sWG, 512 * 2752); self.srd(SRD_B, sWU, 512 * 2752)
        e(f'v_lshrrev_b32 v1, 4, v0\nv_mul_u32_u24 v1, {8*2752}, v1\nv_and_b32 v2, 15, v0\nv_lshlrev_b32 v2, 2, v2')
        e(f's_lshl_b32 s54, s{sPH}, 6\nv_add3_u32 v1, v1, v2, s54\nv_add_u32 v2, 2752, v1')
        W = lambda m, p, k: 256 + m * 128 + (k * 2 + p) * 4
        groups = []
        for m, srd in ((0, SRD_A), (1, SRD_B)):
            for k2 in range(8):
                ents = []
                for k in (2 * k2, 2 * k2 + 1):
                    for i in range(4):
                        ents.append((f's_mov_b32 s54, {(32*k + 2*i) * 2752}', W(m, 0, k) + i, W(m, 1, k) + i))
                groups.append((srd, ents))
        self.load_pairs(groups, 16, 3, 1, 2)
        ACC = lambda m, p, t: 16 + ((m * 2 + p) * 2 + t) * 4
        def mf(k, X0, X1):
            for m in (0, 1):
                for p in (0, 1):
                    for t, X in ((0, X0), (1, X1)):
                        d = v(ACC(m, p, t), 4); c = '0' if k == 0 else d
                        e(f'v_mfma_f32_16x16x32_bf16 {d}, {R(W(m,p,k),4)}, {v(X,4)}, {c}')
        def flagoff(sd):
            e(f's_lshl_b32 s{sd}, s{sT}, 8\ns_lshl_b32 s55, s{sPH}, 2\ns_add_u32 s{sd}, s{sd}, s55\ns_add_u32 s{sd}, s{sd}, {F_HFL}')
        def epi():
            e(f's_mul_i32 s54, s{sT}, {2*44*1024}\ns_lshl_b32 s55, s{sPH}, 10\ns_add_u32 s54, s54, s55\ns_add_u32 s54, s54, {HH}\ns_add_u32 s55, s54, {44*1024}')
            e('s_mov_b32 s59, 0xffff0000')
            for t in (0, 1):
                o = 112 + 4 * t
                for i in range(4):
                    g0, g1, u0, u1 = ACC(0, 0, t) + i, ACC(0, 1, t) + i, ACC(1, 0, t) + i, ACC(1, 1, t) + i
                    e(f'v_cvt_pk_bf16_f32 v120, v{g0}, v{g1}\nv_cvt_pk_bf16_f32 v121, v{u0}, v{u1}')
                    e(f'v_lshlrev_b32 v{g0}, 16, v120\nv_and_b32 v{g1}, s59, v120\nv_lshlrev_b32 v{u0}, 16, v121\nv_and_b32 v{u1}, s59, v121')
                    e(f'v_max_f32 v{g0}, 0, v{g0}\nv_max_f32 v{g1}, 0, v{g1}')
                    e(f'v_mul_f32 v{g0}, v{g0}, v{u0}\nv_mul_f32 v{g1}, v{g1}, v{u1}')
                    e(f'v_cvt_pk_bf16_f32 v{o+i}, v{g0}, v{g1}')
                e(f'buffer_store_dwordx4 {v(o,4)}, v1, {WSR}, s{54+t} offen sc1')
        self._nst = 3
        self.row_loop('ffn', sT, 20, mf, None, epi, flagoff)
        e.label('L_noffn')
        e.reset(); e('s_waitcnt vmcnt(0)')
        self.stamp(5)

    def tailphase(self):
        e = self.e
        sH, sSUB = 62, 63
        sA, sF, sCS, sQT, sEH, sQL, sSC = 64, 65, 66, 67, 68, 69, 70
        MK = 72
        e(f's_lshr_b32 s{sF}, s{sJ}, 4\ns_and_b32 s{sCS}, s{sJ}, 15\ns_mov_b32 s{sA}, s{sSUB}')
        e(f's_lshr_b32 s{sQT}, s{sW}, 1\ns_and_b32 s{sEH}, s{sW}, 1')
        self.srd(SRD_A, sWO, 1 << 22); self.srd(SRD_B, sWD, 1376 * 1024)
        e(f'v_lshrrev_b32 v1, 4, v0\nv_lshlrev_b32 v1, 13, v1\nv_and_b32 v2, 15, v0\nv_lshlrev_b32 v2, 2, v2')
        e(f's_lshl_b32 s54, s{sCS}, 6\nv_add3_u32 v1, v1, v2, s54\nv_add_u32 v2, 1024, v1')
        e(f's_lshl_b32 s56, s{sW}, 20\ns_mul_i32 s57, s{sW}, {11*32*1024}')
        WO = lambda p, k: 256 + (k * 2 + p) * 4
        WD = lambda p, k: 168 + (k * 2 + p) * 4
        groups = []
        for k in range(11):
            groups.append((SRD_B, [(f's_add_u32 s54, s57, {(32*k + 2*i) * 1024}', WD(0, k) + i, WD(1, k) + i) for i in range(4)]))
        for k in range(32):
            groups.append((SRD_A, [(f's_add_u32 s54, s56, {(32*k + 2*i) * 1024}', WO(0, k) + i, WO(1, k) + i) for i in range(4)]))
        self.load_pairs(groups, 16, 7, 1, 2)
        self.srd(SRD_A, sOUT, 2048 * 1024); self.srd(SRD_X, sX, 2048 * 1024)
        L16, L8, ONE, QA, FO, FH, RW, RR, XO, PG = 1, 2, 3, 4, 5, 6, 7, 8, 9, 10
        e(f'v_lshlrev_b32 v{L16}, 4, v0\nv_lshlrev_b32 v{L8}, 3, v0\nv_mov_b32 v{ONE}, 1')
        e(f's_lshl_b32 s54, s{sQT}, 12\ns_add_u32 s54, s54, 65536\nv_add_u32 v{QA}, s54, v{L16}')
        e(f'v_and_b32 v11, 15, v0\nv_lshlrev_b32 v{FO}, 2, v0')
        e(f'v_min_u32 v{FH}, 10, v0\nv_lshlrev_b32 v{FH}, 2, v{FH}\ns_mul_i32 s54, s{sW}, 44\nv_add_u32 v{FH}, s54, v{FH}')
        e(f's_lshl_b32 s54, s{sW}, 12\nv_add_u32 v{RW}, s54, v{L16}')
        e(f'v_lshrrev_b32 v12, 4, v0\nv_bfe_u32 v13, v0, 2, 2\nv_and_b32 v14, 3, v0')
        e(f'v_lshlrev_b32 v13, 8, v13\nv_lshlrev_b32 v15, 4, v12\nv_lshlrev_b32 v14, 2, v14\nv_add3_u32 v{RR}, v13, v15, v14')
        e(f's_lshl_b32 s54, s{sW}, 6\nv_add_u32 v{RR}, s54, v{RR}')
        e(f'v_lshlrev_b32 v12, 10, v12\nv_lshlrev_b32 v13, 2, v11\ns_lshl_b32 s54, s{sW}, 12\ns_lshl_b32 s55, s{sCS}, 6\ns_add_u32 s54, s54, s55\nv_add3_u32 v{XO}, v12, v13, s54')
        e(f'v_and_b32 v{PG}, 3, v0\nv_lshlrev_b32 v{PG}, 2, v{PG}')
        KMA = 160
        e(f'v_lshrrev_b32 v12, 2, v11\nv_lshlrev_b32 v12, 7, v12\nv_and_b32 v13, 1, v11\nv_lshlrev_b32 v13, 6, v13\nv_and_b32 v14, 48, v0\nv_add3_u32 v{KMA}, v12, v13, v14')
        e(f's_lshl_b32 s54, s{sQT}, 4\nv_add_u32 v12, s54, v11\nv_lshrrev_b32 v13, 4, v0\nv_lshlrev_b32 v13, 2, v13\nv_sub_u32 v12, v12, v13')
        for tk in (0, 1):
            for i in range(4):
                e(f'v_cmp_le_i32 {s(MK+2*(4*tk+i),2)}, {16*tk+i}, v12')
        e(f's_mov_b32 s{sSC}, {fbits(CSC):#x}\ns_mov_b32 s71, 0xffff0000')
        self.stamp(6)
        self.dstamp(9, 112)
        XR = 11; AS, AF = 16, 24
        Q, V, S0, S1, MX = 32, 48, 64, 68, 161
        RING = 72; NR = 22
        K, KM, VM, SMm, PX, PM, OA = 72, 104, 120, 128, 132, 136, 140
        def prepA():
            L = self.lab('pa')
            e(f's_cmp_ge_u32 s{sA}, 64\ns_cbranch_scc1 {L}')
            e(f's_lshl_b32 s56, s{sA}, 19\ns_lshl_b32 s57, s{sH}, 14\ns_add_u32 s56, s56, s57\ns_add_u32 s56, s56, {KV}')
            e(f's_lshl_b32 s57, s{sEH}, 13\ns_add_u32 s57, s57, s56\ns_add_u32 s58, s57, 4096')
            for k in range(4):
                for tk in (0, 1):
                    e(f'buffer_load_dwordx4 {v(K+8*k+4*tk,4)}, v{L16}, {WSR}, s56 offen offset:{1024*tk} sc1')
                if k < 3: e('s_add_u32 s56, s56, 4096')
            for u in (0, 1):
                for p in (0, 1):
                    e(f'buffer_load_dwordx4 {v(V+8*u+4*p,4)}, v{L16}, {WSR}, s{57+u} offen offset:{2048+1024*p} sc1')
            for k in range(4): e(f'ds_read_b128 {v(Q+4*k,4)}, v{QA} offset:{1024*k}')
            for k in range(4):
                for tk, S_ in ((0, S0), (1, S1)):
                    e(f'v_mfma_f32_16x16x32_bf16 {v(S_,4)}, {v(K+8*k+4*tk,4)}, {v(Q+4*k,4)}, {"0" if k == 0 else v(S_,4)}')
            e(f'v_add_u32 v{QA}, 8192, v{QA}')
            e(f'v_mov_b32 v13, {fbits(-1e9*math.log2(math.e)):#x}')
            for tk, S_ in ((0, S0), (1, S1)):
                for i in range(4):
                    e(f'v_mul_f32 v{S_+i}, s{sSC}, v{S_+i}')
                    e(f'v_cndmask_b32 v{S_+i}, v13, v{S_+i}, {s(MK+2*(4*tk+i),2)}')
            e(f'v_max3_f32 v{MX}, v{S0}, v{S0+1}, v{S0+2}\nv_max3_f32 v{MX}, v{MX}, v{S0+3}, v{S1}\nv_max3_f32 v{MX}, v{MX}, v{S1+1}, v{S1+2}\nv_max_f32 v{MX}, v{MX}, v{S1+3}')
            e.label(L); e('s_waitcnt vmcnt(0) lgkmcnt(0)')
        def prepF():
            L = self.lab('pf')
            e(f's_cmp_ge_u32 s{sF}, 128\ns_cbranch_scc1 {L}')
            e(f's_lshl_b32 s56, s{sF}, 14')
            e(f'buffer_load_dword v{XR}, v{XO}, {s(SRD_X,4)}, s56 offen')
            e(f's_lshr_b32 s57, s{sF}, 1\ns_lshl_b32 s57, s57, 8\ns_add_u32 s57, s57, {F_HFL}')
            self.wait_flags(FH, 's57', 12)
            e.reset()
            e(f's_mul_i32 s57, s{sF}, {44*1024}\ns_mul_i32 s58, s{sW}, {11*1024}\ns_add_u32 s57, s57, s58\ns_add_u32 s57, s57, {HH}')
            for k in range(11):
                if k and k % 4 == 0: e('s_add_u32 s57, s57, 4096')
                e(f'buffer_load_dwordx4 {v(RING+4*k,4)}, v{L16}, {WSR}, s57 offen offset:{1024*(k%4)} sc1')
            for k in range(11):
                for p in (0, 1):
                    d = v(AF + 4 * p, 4)
                    e(f'v_mfma_f32_16x16x32_bf16 {d}, {R(WD(p,k),4)}, {v(RING+4*k,4)}, {"0" if k == 0 else d}')
            e.label(L); e('s_waitcnt vmcnt(0) lgkmcnt(0)')
        prepA(); prepF()
        e(f's_lshl_b32 s{sQL}, s{sH}, 7\ns_add_u32 s{sQL}, s{sQL}, {F_PROG}')
        DA = 162
        e(f'v_mov_b32 v{DA}, 32768')
        e.label('L_task')
        e.reset()
        e(f's_lshr_b32 s54, s{sF}, 1\ns_min_u32 s54, s54, s{sA}\ns_cmp_ge_u32 s54, 64\ns_cbranch_scc1 L_WEND')
        e(f's_cmp_lg_u32 s{sW}, 0\ns_cbranch_scc1 L_join')
        e(f's_min_u32 s57, s{sF}, 127\ns_lshl_b32 s57, s57, 8\ns_add_u32 s57, s57, {F_OFL}\ns_lshr_b32 s54, s{sF}, 1')
        e.label('L_poll')
        e(f'buffer_load_dword v12, v{PG}, {WSR}, s{sQL} offen sc1')
        e(f'buffer_load_dword v13, v{FO}, {WSR}, s57 offen sc1')
        e('s_waitcnt vmcnt(0)')
        e(f's_cmp_ge_u32 s{sA}, 64\ns_cbranch_scc1 L_noattn')
        e(f's_mov_b32 s56, 1\nv_cmp_ge_u32 vcc, s{sA}, v12\ns_cbranch_vccz L_dec')
        e(f's_cmp_le_u32 s{sA}, s54\ns_cbranch_scc1 L_idle')
        e(f's_cmp_lt_u32 s{sA}, {self.o.get("hfrom", 36)}\ns_cbranch_scc1 L_noattn')
        e(f'v_readfirstlane_b32 s55, v12\ns_add_u32 s55, s55, {self.o.get("hold", 0)}\ns_min_u32 s58, s{sA}, 61\ns_cmp_le_u32 s58, s55\ns_cbranch_scc1 L_idle')
        e.label('L_noattn')
        e(f's_mov_b32 s56, 0\ns_cmp_ge_u32 s{sF}, 128\ns_cbranch_scc1 L_dec')
        e(f's_mov_b32 s56, 2\nv_cmp_eq_u32 vcc, 0, v13\ns_cbranch_vccz L_dec')
        e.label('L_idle')
        e(f's_mov_b32 s56, 0\ns_add_u32 s{sSPIN}, s{sSPIN}, 1\ns_cmp_gt_u32 s{sSPIN}, {1 << 17}\ns_cbranch_scc1 L_dec')
        e(f's_sleep {self.o.get("slp", 2)}\ns_branch L_poll')
        e.label('L_dec')
        e(f'v_mov_b32 v12, s56\nds_write_b32 v{DA}, v12\ns_waitcnt lgkmcnt(0)')
        e.label('L_join')
        e(f's_barrier\nds_read_b32 v12, v{DA}\ns_waitcnt lgkmcnt(0)\nv_xor_b32 v{DA}, 4, v{DA}\nv_readfirstlane_b32 s56, v12')
        e('s_cmp_eq_u32 s56, 1\ns_cbranch_scc1 L_attn\ns_cmp_eq_u32 s56, 0\ns_cbranch_scc1 L_WEND')
        e.label('L_final')
        e.reset()
        self.stamp2(3)
        e(f's_lshl_b32 s57, s{sF}, 17\ns_lshl_b32 s58, s{sW}, 15\ns_add_u32 s57, s57, s58\ns_add_u32 s57, s57, {OO}')
        def old(k):
            if k and k % 4 == 0: e('s_add_u32 s57, s57, 4096')
            e(f'buffer_load_dwordx4 {v(RING+4*(k%NR),4)}, v{L16}, {WSR}, s57 offen offset:{1024*(k%4)} sc1')
        for k in range(NR): old(k)
        for k in range(32):
            for p in (0, 1):
                d = v(AS + 4 * p, 4)
                e(f'v_mfma_f32_16x16x32_bf16 {d}, {R(WO(p,k),4)}, {v(RING+4*(k%NR),4)}, {"0" if k == 0 else d}')
            if k + NR < 32: old(k + NR)
        self.stamp2(4)
        for q in range(4): e(f'ds_write_b128 v{RW}, {v(AS+4*q,4)} offset:{1024*q}')
        e('s_waitcnt lgkmcnt(0)\ns_barrier')
        self.stamp2(5)
        T = RING
        for w in range(4):
            for q in range(4): e(f'ds_read_b32 v{T+4*w+q}, v{RR} offset:{4096*w+1024*q}')
        e(f'v_xor_b32 v{RW}, 0x4000, v{RW}')
        for q in range(4): e(f'v_add_f32 v{T+q}, v{T+q}, v{T+4+q}')
        for q in range(4): e(f'v_add_f32 v{T+8+q}, v{T+8+q}, v{T+12+q}')
        e(f'v_xor_b32 v{RR}, 0x4000, v{RR}')
        for q in range(4): e(f'v_add_f32 v{T+q}, v{T+q}, v{T+8+q}')
        a0, a1, f0, f1, t0, t1, u0, u1 = range(T, T + 8)
        e(f'v_cvt_pk_bf16_f32 v{t0}, v{a0}, v{a1}\nv_cvt_pk_bf16_f32 v{t1}, v{f0}, v{f1}')
        e(f'v_lshlrev_b32 v{a0}, 16, v{t0}\nv_and_b32 v{a1}, s71, v{t0}\nv_lshlrev_b32 v{f0}, 16, v{t1}\nv_and_b32 v{f1}, s71, v{t1}')
        e(f's_mov_b32 s57, {fbits(-math.log2(math.e)):#x}\ns_lshl_b32 s56, s{sF}, 14')
        e(f'v_mul_f32 v{u0}, s57, v{f0}\nv_mul_f32 v{u1}, s57, v{f1}\nv_exp_f32 v{u0}, v{u0}\nv_exp_f32 v{u1}, v{u1}')
        e(f'v_add_f32 v{u0}, 1.0, v{u0}\nv_add_f32 v{u1}, 1.0, v{u1}\nv_rcp_f32 v{u0}, v{u0}\nv_rcp_f32 v{u1}, v{u1}')
        e(f'v_mul_f32 v{f0}, v{f0}, v{u0}\nv_mul_f32 v{f1}, v{f1}, v{u1}\nv_cvt_pk_bf16_f32 v{t1}, v{f0}, v{f1}')
        e(f'v_lshlrev_b32 v{f0}, 16, v{t1}\nv_and_b32 v{f1}, s71, v{t1}\nv_mul_f32 v{a0}, v{a0}, v{f0}\nv_mul_f32 v{a1}, v{a1}, v{f1}')
        e(f'v_cvt_pk_bf16_f32 v{t0}, v{a0}, v{a1}\nv_lshlrev_b32 v{a0}, 16, v{t0}\nv_and_b32 v{a1}, s71, v{t0}')
        e(f'v_lshlrev_b32 v{f0}, 16, v{XR}\nv_and_b32 v{f1}, s71, v{XR}\nv_add_f32 v{a0}, v{a0}, v{f0}\nv_add_f32 v{a1}, v{a1}, v{f1}')
        e(f'v_cvt_pk_bf16_f32 v{t0}, v{a0}, v{a1}')
        e(f'buffer_store_dword v{t0}, v{XO}, {s(SRD_A,4)}, s56 offen')
        e(f's_add_u32 s{sF}, s{sF}, 14')
        prepF()
        e('s_branch L_task')
        e.label('L_attn')
        e.reset()
        self.stamp2(0)
        e(f's_lshl_b32 s56, s{sA}, 18\ns_lshl_b32 s57, s{sH}, 13\ns_add_u32 s56, s56, s57\ns_add_u32 s56, s56, {KVM}')
        e(f's_add_u32 s57, s56, 4096\ns_lshl_b32 s58, s{sEH}, 12\ns_add_u32 s58, s58, s56')
        for k in range(4):
            e(f'buffer_load_dwordx4 {v(KM+4*k,4)}, v{KMA}, {WSR}, s{56+k//2} offen offset:{2048*(k%2)} sc1')
        for u in (0, 1):
            e(f'buffer_load_dwordx2 {v(VM+4*u,2)}, v{L8}, {WSR}, s58 offen offset:{2048*u+1024} sc1')
        e(f's_lshl_b32 s56, s{sA}, 1\ns_add_u32 s56, s56, s{sQT}\ns_lshl_b32 s57, s56, 17\ns_lshl_b32 s58, s{sH}, 12\ns_add_u32 s57, s57, s58')
        e(f's_lshl_b32 s58, s{sEH}, 11\ns_add_u32 s57, s57, s58\ns_add_u32 s57, s57, {OO}')
        e(f's_lshl_b32 s56, s56, 8\ns_lshl_b32 s58, s{sH}, 3\ns_add_u32 s56, s56, s58\ns_lshl_b32 s58, s{sEH}, 2\ns_add_u32 s56, s56, s58\ns_add_u32 s56, s56, {F_OFL}')
        e(f'v_mov_b32 v{PM+1}, 0')
        for k in range(4):
            e(f'v_mfma_f32_16x16x32_bf16 {v(SMm,4)}, {v(KM+4*k,4)}, {v(Q+4*k,4)}, {"0" if k == 0 else v(SMm,4)}')
        for u in (0, 1): e(f'v_mov_b32 v{VM+4*u+2}, v{VM+4*u+1}\nv_mov_b32 v{VM+4*u+3}, v{VM+4*u}')
        self.stamp2(1)
        e(f'v_mul_f32 v{SMm}, s{sSC}, v{SMm}\nv_mul_f32 v{SMm+1}, s{sSC}, v{SMm+1}\nv_max3_f32 v14, v{MX}, v{SMm}, v{SMm+1}')
        self.red_g('v_max_f32', 14, 15)
        vals = [S0 + i for i in range(4)] + [S1 + i for i in range(4)] + [SMm, SMm + 1]
        for x in vals: e(f'v_sub_f32 v{x}, v{x}, v14')
        for x in vals: e(f'v_exp_f32 v{x}, v{x}')
        e(f'v_add_f32 v14, v{vals[0]}, v{vals[1]}')
        for x in vals[2:]: e(f'v_add_f32 v14, v14, v{x}')
        self.red_g('v_add_f32', 14, 15)
        e('v_rcp_f32 v14, v14')
        for x in vals: e(f'v_mul_f32 v{x}, v{x}, v14')
        for tk, S_ in ((0, S0), (1, S1)):
            for hh in (0, 1): e(f'v_cvt_pk_bf16_f32 v{PX+2*tk+hh}, v{S_+2*hh}, v{S_+2*hh+1}')
        e(f'v_cvt_pk_bf16_f32 v{PM}, v{SMm}, v{SMm+1}')
        for u in (0, 1):
            for p in (0, 1):
                e(f'v_mfma_f32_16x16x32_bf16 {v(OA + 8 * u + 4 * p, 4)}, {v(V+8*u+4*p,4)}, {v(PX,4)}, 0')
        for u in (0, 1):
            for p in (0, 1):
                d = v(OA + 8 * u + 4 * p, 4)
                e(f'v_mfma_f32_16x16x16_bf16 {d}, {v(VM+4*u+2*p,2)}, {v(PM,2)}, {d}')
        for u in (0, 1):
            for i in range(4): e(f'v_cvt_pk_bf16_f32 v{KM+4*u+i}, v{OA+8*u+i}, v{OA+8*u+4+i}')
            e(f'buffer_store_dwordx4 {v(KM+4*u,4)}, v{L16}, {WSR}, s57 offen offset:{1024*u} sc1')
        self.stamp2(6)
        e('s_waitcnt vmcnt(0)')
        self.stamp2(2)
        e(f's_mov_b64 exec, 1\nbuffer_store_dword v{ONE}, off, {WSR}, s56 sc1\ns_mov_b64 exec, -1')
        e(f's_add_u32 s{sA}, s{sA}, 7')
        prepA()
        e('s_branch L_task')
        e.label('L_WEND')
        e.reset()
        self.dstamp(7, 112)
        self.stamp(7)
        if self.dev:
            for idx in range(7):
                e.raw(f'v_mov_b32 v112, s{4+2*idx}'); e.raw(f'buffer_store_dword v112, off, {WSR}, s97 offset:{4*(idx+1)}')
        e('s_branch L_END')

    def chain(self):
        e = self.e; o = self.o
        e.label('L_CHAIN'); e.reset()
        self.dstamp(3, 6)
        sH = sJ
        LW, LMEM, LTR, LZ = 0, 131072, 139264, 152064
        TRS = 1280
        L16, L8, IDX, H1S, H2S, MEMW, MEMR, WST, TRW, KTR, Q0R, Q1R, QQR, K2R, LN0, OW, OR_, PFA, PFL, FLGV, VMK = \
            0, 1, 2, 3, 4, 5, 6, 9, 10, 11, 12, 13, 14, 15, 16, 17, 18, 19, 20, 21, 22
        SEL, ONES, MEMA, ACK, ACQ, ACV, KX, VX, SX, SM_, ST = 24, 28, 32, 64, 72, 80, 88, 96, 104, 108, 112
        seq = []
        for m in 'qkv':
            for sl in (0, 1):
                for p in (0, 1): seq.append((m, sl, p))
        for m in 'qkv':
            for sl in range(2, 8):
                for p in (0, 1): seq.append((m, sl, p))
        for b in range(4): seq.append(('o', 0, b))
        for b in range(4):
            for sl in (1, 2, 3): seq.append(('o', sl, b))
        bA, bB, bC, bD = ST, ST + 8, KX, VX
        bE, bF, bG = MEMA + 8, MEMA + 16, MEMA + 24
        staged = {1: bC, 3: bD, 5: bA, 7: bB, 2: bE, 4: bF, 6: bG, 23: bA, 27: bB, 39: bA, 38: bB, 48: bB, 49: bA, 61: bD, 62: bA, 63: bB}
        slot = {n: i for i, n in enumerate(sorted(staged))}
        pool = list(range(256, 512, 8)) + list(range(128, 256, 8))
        home = {}; pos = {key: n for n, key in enumerate(seq)}
        gorder = [(m, sl) for m in 'kqv' for sl in (0, 2, 4, 6, 1, 3, 5, 7)]
        for key in [(m, sl, p) for m, sl in gorder for p in (0, 1)] + [k_ for k_ in seq if k_[0] == 'o']:
            home[key] = None if pos[key] in staged else pool.pop(0)
        assert not pool
        LN = 111
        G, C = 110, 109
        e(f'v_mov_b32 v{LN}, v0\nv_lshrrev_b32 v{G}, 4, v0\nv_and_b32 v{C}, 15, v0')
        e(f'v_lshlrev_b32 v{L8}, 3, v{LN}\nv_lshlrev_b32 v{L16}, 4, v{LN}')
        e(f's_lshl_b32 s54, s{sW}, 15\nv_add_u32 v{WST}, s54, v{L16}')
        sH1S, sH1S2, sH1L, sH2S, sH2L, sKV, sKVM, sT, sSEN, sSC, sPROG, sFL = 60, 61, 62, 63, 64, 65, 66, 67, 68, 69, 70, 71
        e(f's_mov_b32 s{sSEN}, {SENT:#x}\ns_mov_b32 s{sSC}, {fbits(CSC):#x}\ns_mov_b32 s58, 0')
        e(f's_lshl_b32 s54, s{sH}, 2\ns_add_u32 s54, s54, s{sW}\ns_lshl_b32 s{sH1L}, s54, 11\ns_add_u32 s{sH1L}, s{sH1L}, {H1}')
        e(f's_mov_b32 s{sH1S}, {H1}\ns_mov_b32 s{sH1S2}, {H1+4096}')
        for i in range(4): e(f'v_mov_b32 v{SX+i}, s{sSEN}')
        e(f's_xor_b32 s55, s{sH1L}, 0x40000')
        for sb in (sH1L, 55):
            for m in (0, 1): e(f'buffer_store_dwordx4 {v(SX,4)}, v{L16}, {WSR}, s{sb} offen offset:{1024*m}')
        e(f's_lshr_b32 s54, s{sH}, 3\ns_bfe_u32 s55, s{sH}, 0x20001\ns_and_b32 s56, s{sH}, 1')
        e(f's_lshr_b32 s59, s55, 1\ns_and_b32 s55, s55, 1')
        e(f's_lshl_b32 s57, s{sW}, 1\ns_add_u32 s57, s57, s56\ns_lshl_b32 s57, s57, 10\ns_lshl_b32 s58, s54, 8\ns_add_u32 s57, s57, s58\ns_lshl_b32 s58, s55, 7\ns_add_u32 s57, s57, s58\ns_lshl_b32 s58, s59, 5\ns_add_u32 s57, s57, s58')
        e(f'v_lshrrev_b32 v100, 1, v{G}\nv_lshlrev_b32 v100, 6, v100\nv_and_b32 v102, 1, v{G}\nv_lshlrev_b32 v102, 4, v102\nv_add_u32 v100, v100, v102')
        e(f'v_lshlrev_b32 v101, 2, v{C}\nv_add3_u32 v{H2S}, v100, v101, s57')
        e(f's_mov_b32 s{sH2S}, {H2}\ns_lshl_b32 s{sH2L}, s{sW}, 11\ns_add_u32 s{sH2L}, s{sH2L}, {H2}')
        self.srd(SRD_A, sMEM, 8192)
        e(f's_lshl_b32 s57, s55, 12\ns_lshl_b32 s58, s54, 8\ns_add_u32 s57, s57, s58\ns_lshl_b32 s58, s56, 7\ns_add_u32 s57, s57, s58\ns_lshl_b32 s58, s{sW}, 2\ns_add_u32 s57, s57, s58\ns_lshl_b32 s58, s59, 1\ns_add_u32 s57, s57, s58')
        e(f'v_lshlrev_b32 v100, 10, v{G}\nv_lshlrev_b32 v101, 5, v{C}\nv_add_u32 v100, v100, v101')
        e(f's_mov_b32 s72, 0x000f000f\ns_mov_b32 s73, 0x000f000f\ns_mov_b32 s74, 0x00ff00ff\ns_mov_b32 s75, 0x00ff00ff')
        e(f's_mov_b64 exec, s[72:73]')
        e(f'buffer_load_ushort v20, v100, {s(SRD_A,4)}, s57 offen\nbuffer_load_ushort v21, v100, {s(SRD_A,4)}, s57 offen offset:16')
        e(f's_xor_b32 s55, s{sH2S}, 0x2000')
        e(f'buffer_store_dword v{SX}, v{H2S}, {WSR}, s55 offen')
        e(f's_mov_b64 exec, -1')
        def pub0():
            e(f'v_lshl_or_b32 v20, v21, 16, v20\nv_mov_b32 v21, -1\nv_cmp_eq_u32 vcc, s{sSEN}, v20\nv_cndmask_b32 v20, v20, v21, vcc')
            e(f's_mov_b64 exec, s[72:73]\nbuffer_store_dword v20, v{H2S}, {WSR}, s{sH2S} offen\ns_mov_b64 exec, -1')
        self.srd(SRD_A, sWO, 1 << 22)
        e(f'v_lshlrev_b32 v100, 12, v{G}\nv_lshlrev_b32 v101, 4, v{C}')
        e(f's_lshl_b32 s54, s{sH}, 17\ns_lshl_b32 s55, s{sW}, 8\ns_add_u32 s54, s54, s55\nv_add3_u32 v100, v100, v101, s54')
        TB = 24
        def stage_write(key, regs):
            sl = slot[pos[key]]
            e(f'ds_write_b128 v{WST}, {v(regs,4)} offset:{sl*2048}\nds_write_b128 v{WST}, {v(regs+4,4)} offset:{sl*2048+1024}')
        def arrive():
            e('s_barrier')
            L = self.lab('arr')
            e(f's_cmp_lg_u32 s{sW}, 0\ns_cbranch_scc1 {L}')
            e.raw(f'v_mov_b32 v102, 4'); e.raw('v_mov_b32 v103, 1'); e.raw('s_mov_b64 exec, 1')
            e.raw(f'global_atomic_add v102, v103, {s(sDBG,2)}'); e.raw('s_mov_b64 exec, -1')
            e.label(L)
        for u in range(4):
            e(f's_add_u32 s{56+u}, s{sW}, {u}\ns_and_b32 s{56+u}, s{56+u}, 3\ns_lshl_b32 s{80+u}, s{56+u}, 14\ns_lshl_b32 s{56+u}, s{56+u}, 15')
        SRD_K = 84
        self.srd(SRD_K, sWK, 1 << 22); self.srd(SRD_B, sWQ, 1 << 22); self.srd(SRD_X, sWV, 1 << 22)
        PV_, BW, BR = 101, 104, 105
        e(f's_lshr_b32 s54, s{sW}, 1\ns_lshl_b32 s54, s54, 20\ns_and_b32 s55, s{sW}, 1\ns_lshl_b32 s89, s55, 18\ns_add_u32 s54, s54, s89\ns_lshl_b32 s89, s{sH}, 8\ns_add_u32 s54, s54, s89')
        e(f'v_lshlrev_b32 v102, 13, v{G}\nv_lshlrev_b32 v103, 4, v{C}\nv_add3_u32 v{PV_}, v102, v103, s54')
        e(f's_lshl_b32 s55, s55, 6\nv_xor_b32 v102, s55, v{L16}\ns_lshl_b32 s54, s{sW}, 12\ns_add_u32 s54, s54, {LMEM}\nv_add_u32 v{BW}, s54, v102')
        e(f'v_lshlrev_b32 v102, 2, v{C}\ns_lshl_b32 s54, s{sW}, 6\nv_add_u32 v102, s54, v102\nv_and_b32 v103, 1, v{G}\nv_lshlrev_b32 v103, 6, v103\nv_xor_b32 v102, v102, v103')
        e(f'v_lshlrev_b32 v103, 12, v{G}\nv_add_u32 v102, v102, v103')
        for u in range(4): e(f's_lshr_b32 s54, s{80+u}, 5\ns_add_u32 s54, s54, {LMEM}\nv_add_u32 v{BR+u}, s54, v102')
        RB, TT = 2, 102
        rbk = list(range(88, 100)) + [12, 13, 14, 15]
        def put(d, Y, X, sel):
            if d < 256: e(f'v_perm_b32 v{d}, v{Y}, v{X}, s{sel}')
            else: e(f'v_perm_b32 v{TT + (d & 1)}, v{Y}, v{X}, s{sel}\nv_accvgpr_write_b32 a{d-256}, v{TT + (d & 1)}')
        def wo_issue(sl, t0):
            for rp in range(4):
                row = 16 * (rp >> 1) + 2 * (rp & 1)
                e(f's_add_u32 s54, s{56+sl}, {row*1024}')
                e(f'buffer_load_dwordx4 {v(t0+8*rp,4)}, v100, {s(SRD_A,4)}, s54 offen')
                e(f'buffer_load_dwordx4 {v(t0+8*rp+4,4)}, v100, {s(SRD_A,4)}, s54 offen offset:1024')
        def wo_finish(sl, t0):
            for bb in range(4):
                key = ('o', sl, bb); d = home[key]; dd = ST + 8 * (bb & 1) if d is None else d
                for rho in range(8):
                    t_ = t0 + 8 * (rho >> 1)
                    put(dd + rho, t_ + 4 + bb, t_ + bb, sPHI if rho & 1 else sPLO)
                if d is None: stage_write(key, dd)
            e('s_waitcnt lgkmcnt(0)')
        corder = [(m, x, j) for m in 'kqv' for x in (0, 1) for j in range(4)]
        def pj_issue(k, t0):
            m, x, j = corder[k]; srd = {'k': SRD_K, 'q': SRD_B, 'v': SRD_X}[m]
            for i in range(4):
                row = 256 * (j >> 1) + 16 * (j & 1) + 64 * x + 4 * i
                e(f's_mov_b32 s54, {row*8192}')
                e(f'buffer_load_dwordx4 {R(t0+4*i,4)}, v{PV_}, {s(srd,4)}, s54 offen')
        def pj_finish(k, t0):
            m, x, j = corder[k]; bo = (k & 1) * 16384
            for i in range(4): e(f'ds_write_b128 v{BW}, {R(t0+4*i,4)} offset:{bo + 1024*i}')
            e('s_waitcnt lgkmcnt(0)\ns_barrier')
            for u in range(4):
                for hf in (0, 1):
                    e(f'ds_read2st64_b32 {v(rbk[4*u+2*hf],2)}, v{BR+u} offset0:{bo//256 + hf} offset1:{bo//256 + hf + 8}')
            for u in range(4):
                for p in (0, 1):
                    key = (m, 2 * u + x, p); d = home[key]; t_ = ST + 4 * u + 2 * p
                    for hf in (0, 1):
                        put(d + 2 * j + hf if d is not None else t_ + hf, rbk[4*u+2*hf] + 1, rbk[4*u+2*hf], sPHI if p else sPLO)
                    if d is None:
                        e(f'ds_write_b64 v{WST}, {v(t_,2)} offset:{slot[pos[key]]*2048 + 1024*(j>>1) + 8*(j&1)}')
        first_user = {}
        for k, (m, x, j) in enumerate(corder):
            for u in range(4):
                for p in (0, 1):
                    h_ = home[(m, 2 * u + x, p)]
                    if h_ is not None: first_user.setdefault(h_ & ~15, k)
        free = list(range(496, 255, -16))
        land = {}; nxt_g = [0]
        def pump(cap):
            while nxt_g[0] < 24 and len(e.vmq) + 4 <= cap:
                k = nxt_g[0]
                c_ = [b_ for b_ in free if first_user.get(b_, 99) >= k]
                if not c_: break
                b_ = min(c_, key=lambda x: first_user.get(x, 99)); free.remove(b_); land[k] = b_
                pj_issue(k, b_); nxt_g[0] += 1
        cap = o.get('cap', 12)
        e('s_movk_i32 s88, 0x80')
        e(f's_lshl_b32 s54, s{sH}, 10\ns_lshl_b32 s55, s{sW}, 8\ns_add_u32 s{sFL}, s54, s55\ns_add_u32 s{sFL}, s{sFL}, {F_KVX}')
        wo_issue(0, 24); wo_issue(1, 56)
        if cap >= 24: wo_issue(2, 128)
        pump(cap)
        pub0()
        wo_finish(0, 24)
        if cap < 24: wo_issue(2, 128)
        else: wo_issue(3, 24)
        pump(cap)
        wo_finish(1, 56); free += [56, 72]
        if cap < 24: wo_issue(3, 24)
        pump(cap)
        wo_finish(2, 128); free += [128, 144]; pump(cap)
        done3 = False
        for k in range(24):
            if not done3 and (k not in land or not any(('v', 24) in d_ or ('v', 55) in d_ for d_ in e.vmq) or ('v', 24) in e.vmq[0]):
                wo_finish(3, 24); free += [24, 40]; done3 = True; arrive(); pump(cap)
                if o.get('wst'): self.stamp2(4)
            pj_finish(k, land[k]); free.append(land[k]); pump(cap)
            if o.get('wst') and k in (7, 15): self.stamp2(5 if k == 7 else 6)
            if k == 9:
                e(f'v_mov_b32 v18, 0\nglobal_load_dword v16, v18, {s(sDBG,2)} offset:4 sc1\nglobal_load_dword v17, v18, {s(sDBG,2)} offset:192 sc1')
            if k == 18:
                e(f'v_cmp_gt_u32 vcc, 32, v16\nv_cmp_gt_u32 s[76:77], 0x80, v17'.replace('0x80', 's88'))
                e('s_or_b64 vcc, vcc, s[76:77]\ns_cbranch_vccz L_cok')
                q_ = (list(e.dsq), list(e.vmq))
                self.wait_counter(4, 32, 16); self.wait_counter(192, 128, 16)
                e.label('L_cok'); e.reset(*q_)
                e(f'buffer_load_dwordx2 v[22:23], off, {WSR}, s{sFL} sc1')
        assert done3
        e('s_waitcnt lgkmcnt(0)\ns_barrier')
        self.dstamp(4, 100)
        self.stamp(2, (100,))
        if self.dev and o.get('wst'):
            for idx in (4, 5, 6):
                e.raw(f'v_mov_b32 v100, s{4+2*idx}'); e.raw(f'buffer_store_dword v100, off, {WSR}, s97 offset:{4*(idx-2)}')
            e.raw('s_waitcnt vmcnt(0)')
        e(f'v_bfe_u32 v100, v{C}, 1, 1\nv_mov_b32 v101, 0x4444\nv_mov_b32 v102, 0xeeee\nv_cmp_eq_u32 vcc, 1, v100\nv_cndmask_b32 v{IDX}, v101, v102, vcc')
        e(f'v_cmp_lt_u32 vcc, 7, v{C}\nv_cndmask_b32 v101, v101, v102, vcc\nv_lshl_or_b32 v{IDX}, v101, 16, v{IDX}')
        e(f'v_lshlrev_b32 v101, 1, v{G}\nv_lshrrev_b32 v102, 3, v{C}\nv_add_u32 v101, v101, v102\nv_lshlrev_b32 v101, 13, v101')
        e(f'v_and_b32 v103, 7, v{C}\nv_lshlrev_b32 v104, 3, v103\ns_lshl_b32 s54, s{sW}, 16\ns_lshl_b32 s55, s{sH}, 6\ns_add_u32 s54, s54, s55\nv_add3_u32 v{H1S}, v101, v104, s54')
        e(f's_lshl_b32 s54, s{sW}, 11\ns_add_u32 s54, s54, {LMEM}\nv_add_u32 v{MEMW}, s54, v{L16}')
        for u in (1, 2, 3):
            e(f's_add_u32 s54, s{sW}, {u}\ns_and_b32 s54, s54, 3\ns_lshl_b32 s54, s54, 11\ns_add_u32 s54, s54, {LMEM}\nv_add_u32 v{MEMR+u-1}, s54, v{L16}')
        e(f's_mul_i32 s56, s{sW}, {TRS}\ns_add_u32 s56, s56, {LTR}')
        e(f'v_lshrrev_b32 v101, 2, v{C}\nv_mul_u32_u24 v101, 144, v101\nv_lshlrev_b32 v104, 5, v{G}\nv_and_b32 v105, 3, v{C}\nv_lshlrev_b32 v105, 2, v105')
        e(f'v_add3_u32 v101, v101, v104, v105\nv_add_u32 v{TRW}, s56, v101')
        e(f'v_lshrrev_b32 v101, 2, v{C}\nv_lshlrev_b32 v101, 1, v101\nv_and_b32 v104, 1, v{C}\nv_add_u32 v106, v101, v104')
        e(f'v_mul_u32_u24 v107, 144, v{G}\nv_lshlrev_b32 v101, 7, v{G}\nv_lshlrev_b32 v104, 2, v{C}\nv_add_u32 v{KTR}, v101, v104')
        e(f'v_lshlrev_b32 v101, 4, v103\ns_add_u32 s57, s56, 640\nv_add3_u32 v{QQR}, v107, v101, s57')
        e(f'v_mov_b32 v101, {LZ}\nv_cmp_eq_u32 vcc, 0, v102\nv_cndmask_b32 v{Q0R}, v101, v{QQR}, vcc\nv_cndmask_b32 v{Q1R}, v{QQR}, v101, vcc')
        e(f'v_mul_u32_u24 v101, {TRS}, v102\nv_lshlrev_b32 v104, 4, v103\nv_add3_u32 v101, v101, v104, v107\nv_add_u32 v{QQR}, {LTR+640}, v101')
        e(f'v_mul_u32_u24 v101, {TRS}, v100\nv_lshlrev_b32 v104, 4, v106\nv_add3_u32 v101, v101, v104, v107\nv_add_u32 v{K2R}, {LTR}, v101')
        e(f'v_lshlrev_b32 v101, 3, v{G}\nv_add_u32 v101, v101, v103')
        e(f'v_lshlrev_b32 v{PFA}, 7, v{LN}\nv_mov_b32 v101, {WS_BYTES:#x}\nv_cmp_lt_u32 vcc, 31, v{LN}\nv_cndmask_b32 v{PFA}, v{PFA}, v101, vcc')
        e(f'v_mov_b32 v101, 0x3f80\nv_mov_b32 v104, 0x3f800000\nv_mov_b32 v105, 0')
        for i in range(4):
            c0 = 4 * (2 * (i & 1)) + (i >> 1); c1 = c0 + 4
            e(f'v_cmp_eq_u32 vcc, {c0}, v{C}\nv_cndmask_b32 v{SEL+i}, v105, v101, vcc\nv_cmp_eq_u32 vcc, {c1}, v{C}\nv_cndmask_b32 v{SEL+i}, v{SEL+i}, v104, vcc')
        for i in range(4): e(f'v_mov_b32 v{ONES+i}, 0x3f803f80')
        for i in range(4): e(f'v_mov_b32 v{SX+i}, 0')
        e(f'v_mov_b32 v101, {LZ}\nds_write_b128 v101, {v(SX,4)}')
        FLA = L8
        e(f's_lshl_b32 s54, s{sH}, 14\ns_lshl_b32 s55, s{sW}, 12\ns_add_u32 s{sKV}, s54, s55\ns_add_u32 s{sKV}, s{sKV}, {KV}')
        e(f's_lshl_b32 s54, s{sH}, 13\ns_lshl_b32 s55, s{sW}, 11\ns_add_u32 s{sKVM}, s54, s55\ns_add_u32 s{sKVM}, s{sKVM}, {KVM - 0x40000}')
        e(f's_lshl_b32 s54, s{sH}, 7\ns_lshl_b32 s55, s{sW}, 2\ns_add_u32 s{sPROG}, s54, s55\ns_add_u32 s{sPROG}, s{sPROG}, {F_PROG}')
        e(f's_mov_b32 s{sT}, 0')
        e('s_waitcnt lgkmcnt(0)')
        def flag_spin(off):
            L = self.lab('fs'); D = self.lab('fsd')
            e.label(L)
            e.raw(f'buffer_load_dword v{FLGV}, off, {WSR}, s{sFL} offset:{off} sc1'); e.raw('s_waitcnt vmcnt(0)')
            e.raw(f'v_cmp_eq_u32 vcc, 0, v{FLGV}'); e.raw(f's_cbranch_vccz {D}')
            self.spin_check()
            e.raw('s_sleep 1'); e.raw(f's_branch {L}')
            e.label(D)
        e('s_waitcnt vmcnt(0)\nv_min_u32 v22, v22, v23\nv_cmp_eq_u32 vcc, 0, v22\ns_cbranch_vccz L_f01')
        flag_spin(0); flag_spin(4)
        e.label('L_f01')
        e(f's_add_u32 s{sFL}, s{sFL}, 8')
        e('s_barrier')
        self.dstamp(5, 100)
        self.stamp(3, (100,))
        def rf(n, half=None):
            r = staged[n]; sl = slot[n]
            t = [f'ds_read_b128 {v(r,4)}, v{WST} offset:{sl*2048}', f'ds_read_b128 {v(r+4,4)}, v{WST} offset:{sl*2048+1024}']
            return '\n'.join(t) if half is None else t[half]
        OAq = 64; WA = MEMA
        def S(n, fill=None):
            m, sl, p = seq[n]
            if m == 'o': d, A = WA + 4 * p, (SX if sl == 0 else OAq + 4 * (sl - 1))
            else: d, A = {'k': ACK, 'q': ACQ, 'v': ACV}[m] + 4 * p, MEMA + 4 * sl
            hm = home[seq[n]]
            B = R(hm, 8) if hm is not None else v(staged[n], 8)
            e(f'v_smfmac_f32_16x16x64_bf16 {v(d,4)}, {v(A,4)}, {B}, v{IDX}' + (' abid:1' if m == 'o' else ''))
            if fill: e(fill)
            if n in o.get('at', ()): self.ct(f'*.n{n}')
        def zero(r0, n):
            for r in range(r0, r0 + n, 2): e(f'v_mov_b64 {v(r,2)}, 0')
        def nops(cyc):
            n = cyc // 4
            while n > 0:
                k = min(n, 16); e(f's_nop {k-1}'); n -= k
        for n in (1, 3, 5, 7, 2, 6): e(rf(n))
        zero(ACK, 24)
        sTC, sTT, sTM = 74, 75, 57
        e(f's_mov_b32 s{sTC}, 0x10000\ns_mov_b32 s{sTT}, 0\ns_mov_b32 s{sTM}, 0\nv_mov_b32 v{OW}, s{sSEN}\nv_mov_b32 v{OR_}, 0xfffe0000')
        e(f'v_mov_b32 v{FLGV}, 0\nv_mov_b32 v{LN0}, {WS_BYTES:#x}\nv_mov_b32 v{SM_}, v{H2S}\nv_mov_b32 v{H2S}, {WS_BYTES:#x}\nv_mov_b64 {v(VMK,2)}, 0')
        e(f's_mov_b64 exec, 1\nv_mov_b32 v{LN0}, 0\ns_mov_b64 exec, s[72:73]\nv_mov_b32 v{H2S}, v{SM_}\ns_mov_b64 exec, -1')
        e('s_mov_b32 s58, 0')
        if self.dev: e('s_mov_b32 s93, 0\ns_mov_b32 s94, 0\ns_memtime s[100:101]\ns_waitcnt lgkmcnt(0)')
        self.ct_init()
        e('s_waitcnt lgkmcnt(0)')
        add = lambda x: f'v_add_f32 v{x}, v{x}, v{x+2}'
        z1 = lambda r0: f'v_mov_b64 {v(r0,2)}, 0'
        J = lambda *t: '\n'.join(t)
        def nxt():
            e(f's_xor_b32 s{sH2S}, s{sH2S}, 0x2000')
            e(f's_bfe_u32 s{sTM}, s{sT}, 0x10001\ns_lshl_b32 s{sTT}, s{sTM}, 16\ns_xor_b32 s{sTC}, s{sTT}, 0x10000')
            e(f's_add_u32 s55, s{sKV}, 0x80000\ns_add_u32 s56, s{sKVM}, 0x40000')
        nxt()
        y1, y2 = o.get('y1', 140), o.get('y2', 120)
        P1, RD = MEMA + 16, MEMA + 24
        p2 = lambda: [e(f'buffer_load_dwordx4 {v(MEMA+4*m,4)}, v{L16}, {WSR}, s{sH2L} offen offset:{1024*m} sc1') for m in (0, 1)]
        p1 = lambda: [e(f'buffer_load_dwordx4 {v(P1+4*m,4)}, v{L16}, {WSR}, s{sH1L} offen offset:{1024*m} sc1') for m in (0, 1)]
        red1 = f'v_mfma_f32_16x16x32_bf16 {v(RD,4)}, {v(SEL,4)}, {v(P1,4)}, 0'
        red2 = f'v_mfma_f32_16x16x32_bf16 {v(RD,4)}, {v(SEL,4)}, {v(P1+4,4)}, {v(RD,4)}'
        def wait_check(r, x, fail, m1='', m2=''):
            e(f's_waitcnt vmcnt({x+1})')
            e(f'v_max3_u32 v{SM_}, v{r}, v{r+1}, v{r+2}\nv_max_u32 v{SM_}, v{SM_}, v{r+3}')
            e(m1)
            e(f's_waitcnt vmcnt({x})')
            e(f'v_max3_u32 v{SM_}, v{SM_}, v{r+4}, v{r+5}\nv_max3_u32 v{SM_}, v{SM_}, v{r+6}, v{r+7}')
            e(m2)
            e(f'v_cmp_le_u32 vcc, s{sSEN}, v{SM_}\ns_cbranch_vccnz {fail}')
        def wait_check1(x, fail):
            r = P1
            e(f's_waitcnt vmcnt({x+1})')
            e(f'v_bitop3_b32 v{SM_}, v{r}, v{r+2}, s{sTM} bitop3:0x7e')
            e(red1)
            e(f's_waitcnt vmcnt({x})')
            e(f'v_bitop3_b32 v{SM_+1}, v{r+4}, v{r+6}, s{sTM} bitop3:0x7e')
            e(red2)
            e(f'v_bitop3_b32 v{SM_}, v{SM_}, v{SM_+1}, 1 bitop3:0xa8')
            e(f'v_cmp_ne_u32 vcc, 0, v{SM_}\ns_cbranch_vccnz {fail}')
        def publish():
            for sh in (4, 8):
                e(f'v_add_f32_dpp v{RD}, v{RD}, v{RD} row_ror:{sh} row_mask:0xf bank_mask:0xf\nv_add_f32_dpp v{RD+1}, v{RD+1}, v{RD+1} row_ror:{sh} row_mask:0xf bank_mask:0xf')
            e(f'v_cvt_pk_bf16_f32 v{PFL}, v{RD}, v{RD+1}')
            e(f'buffer_store_dword v{PFL}, v{H2S}, {WSR}, s{sH2S} offen')
        e.raw('.p2align 6')
        for _ in range(o.get('al', 0)): e.raw('s_nop 0')
        e.label('L_step')
        e.reset(); e.track = False
        p2()
        if y2:
            nops(y2); p2()
        e(f's_waitcnt vmcnt({4 if y2 else 2})')
        e(rf(4))
        dsq0 = list(e.dsq)
        mw = lambda i: f'ds_write_b64 v{MEMW}, {v(MEMA+2*i,2)} offset:{1024*(i>>1)+8*(i&1)}'
        spec = o.get('spec', 0)
        def head(x, chk):
            r = MEMA
            if chk: e(f's_waitcnt vmcnt({x+1})\nv_max3_u32 v{SM_}, v{r}, v{r+1}, v{r+2}\nv_max_u32 v{SM_}, v{SM_}, v{r+3}')
            S(0, J(mw(0), mw(1)))
            if chk: e(f's_waitcnt vmcnt({x})\nv_max3_u32 v{SM_}, v{SM_}, v{r+4}, v{r+5}\nv_max3_u32 v{SM_}, v{SM_}, v{r+6}, v{r+7}')
            S(1, mw(2))
            if chk: e(f'v_cmp_le_u32 vcc, s{sSEN}, v{SM_}')
            S(2, mw(3))
            if chk: e('s_cbranch_vccnz L_f2')
        if spec:
            e.label('L_w2')
            head(2 if y2 else 0, True)
            dsq0 = dsq0 + [set()] * 4
        else:
            wait_check(MEMA, 2 if y2 else 0, 'L_f2')
        e.label('L_ok2')
        e.track = True
        e.reset(dsq=dsq0, vmq=[set(), set()] if y2 else [])
        self.ct('01.got2')
        mr = lambda u, m: f'ds_read_b128 {v(MEMA+8+8*u+4*m,4)}, v{MEMR+u} offset:{1024*m}'
        kvl = lambda i: f'buffer_load_dwordx4 {v(KX+4*i,4)}, v{L16}, {WSR}, s{sKV} offen offset:{1024*i} sc1'
        RM = 108; KP = 110
        kst = lambda i, sr: f'buffer_store_dword v{KP+i}, v{KTR}, {WSR}, s{sr} offen offset:{64*i} sc1'
        nb = o.get('nb', 8)
        fl = {n: [] for n in range(64)}
        if spec: pass
        elif o.get('w64', 1) == 1:
            e(mw(0)); fl[0].append(mw(1)); fl[1].append(mw(2)); fl[2].append(mw(3))
        elif o.get('w64', 1) == 2:
            e(J(mw(0), mw(1))); fl[0] += [mw(2), mw(3)]
        elif o.get('w64', 1) == 3:
            e(f'ds_write_b128 v{MEMW}, {v(MEMA,4)}'); fl[0].append(f'ds_write_b128 v{MEMW}, {v(MEMA+4,4)} offset:1024')
        else:
            fl[0].append(f'ds_write_b128 v{MEMW}, {v(MEMA,4)}'); fl[1].append(f'ds_write_b128 v{MEMW}, {v(MEMA+4,4)} offset:1024')
        for i, n in enumerate((max(7, nb), 9, 11, 13, 15)): fl[n].append(mr((i + 1) >> 1, (i + 1) & 1))
        for n, t_ in ((3, f'buffer_store_dword v{OW}, v{H2S}, {WSR}, s{sH2S} offen'), (3, kvl(0)), (4, kvl(1)), (5, kvl(2)), (6, kvl(3)),
                      (8, kst(0, sKVM)), (10, kst(1, sKVM)), (12, f'buffer_store_dwordx2 {v(VMK,2)}, v{L8}, {WSR}, s{sKVM} offen offset:1024 sc1'),
                      (16, f'buffer_store_dword v{SX}, v{LN0}, {WSR}, s{sPROG} offen sc1'), (18, f'buffer_load_dword v{FLGV}, off, {WSR}, s{sFL} sc1'),
                      (20, f'buffer_load_dword v{PFL}, v{PFA}, {WSR}, s55 offen sc1'),
                      (14, rf(23, 0)), (17, rf(23, 1)), (19, rf(27, 0)), (21, rf(27, 1)), (22, 's_waitcnt vmcnt(6)'), (23, rf(39, 0)), (23, 's_nop 0'), (24, rf(39, 1)), (24, 's_nop 0'),
                      (25, add(ACQ)), (25, add(ACQ + 1)), (26, add(ACQ + 4)), (26, add(ACQ + 5)),
                      (9, f'v_mov_b32 v{RM}, 0xff800000'), (11, f'v_mov_b32 v{RM+1}, 0xff800000'), (13, f'v_mov_b32 v{SX}, s58')):
            fl[n].append(t_)
        for n in range(3 if spec else 0, 27):
            if n == nb:
                self.ct('1.s4')
                e.lgkm_for_writes()
                e('s_barrier')
                self.ct('1.bar')
                e(mr(0, 0))
            S(n, J(*fl[n]))
            if n in (11, 18, 25): self.ct(f'1.s{n}')
        S(27, f'v_cvt_pk_bf16_f32 v{ACQ+2}, v{ACQ}, v{ACQ+4}\nv_cvt_pk_bf16_f32 v{ACQ+3}, v{ACQ+1}, v{ACQ+5}')
        QB0, QB1 = ACQ, ACQ + 4
        S(28, J(f'ds_write2_b32 v{TRW}, v{ACQ+2}, v{ACQ+3} offset0:160 offset1:164', f'ds_read_b128 {v(QB0,4)}, v{Q0R}'))
        S(29, f'ds_read_b128 {v(QB1,4)}, v{Q1R}')
        S(30)
        self.ct('1.s30')
        S(31)
        S(32)
        e.lgkm_for_writes()
        e('s_barrier')
        Q2 = MEMA
        S(33, f'ds_read_b128 {v(Q2,4)}, v{QQR}')
        S(34, f'ds_read_b128 {v(Q2+4,4)}, v{QQR} offset:{2*TRS}')
        S(35)
        self.ct('015.kend')
        KP = 110
        sxw = lambda i: f'ds_write_b64 v{MEMW}, {v(SX+2*i,2)} offset:{8*i}'
        e(f'v_mfma_f32_16x16x32_bf16 {v(SX,4)}, {v(KX,4)}, {v(QB0,4)}, 0')
        e(f'v_mfma_f32_16x16x32_bf16 {v(SX,4)}, {v(KX+4,4)}, {v(QB1,4)}, {v(SX,4)}')
        e(J(add(ACK), add(ACK + 1), add(ACK + 4), add(ACK + 5)))
        e(f'v_cvt_pk_bf16_f32 v{KP}, v{ACK}, v{ACK+4}\nv_cvt_pk_bf16_f32 v{KP+1}, v{ACK+1}, v{ACK+5}')
        self.ct('5.kp')
        if o.get('sx64', 0):
            S(36, J(f'ds_write2_b32 v{TRW}, v{KP}, v{KP+1} offset0:0 offset1:4', sxw(0), sxw(1)))
        else:
            S(36, J(f'ds_write2_b32 v{TRW}, v{KP}, v{KP+1} offset0:0 offset1:4', f'ds_write_b128 v{MEMW}, {v(SX,4)}'))
        self.ct('5.w')
        S(37, f's_cmp_eq_u32 s{sT}, 63')
        S(39)
        S(40)
        self.ct('5.s40')
        e.lgkm_for_writes()
        e('s_barrier')
        e('s_cbranch_scc1 L_CEND')
        st63 = (list(e.dsq), list(e.vmq))
        self.ct('0125.barS')
        K2 = ACK
        RX = [88, 72, 92]; SMD = 76
        pka = lambda d, x: f'v_pk_add_f32 {v(d,2)}, {v(d,2)}, {v(x,2)}'
        e(f'ds_read_b128 {v(K2,4)}, v{K2R}\nds_read_b128 {v(K2+4,4)}, v{K2R} offset:{2*TRS}')
        S(41, J(f'ds_read_b128 {v(RX[0],4)}, v{MEMR}', f'ds_read_b128 {v(RX[1],4)}, v{MEMR+1}'))
        S(42, f'ds_read_b128 {v(RX[2],4)}, v{MEMR+2}')
        S(43)
        self.ct('2.s43')
        e(f'v_mfma_f32_16x16x32_bf16 {v(SMD,4)}, {v(K2,4)}, {v(Q2,4)}, 0')
        e(rf(38, 0))
        e(f'v_mfma_f32_16x16x32_bf16 {v(SMD,4)}, {v(K2+4,4)}, {v(Q2+4,4)}, {v(SMD,4)}')
        e(rf(38, 1))
        self.ct('2.m2')
        for i in range(4): e(f'v_add_f32 v{SX+i}, v{SX+i}, v{RX[0]+i}')
        if o.get('pk', 1):
            e(J(pka(SX, RX[1]), pka(SX + 2, RX[1] + 2), pka(SX, RX[2]), pka(SX + 2, RX[2] + 2)))
        else:
            for u in (1, 2):
                for i in range(4): e(f'v_add_f32 v{SX+i}, v{SX+i}, v{RX[u]+i}')
        e(f'v_add_f32_dpp v{RM}, v{SMD+2}, v{SMD} row_ror:8 row_mask:0xf bank_mask:0x3\nv_add_f32_dpp v{RM+1}, v{SMD+3}, v{SMD+1} row_ror:8 row_mask:0xf bank_mask:0x3')
        self.ct('2.sum')
        M0, M1 = 64, 65
        e(f'v_max3_f32 v{M0}, v{SX}, v{SX+1}, v{SX+2}\nv_max3_f32 v{M0}, v{M0}, v{SX+3}, v{RM}\nv_max_f32 v{M0}, v{M0}, v{RM+1}')
        S(44, rf(49, 0))
        e(f'v_max_f32_dpp v{M1}, v{M0}, v{M0} row_ror:8 row_mask:0xf bank_mask:0xf')
        e(f'v_max_f32_dpp v{M0}, v{M0}, v{M0} row_ror:8 row_mask:0xf bank_mask:0xf')
        S(45, rf(49, 1))
        e(f'v_permlane16_swap_b32 v{M0}, v{M1}\nv_max_f32 v{M1+1}, v{M0}, v{M1}\nv_max_f32 v{M0}, v{M0}, v{M1}')
        S(38, rf(48, 0))
        e(f'v_permlane32_swap_b32 v{M0}, v{M1+1}\nv_max_f32 v{M0}, v{M0}, v{M1+1}\nv_mul_f32 v{M0}, s{sSC}, v{M0}')
        self.ct('2.red')
        fma = lambda x: f'v_fma_f32 v{x}, v{x}, s{sSC}, -v{M0}'
        ex = lambda x: f'v_exp_f32 v{x}, v{x}'
        e(J(fma(SX), fma(SX + 1), fma(SX + 2), fma(SX + 3), ex(SX), ex(SX + 1), ex(SX + 2), ex(SX + 3)))
        self.ct('2.exp')
        PX, PM, LA, OE, OO_ = 92, 68, 88, 72, 76
        e(f'v_cvt_pk_bf16_f32 v{PX}, v{SX}, v{SX+1}\nv_cvt_pk_bf16_f32 v{PX+2}, v{SX}, v{SX+1}\nv_cvt_pk_bf16_f32 v{PX+1}, v{SX+2}, v{SX+3}\nv_cvt_pk_bf16_f32 v{PX+3}, v{SX+2}, v{SX+3}')
        dp = lambda x, bm: f'v_mov_b32_dpp v{x}, v{x} row_ror:8 row_mask:0xf bank_mask:{bm}'
        e(J(dp(PX, '0xc'), dp(PX + 2, '0x3'), dp(PX + 1, '0xc'), dp(PX + 3, '0x3')))
        S(46, J(rf(48, 1), fma(RM)))
        S(47, fma(RM + 1))
        self.ct('023.P')
        e(f'v_mfma_f32_16x16x32_bf16 {v(LA,4)}, {v(ONES,4)}, {v(PX,4)}, 0')
        e(ex(RM))
        e(f'v_mfma_f32_16x16x32_bf16 {v(OE,4)}, {v(VX,4)}, {v(PX,4)}, 0')
        e(ex(RM + 1))
        e(f'v_mfma_f32_16x16x32_bf16 {v(OO_,4)}, {v(VX+4,4)}, {v(PX,4)}, 0')
        e(J(f'v_cvt_pk_bf16_f32 v{PM}, v{RM}, v{RM+1}', add(ACV), add(ACV + 1), dp(PM, '0xc'), f'v_mov_b32 v{PM+1}, 0', f'v_cvt_pk_bf16_f32 v{VMK}, v{ACV}, v{ACV+1}', add(ACV + 4)))
        self.ct('3.x')
        e(f'v_mfma_f32_16x16x16_bf16 {v(LA,4)}, {v(ONES,2)}, {v(PM,2)}, {v(LA,4)}')
        e(J(add(ACV + 5), f'v_cvt_pk_bf16_f32 v{ACV+2}, v{ACV+4}, v{ACV+5}'))
        e(f'v_mfma_f32_16x16x16_bf16 {v(OE,4)}, {v(VMK,2)}, {v(PM,2)}, {v(OE,4)}')
        e(J(f'v_mov_b32 v{ACV+3}, 0', z1(WA)))
        e(f'v_mfma_f32_16x16x16_bf16 {v(OO_,4)}, {v(ACV+2,2)}, {v(PM,2)}, {v(OO_,4)}')
        e(J(z1(WA + 2), z1(WA + 4)))
        self.ct('3.m')
        e(f'v_rcp_f32 v{LA}, v{LA}')
        e(z1(WA + 6))
        if o.get('pk', 1):
            for x in (OE, OE + 2, OO_, OO_ + 2): e(f'v_pk_mul_f32 {v(x,2)}, {v(x,2)}, {v(LA,2)} op_sel_hi:[1,0]')
        else:
            for i in range(4): e(f'v_mul_f32 v{OE+i}, v{OE+i}, v{LA}')
            for i in range(4): e(f'v_mul_f32 v{OO_+i}, v{OO_+i}, v{LA}')
        for i in range(4): e(f'v_cvt_pk_bf16_f32 v{SX+i}, v{OE+i}, v{OO_+i}')
        self.ct('3.cvt')
        if o.get('o64', 0):
            e(f'ds_write_b64 v{MEMW}, {v(SX,2)} offset:1024\nds_write_b64 v{MEMW}, {v(SX+2,2)} offset:1032')
        else:
            e(f'ds_write_b128 v{MEMW}, {v(SX,4)} offset:1024')
        S(48, J(f's_mov_b32 s{sKV}, s55', z1(WA + 8), z1(WA + 10)))
        S(49, J(f's_mov_b32 s{sKVM}, s56', z1(WA + 12), z1(WA + 14)))
        self.ct('3.z')
        e.lgkm_for_writes()
        e('s_barrier')
        self.ct('034.barB')
        for u in range(3): e(f'ds_read_b128 {v(OAq+4*u,4)}, v{MEMR+u} offset:1024')
        S(50, f'v_mov_b32 v{VMK+1}, v{ACV+2}')
        S(51)
        PK = 80
        def post(b):
            t0 = WA + 4 * b
            return [f'v_add_u32 v{t0}, s{sTC}, v{t0}', f'v_and_or_b32 v{t0}, v{t0}, v{OR_}, s{sTT}',
                    f'v_cvt_pk_bf16_f32 v{PK+1+2*b}, v{t0+2}, v{t0+3}', f'v_cvt_pk_bf16_f32 v{PK+2*b}, v{t0}, v{t0+1}',
                    f'buffer_store_dwordx2 {v(PK+2*b,2)}, v{H1S}, {WSR}, s{sH1S if b < 2 else sH1S2} offen offset:{2048*(b&1)}']
        P = [post(b) for b in range(4)]
        self.ct('4.pre')
        S(52); self.ct('4.s52'); S(53); S(54, 's_nop 1')
        S(55, J('s_nop 3', *P[0][:4])); S(56, J(P[0][4], rf(61, 0))); self.ct('4.st0')
        S(57, J(rf(61, 1), rf(62, 0))); S(58, J(rf(62, 1), rf(63, 0))); S(59, J(rf(63, 1), *P[1][:4])); S(60, J(P[1][4], 's_nop 0')); self.ct('4.s60')
        S(61, 's_nop 1'); S(62, J('s_nop 0', *P[2][:4])); S(63, P[2][4]); self.ct('4.b2')
        e(J(*P[3]))
        self.ct('04.wo')
        def stagger(d0, dd, tag):
            nops(d0)
            if dd:
                for w in (1, 2, 3):
                    e(f's_cmp_lt_u32 s{sW}, {w}\ns_cbranch_scc1 L_sg{tag}')
                    nops(dd - 8 + (24 if w == 3 else 0))
            e.label(f'L_sg{tag}')
        nr = o.get('nr', 3)
        for n in (1, 3, 5)[:nr]: e(rf(n))
        stagger(o.get('d1', 20), o.get('g1', 48), 1)
        self.ct('0.d1')
        p1()
        for i in range(6): e(J(z1(ACK + 2 * i), 's_nop 0'))
        if y1:
            nops(y1 - 48); p1()
        for n in (1, 3, 5)[nr:] + (7, 2): e(rf(n))
        e.track = False
        wait_check1(2 if y1 else 0, 'L_f1')
        e.label('L_ok1')
        publish()
        e.label('L_pub1')
        e.track = True
        e.reset(dsq=e.dsq)
        self.ct('0.pub')
        e(rf(6))
        for i in range(6, 12): e(z1(ACK + 2 * i))
        e(f's_xor_b32 s{sH1S}, s{sH1S}, 0x40000\ns_xor_b32 s{sH1S2}, s{sH1S2}, 0x40000\ns_xor_b32 s{sH1L}, s{sH1L}, 0x40000\ns_xor_b32 s{sH2L}, s{sH2L}, 0x2000')
        e(f'v_readfirstlane_b32 s54, v{FLGV}\ns_cmp_lg_u32 s54, 0\ns_cbranch_scc0 L_fslow')
        e.label('L_fok')
        e(f's_mov_b32 s58, s{sT}')
        e(f's_add_u32 s{sFL}, s{sFL}, 4\ns_add_u32 s{sT}, s{sT}, 1')
        nxt()
        if self.dev:
            e.raw(f's_cmp_lg_u32 s{sT}, 3'); e.raw('s_cbranch_scc0 L_T0'); e.label('L_T0r')
        e('s_waitcnt lgkmcnt(0)')
        self.ct_acc()
        if self.dev and o.get('trace'):
            e.raw(f's_lshl_b32 s97, s98, 2'); e.raw(f's_add_u32 s97, s97, s{sW}'); e.raw('s_lshl_b32 s97, s97, 6'); e.raw(f's_add_u32 s97, s97, s{sT}'); e.raw('s_lshl_b32 s97, s97, 5'); e.raw(f's_add_u32 s97, s97, {STP+0x40000}')
            if o.get('trace') == 2:
                e.raw('s_memrealtime s[94:95]'); e.raw('s_waitcnt lgkmcnt(0)')
            for i, sr in enumerate((26, 4, 6, 14, 16, 18, 93, 94)):
                e.raw(f'v_mov_b32 v{32+i}, s{sr}')
            e.raw(f'buffer_store_dwordx4 v[32:35], v{LN0}, {WSR}, s97 offen'); e.raw(f'buffer_store_dwordx4 v[36:39], v{LN0}, {WSR}, s97 offen offset:16')
        nops(max(0, o.get('d2', 44) - self.ct_cost() - (72 if o.get('trace') else 0)))
        self.ct_last()
        e('s_branch L_step')
        e.label('L_fslow')
        e(f's_cmp_ge_u32 s{sT}, 62\ns_cbranch_scc1 L_fok')
        flag_spin(0)
        e('s_branch L_fok')
        if self.dev:
            e.label('L_T0'); e.raw('s_memtime s[100:101]'); e.raw('s_mov_b32 s93, 0'); e.raw('s_mov_b32 s94, 0'); e.raw('s_branch L_T0r')
        e.track = False
        def spin(tag):
            if self.dev: e(f's_add_u32 s{92+tag}, s{92+tag}, 1')
            e(f's_add_u32 s{sSPIN}, s{sSPIN}, 1\ns_cmp_gt_u32 s{sSPIN}, {1 << 19}\ns_cbranch_scc1 L_END')
        e.label('L_f1')
        p1(); spin(1)
        wait_check1(2 if y1 else 0, 'L_f1')
        publish(); e('s_branch L_pub1')
        e.label('L_f2')
        p2()
        e(f'v_cmp_lt_u32 vcc, s{sSEN}, v{SM_}')
        spin(2)
        e('s_cbranch_vccnz L_x2')
        if spec:
            e('s_nop 1'); zero(ACQ, 8); e('s_nop 0\ns_branch L_w2')
        else:
            wait_check(MEMA, 2 if y2 else 0, 'L_f2')
            e('s_branch L_ok2')
        e.label('L_x2')
        e('s_waitcnt vmcnt(0)')
        e(f'v_cmp_eq_u32 s[76:77], s{sSEN}, v{MEMA}')
        for i in range(1, 8): e(f'v_cmp_eq_u32 vcc, s{sSEN}, v{MEMA+i}\ns_or_b64 s[76:77], s[76:77], vcc')
        if spec:
            e('s_cbranch_scc1 L_f2'); zero(ACQ, 8); e('s_waitcnt lgkmcnt(0)'); head(0, False); e('s_branch L_ok2')
        else:
            e('s_cbranch_scc0 L_ok2\ns_branch L_f2')
        e.track = True
        e.label('L_CEND')
        e.reset(*st63)
        e(J(rf(38), kst(0, 56), kst(1, 56)))
        for n in (41, 42, 43, 44, 45, 46, 47, 38): S(n)
        e(J(add(ACV), add(ACV + 1), add(ACV + 4), add(ACV + 5)))
        e(f'v_cvt_pk_bf16_f32 v{ACV}, v{ACV}, v{ACV+1}\nv_cvt_pk_bf16_f32 v{ACV+1}, v{ACV+4}, v{ACV+5}')
        e(f'buffer_store_dwordx2 {v(ACV,2)}, v{L8}, {WSR}, s56 offen offset:1024 sc1')
        e(f's_waitcnt vmcnt(0) lgkmcnt(0)\nv_mov_b32 v{SM_}, 64\ns_mov_b64 exec, 1\nbuffer_store_dword v{SM_}, off, {WSR}, s{sPROG} sc1\ns_mov_b64 exec, -1')
        if self.dev:
            e('s_memtime s[90:91]\ns_waitcnt lgkmcnt(0)\ns_sub_u32 s90, s90, s100')
            e(f's_lshl_b32 s97, s98, 8\ns_lshl_b32 s99, s{sW}, 6\ns_add_u32 s97, s97, s99\ns_add_u32 s97, s97, {STP+32}')
            e(f'v_mov_b32 v100, s90\nv_mov_b32 v101, s93\nv_mov_b32 v102, s94\nv_mov_b32 v103, s{sSPIN}\nbuffer_store_dwordx4 v[100:103], off, {WSR}, s97')
        self.dstamp(6, 100)
        self.tick_dump(11, 2, 100, 78)
        self.stamp(7, (100,))

    def build(self):
        e = self.e
        self.prologue()
        self.ln(); self.stamp(1)
        self.qkv(); self.ffn1(); self.tailphase()
        self.chain()
        e.label('L_END')
        e('s_endpgm')
        if self.o.get('drop'):
            out_ = []; on = False
            for l in e.lines:
                if l == 'L_ok2:': on = True
                if l.startswith('s_cbranch_scc1 L_CEND'): on = False
                d = self.o['drop']
                if on and ((d & 1 and l.startswith('buffer_load_dwordx4')) or (d & 2 and l.startswith('buffer_store') and 'sc1' in l and 's70' not in l) or (d & 4 and l.startswith('buffer_load_dword v20')) or (d & 8 and l.startswith('ds_read_b128') and 'v9 ' in l) or (d & 16 and l.startswith('buffer_load_dword v21'))): l = 's_nop 0'
                out_.append(l)
            e.lines = out_
        body = fix_hazards(e.lines)
        hdr = open('recurrent_scan__memory_aug_recurrent_mem_tr__glu_gated_reglu__prompt.s.ref').read().split('\n')
        top = [l for l in hdr if l.startswith(';') and '@launch' not in l and not l.startswith('; Override') and not l.startswith('; grid=')]
        out = top + ['; @launch grid=(256,1,1) block=(256,1,1) lds=163840', '.amdgcn_target "amdgcn-amd-amdhsa--gfx950"', '.text', f'.globl {KNAME}', '.p2align 8', f'.type {KNAME},@function', f'{KNAME}:']
        out += body
        out += ['.section .rodata,"a"', '.p2align 6', f'.amdhsa_kernel {KNAME}', '  .amdhsa_next_free_vgpr 512', '  .amdhsa_next_free_sgpr 102', '  .amdhsa_accum_offset 256',
                '  .amdhsa_group_segment_fixed_size 0', '  .amdhsa_kernarg_size 112', '  .amdhsa_user_sgpr_count 2', '  .amdhsa_user_sgpr_kernarg_segment_ptr 1',
                '  .amdhsa_system_sgpr_workgroup_id_x 1', '  .amdhsa_float_denorm_mode_32 3', '.end_amdhsa_kernel', '']
        return '\n'.join(out)

if __name__ == '__main__':
    import json
    dev = 'dev' in sys.argv[2:]
    opts = {}
    for a_ in sys.argv[2:]:
        if '=' in a_:
            k, x = a_.split('='); opts[k] = int(x)
    open(sys.argv[1], 'w').write(Gen(dev, opts).build())
```

```python
import sys, math
sys.path.insert(0, 'gen')
from asmlib import *

KNAME = 'recurrent_scan__memory_aug_recurrent_mem_tr__glu_gated_reglu__prompt_kernel'
XN   = 0x0000000
FLG  = 0x0200000
F_KVX, F_OFL, F_HFL, F_PROG = FLG, FLG + 0x40000, FLG + 0x10000, FLG + 0x14000
H1   = 0x0300000
H2   = 0x0380000
STP  = 0x0390000
DUM  = 0x0500000
KV   = 0x1000000
KVM  = 0x3040000
OO   = 0x4100000
HH   = 0x5100000
WS_BYTES = 0x10000000
SENT = 0xFFBFFFBF
CSC = (128 ** -0.5) * math.log2(math.e)
import struct
def fbits(x): return struct.unpack('<I', struct.pack('<f', x))[0]

sX, sMEM, sWQ, sWK, sWV, sWO, sWG, sWU, sWD, sOUT, sDBG, sWS = 4, 6, 8, 10, 12, 14, 20, 22, 24, 26, 28, 30
sW, sXCC, sJ = 32, 33, 34
SRD_WS, SRD_A, SRD_B, SRD_X = 36, 40, 44, 48
sPLO, sPHI = 52, 53
sSPIN = 35
WSR = s(SRD_WS, 4)

class Gen:
    def __init__(self, dev=False, opts=None):
        self.e = Emitter(); self.dev = dev; self.o = opts or {}
        self.uid = 0
    def lab(self, p):
        self.uid += 1; return f'L_{p}_{self.uid}'
    def srd(self, d, ptr, nbytes):
        e = self.e
        e(f's_mov_b32 s{d}, s{ptr}\ns_and_b32 s{d+1}, s{ptr+1}, 0xffff\ns_mov_b32 s{d+2}, {nbytes:#x}\ns_mov_b32 s{d+3}, 0x20000')
    def stamp(self, idx, vt=(112,)):
        if not self.dev: return
        e = self.e; t = vt[0]
        sv = (list(e.dsq), list(e.vmq))
        e.raw('s_memrealtime s[96:97]')
        e.raw('s_waitcnt lgkmcnt(0)')
        e.raw(f's_lshl_b32 s97, s98, 8')
        e.raw(f's_lshl_b32 s99, s{sW}, 6')
        e.raw(f's_add_u32 s97, s97, s99')
        e.raw(f's_add_u32 s97, s97, {STP + idx*4}')
        e.raw(f'v_mov_b32 v{t}, s96')
        e.raw(f'buffer_store_dword v{t}, off, {WSR}, s97')
        e.raw('s_waitcnt vmcnt(0)')
        e.reset()
    def dstamp(self, idx, vt, inv=False):
        if not self.o.get('dbg'): return
        e = self.e
        L = self.lab('ds')
        e.raw(f's_cmp_lg_u32 s{sW}, 0'); e.raw(f's_cbranch_scc1 {L}')
        e.raw('s_memrealtime s[96:97]'); e.raw('s_waitcnt lgkmcnt(0)')
        if inv: e.raw('s_not_b32 s96, s96')
        e.raw(f'v_mov_b32 v{vt}, {4*idx}'); e.raw(f'v_mov_b32 v{vt+1}, s96'); e.raw('s_mov_b64 exec, 1')
        e.raw(f'global_atomic_umax v{vt}, v{vt+1}, {s(sDBG,2)}'); e.raw('s_mov_b64 exec, -1')
        e.label(L); e.raw('s_waitcnt lgkmcnt(0)'); e.dsq = []
    def stamp2(self, idx):
        if self.dev: self.e.raw(f's_memrealtime s[{4+2*idx}:{5+2*idx}]')
    def tick(self, k, base=76):
        if not self.dev or not self.o.get('tick'): return
        e = self.e
        e.raw('s_memtime s[90:91]'); e.raw('s_waitcnt lgkmcnt(0)'); e.dsq = []
        if k is not None:
            e.raw('s_sub_u32 s91, s90, s88'); e.raw(f's_add_u32 s{base+k}, s{base+k}, s91')
        e.raw('s_mov_b32 s88, s90')
    def tick_init(self, n, base=76):
        if not self.dev or not self.o.get('tick'): return
        for k in range(n): self.e.raw(f's_mov_b32 s{base+k}, 0')
    def tick_dump(self, n, slot, vt, base=76):
        if not self.dev or not self.o.get('tick'): return
        e = self.e
        e.raw(f's_lshl_b32 s97, s98, 8'); e.raw(f's_lshl_b32 s99, s{sW}, 6'); e.raw('s_add_u32 s97, s97, s99')
        e.raw(f's_add_u32 s97, s97, {STP + 0x10000*(slot+1)}')
        for k in range(n):
            e.raw(f'v_mov_b32 v{vt}, s{base+k}'); e.raw(f'buffer_store_dword v{vt}, off, {WSR}, s97 offset:{4*k}')
        e.raw('s_waitcnt vmcnt(0)'); e.vmq = []
    def ct(self, tag):
        if not (self.dev and self.o.get('tick')): return
        z = tag.split('.')[0]
        if z != '*' and str(self.o.get('zoom', 0)) not in z: return
        k = len(self.cts); self.cts.append(tag); assert k < 11
        self.e.raw(f's_memtime s[{4+2*k}:{5+2*k}]')
    def ct_last(self):
        if self.dev and self.o.get('tick'): self.e.raw('s_memtime s[26:27]')
    def ct_init(self):
        self.cts = []
        if self.dev and self.o.get('tick'):
            for k in range(11): self.e.raw(f's_mov_b32 s{78+k}, 0')
            self.ct_last()
    def ct_cost(self):
        return 8 * len(self.cts)
    def ct_acc(self):
        if not (self.dev and self.o.get('tick')): return
        e = self.e
        for k in range(len(self.cts)):
            p = 26 if k == 0 else 4 + 2 * (k - 1)
            e.raw(f's_sub_u32 s91, s{4+2*k}, s{p}'); e.raw(f's_add_u32 s{78+k}, s{78+k}, s91')
        sys.stderr.write('stamps: %s\n' % self.cts)
    def spin_check(self, fail='L_END', lim=1 << 17):
        e = self.e
        e(f's_add_u32 s{sSPIN}, s{sSPIN}, 1\ns_cmp_gt_u32 s{sSPIN}, {lim}\ns_cbranch_scc1 {fail}')
    def wait_counter(self, off, target, vt):
        e = self.e; L = self.lab('wc'); D = self.lab('wcd')
        e(f'v_mov_b32 v{vt}, {off}')
        e.label(L)
        e(f'global_load_dword v{vt+1}, v{vt}, {s(sDBG,2)} sc1')
        e('s_waitcnt vmcnt(0)')
        e(f'v_readfirstlane_b32 s54, v{vt+1}')
        e(f's_cmp_ge_u32 s54, {target}\ns_cbranch_scc1 {D}')
        self.spin_check()
        e(f's_sleep 2\ns_branch {L}')
        e.label(D)
    def wait_flags(self, voff, soff, vt, thr=None):
        e = self.e; L = self.lab('wf'); D = self.lab('wfd')
        e.label(L)
        e(f'buffer_load_dword v{vt}, v{voff}, {WSR}, {soff} offen sc1')
        e('s_waitcnt vmcnt(0)')
        if thr is None: e(f'v_cmp_eq_u32 vcc, 0, v{vt}')
        else: e(f'v_cmp_ge_u32 vcc, {thr}, v{vt}')
        e(f's_cbranch_vccz {D}')
        self.spin_check()
        e(f's_sleep 2\ns_branch {L}')
        e.label(D)
    def red_g(self, op, x, t):
        e = self.e
        e(f'v_mov_b32 v{t}, v{x}\nv_permlane16_swap_b32 v{x}, v{t}\n{op} v{x}, v{x}, v{t}')
        e(f'v_mov_b32 v{t}, v{x}\nv_permlane32_swap_b32 v{x}, v{t}\n{op} v{x}, v{x}, v{t}')
    def rbf(self, d, x):
        self.e(f'v_cvt_pk_bf16_f32 v{d}, v{x}, v{x}\nv_lshlrev_b32 v{d}, 16, v{d}')

    def prologue(self):
        e = self.e
        e('s_cmp_ge_u32 s2, 256\ns_cbranch_scc1 L_END')
        e('s_load_dwordx16 s[4:19], s[0:1], 0\ns_load_dwordx8 s[20:27], s[0:1], 64\ns_load_dwordx4 s[28:31], s[0:1], 96')
        e(f's_getreg_b32 s{sXCC}, hwreg(HW_REG_XCC_ID)\ns_and_b32 s{sXCC}, s{sXCC}, 7')
        e(f'v_lshrrev_b32 v1, 6, v0\nv_readfirstlane_b32 s{sW}, v1\nv_and_b32 v0, 63, v0')
        e(f's_mov_b32 s{sSPIN}, 0\ns_mov_b32 s{sPLO}, 0x05040100\ns_mov_b32 s{sPHI}, 0x07060302')
        e('s_waitcnt lgkmcnt(0)')
        self.srd(SRD_WS, sWS, WS_BYTES)
        if self.o.get('dbg'):
            e(f's_cmp_lg_u32 s{sXCC}, 0\ns_cbranch_scc1 L_nod'); self.dstamp(2, 6, True); e.label('L_nod')
        e(f's_cmp_lg_u32 s{sW}, 0\ns_cbranch_scc1 L_notick')
        e(f's_lshl_b32 s54, s{sXCC}, 2\ns_add_u32 s54, s54, 128\ns_cmp_eq_u32 s{sXCC}, 0\ns_cselect_b32 s54, 0, s54')
        e(f'v_mov_b32 v2, s54\nv_mov_b32 v3, 1\ns_mov_b64 exec, 1')
        e(f'global_atomic_add v4, v2, v3, {s(sDBG,2)} sc0\ns_mov_b64 exec, -1')
        e.label('L_notick')
        e.reset()
        nt = 0
        if self.o.get('cpf', 1):
            nt = 1
            e.raw('s_getpc_b64 s[56:57]')
            e.label('L_pc')
            e(f's_lshr_b32 s54, s2, 3\ns_lshl_b32 s54, s54, 2\ns_add_u32 s54, s54, s{sW}\ns_and_b32 s54, s54, 7\ns_lshl_b32 s54, s54, 13')
            e('v_lshlrev_b32 v6, 7, v0\nv_add_u32 v6, s54, v6')
            e.raw('v_min_u32 v6, L_END-L_pc, v6')
            e('global_load_dword v7, v6, s[56:57]')
        if self.o.get('pre', 0):
            nt = 3
            e(f's_cmp_eq_u32 s{sW}, 1\ns_cselect_b64 s[56:57], {s(sWK,2)}, {s(sWO,2)}\ns_cmp_eq_u32 s{sW}, 2\ns_cselect_b64 s[56:57], {s(sWV,2)}, s[56:57]\ns_cmp_eq_u32 s{sW}, 3\ns_cselect_b64 s[56:57], {s(sWQ,2)}, s[56:57]')
            e(f's_lshl_b32 s54, s2, 14\ns_lshr_b32 s55, s2, 3\ns_lshl_b32 s55, s55, 2\ns_add_u32 s55, s55, s{sW}\ns_lshl_b32 s55, s55, 15')
            e(f's_cmp_eq_u32 s{sXCC}, 0\ns_cselect_b64 s[56:57], {s(sWO,2)}, s[56:57]\ns_cselect_b32 s54, s55, s54')
            self.srd(SRD_A, 56, 1 << 22); self.srd(SRD_X, sX, 2048 * 1024)
            e(f'v_lshlrev_b32 v6, 7, v0\ns_add_u32 s55, s54, 8192')
            e(f'buffer_load_dword v7, v6, {s(SRD_A,4)}, s54 offen\nbuffer_load_dword v7, v6, {s(SRD_A,4)}, s55 offen')
            e(f's_lshl_b32 s54, s2, 13\ns_cmp_eq_u32 s{sXCC}, 0\ns_cselect_b32 s{SRD_X+2}, 0, s{SRD_X+2}\ns_cmp_eq_u32 s{sW}, 1\ns_cselect_b32 s{SRD_X+2}, s{SRD_X+2}, 0')
            e(f'buffer_load_dword v7, v6, {s(SRD_X,4)}, s54 offen')
        e(f's_cmp_lg_u32 s{sW}, 0\ns_cbranch_scc1 L_notick2')
        e(f's_waitcnt vmcnt({nt})\nv_mov_b32 v5, 0\ns_mov_b64 exec, 1\nds_write_b32 v5, v4\ns_waitcnt lgkmcnt(0)\ns_mov_b64 exec, -1')
        e.label('L_notick2')
        e.reset()
        e('s_barrier\nv_mov_b32 v5, 0\nds_read_b32 v4, v5\ns_waitcnt lgkmcnt(0)')
        e(f'v_readfirstlane_b32 s{sJ}, v4')
        e('s_barrier')
        e(f's_cmp_ge_u32 s{sJ}, 32\ns_cbranch_scc1 L_END')
        if self.dev:
            e(f's_lshl_b32 s98, s{sXCC}, 5\ns_add_u32 s98, s98, s{sJ}')
            self.stamp(0)
        e(f's_cmp_eq_u32 s{sXCC}, 0\ns_cbranch_scc1 L_CHAIN')
        e(f's_sub_u32 s54, s{sXCC}, 1\ns_lshl_b32 s54, s54, 5\ns_add_u32 s{sJ}, s{sJ}, s54')

    def load_pairs(self, groups, tmp, depth, vA, vB, post=None):
        e = self.e
        n = len(groups[0][1]); T = tmp + depth * 2 * n
        def issue(k):
            srd, ents = groups[k][0], groups[k][1]
            b = tmp + (k % depth) * 2 * n
            for i, (so, _, _) in enumerate(ents):
                e(so)
                e(f'buffer_load_dword v{b+2*i}, v{vA}, {s(srd,4)}, s54 offen')
                e(f'buffer_load_dword v{b+2*i+1}, v{vB}, {s(srd,4)}, s54 offen')
        def finish(k):
            ents = groups[k][1]
            b = tmp + (k % depth) * 2 * n
            for i, (_, dE, dO) in enumerate(ents):
                for d, sel, tt in ((dE, sPLO, T), (dO, sPHI, T + 1)):
                    if d < 256: e(f'v_perm_b32 v{d}, v{b+2*i+1}, v{b+2*i}, s{sel}')
                    else: e(f'v_perm_b32 v{tt}, v{b+2*i+1}, v{b+2*i}, s{sel}\nv_accvgpr_write_b32 a{d-256}, v{tt}')
            if len(groups[k]) > 2 and groups[k][2]: groups[k][2]()
        for k in range(len(groups) + depth - 1):
            if k < len(groups): issue(k)
            if k - (depth - 1) >= 0: finish(k - (depth - 1))
            if post and k == depth - 1: post()

    def touch_qkv(self):
        e = self.e
        e(f'v_lshrrev_b32 v120, 1, v0\nv_lshlrev_b32 v120, 13, v120\nv_and_b32 v121, 1, v0\nv_lshlrev_b32 v121, 7, v121')
        e(f's_lshl_b32 s55, s62, 8\ns_sub_u32 s56, s63, 3\ns_lshl_b32 s56, s56, 2\ns_add_u32 s56, s56, s{sW}\ns_lshl_b32 s56, s56, 18\ns_add_u32 s55, s55, s56\nv_add3_u32 v120, v120, v121, s55')
        for ptr in (sWK, sWV, sWQ)[:3 - self.o.get('tq', 0)]:
            self.srd(SRD_A, ptr, 1 << 22)
            e(f'buffer_load_dword v121, v120, {s(SRD_A,4)}, 0 offen')
    def touch_rest(self):
        for ptr in (sWK, sWV, sWQ)[3 - self.o.get('tq', 0):]:
            self.srd(SRD_A, ptr, 1 << 22)
            self.e(f'buffer_load_dword v121, v120, {s(SRD_A,4)}, 0 offen')
    def ln(self):
        e = self.e
        sLN = 61
        e(f's_mul_i32 s62, s{sJ}, 9363\ns_lshr_b32 s62, s62, 16\ns_mul_i32 s54, s62, 7\ns_sub_u32 s63, s{sJ}, s54')
        e(f's_cmp_lt_u32 s63, 3\ns_cbranch_scc1 L_skipln')
        e(f's_lshl_b32 s{sLN}, s62, 2\ns_add_u32 s{sLN}, s{sLN}, s63\ns_sub_u32 s{sLN}, s{sLN}, 3')
        self.srd(SRD_X, sX, 2048 * 1024)
        e(f'v_lshlrev_b32 v1, 4, v0')
        e(f's_lshl_b32 s54, s{sLN}, 14\ns_lshl_b32 s55, s{sW}, 12\ns_add_u32 s54, s54, s55')
        for r in range(4):
            e(f'buffer_load_dwordx4 {v(16+4*r,4)}, v1, {s(SRD_X,4)}, s54 offen offset:{1024*r}')
        if self.o.get('touch', 1): self.touch_qkv()
        e(f'v_lshlrev_b32 v2, 2, v0\nv_mov_b32 v3, 0')
        e(f's_lshl_b32 s55, s{sLN}, 10\ns_lshl_b32 s56, s{sW}, 8\ns_add_u32 s55, s55, s56\ns_add_u32 s55, s55, {FLG}')
        e(f'buffer_store_dword v3, v2, {WSR}, s55 offen sc1')
        e(f'v_lshlrev_b32 v2, 7, v0\ns_lshl_b32 s55, s{sLN}, 11\ns_lshl_b32 s56, s{sW}, 9\ns_add_u32 s55, s55, s56\ns_add_u32 s55, s55, {F_OFL}')
        e(f's_mov_b64 exec, 15\nbuffer_store_dword v3, v2, {WSR}, s55 offen sc1\ns_mov_b64 exec, -1')
        F = lambda r, i: 32 + 8 * r + i
        Dv = lambda r, i: 64 + 8 * r + i
        SM, VR, T = 96, 100, 104
        e(f's_mov_b32 s56, 0xffff0000\ns_mov_b32 s57, {fbits(1.0/512):#x}\ns_mov_b32 s58, {fbits(1e-5):#x}')
        for r in range(4):
            for i in range(4):
                e(f'v_lshlrev_b32 v{F(r,2*i)}, 16, v{16+4*r+i}\nv_and_b32 v{F(r,2*i+1)}, s56, v{16+4*r+i}')
        self.touch_rest()
        def red64(base):
            for sh in (1, 2, 4, 8):
                for r in range(4):
                    e(f'v_add_f32_dpp v{base+r}, v{base+r}, v{base+r} row_ror:{sh} row_mask:0xf bank_mask:0xf')
            for sw in ('16', '32'):
                for r in range(4): e(f'v_mov_b32 v{T+r}, v{base+r}')
                for r in range(4): e(f'v_permlane{sw}_swap_b32 v{base+r}, v{T+r}')
                for r in range(4): e(f'v_add_f32 v{base+r}, v{base+r}, v{T+r}')
        for r in range(4): e(f'v_add_f32 v{SM+r}, v{F(r,0)}, v{F(r,1)}')
        for i in range(2, 8):
            for r in range(4): e(f'v_add_f32 v{SM+r}, v{SM+r}, v{F(r,i)}')
        red64(SM)
        for r in range(4): e(f'v_mul_f32 v{SM+r}, s57, v{SM+r}')
        for r in range(4):
            for i in range(8): e(f'v_sub_f32 v{Dv(r,i)}, v{F(r,i)}, v{SM+r}')
        for r in range(4): e(f'v_mul_f32 v{VR+r}, v{Dv(r,0)}, v{Dv(r,0)}')
        for i in range(1, 8):
            for r in range(4): e(f'v_fmac_f32 v{VR+r}, v{Dv(r,i)}, v{Dv(r,i)}')
        red64(VR)
        for r in range(4):
            e(f'v_mul_f32 v{VR+r}, s57, v{VR+r}')
            self.rbf(VR + r, VR + r); self.rbf(SM + r, SM + r)
            e(f'v_add_f32 v{VR+r}, s58, v{VR+r}')
            self.rbf(VR + r, VR + r)
            e(f'v_sqrt_f32 v{VR+r}, v{VR+r}')
            self.rbf(VR + r, VR + r)
            e(f'v_rcp_f32 v{T+r}, v{VR+r}')
        for r in range(4):
            for i in range(8): e(f'v_sub_f32 v{F(r,i)}, v{F(r,i)}, v{SM+r}')
            for i in range(4):
                e(f'v_cvt_pk_bf16_f32 v108, v{F(r,2*i)}, v{F(r,2*i+1)}')
                e(f'v_lshlrev_b32 v{F(r,2*i)}, 16, v108\nv_and_b32 v{F(r,2*i+1)}, s56, v108')
            for i in range(8): e(f'v_mul_f32 v{Dv(r,i)}, v{F(r,i)}, v{T+r}')
            for i in range(8): e(f'v_fma_f32 v{F(r,i)}, -v{Dv(r,i)}, v{VR+r}, v{F(r,i)}')
            for i in range(8): e(f'v_fmac_f32 v{Dv(r,i)}, v{F(r,i)}, v{T+r}')
            for i in range(4): e(f'v_cvt_pk_bf16_f32 v{16+4*r+i}, v{Dv(r,2*i)}, v{Dv(r,2*i+1)}')
        e(f'v_lshlrev_b32 v2, 8, v0\ns_lshl_b32 s55, s{sW}, 6\nv_add_u32 v2, s55, v2')
        for r in range(4): e(f'ds_write_b128 v2, {v(16+4*r,4)} offset:{16*r}')
        e('s_waitcnt lgkmcnt(0)\ns_barrier')
        e(f's_lshl_b32 s55, s{sW}, 12\nv_add_u32 v2, s55, v1')
        for r in range(4): e(f'ds_read_b128 {v(16+4*r,4)}, v2 offset:{1024*r}')
        for r in range(4): e(f'buffer_store_dwordx4 {v(16+4*r,4)}, v1, {WSR}, s54 offen offset:{1024*r} sc1')
        e('s_waitcnt vmcnt(0)\ns_barrier')
        e(f's_cmp_lg_u32 s{sW}, 0\ns_cbranch_scc1 L_noln')
        e(f'v_mov_b32 v2, 192\nv_mov_b32 v3, 1\ns_mov_b64 exec, 1\nglobal_atomic_add v2, v3, {s(sDBG,2)}\ns_mov_b64 exec, -1')
        e('s_branch L_noln')
        e.label('L_skipln')
        e.label('L_noln')
        e.reset(); e('s_waitcnt vmcnt(0)')

    def row_loop(self, name, sT, step, mf, nacc_desc, epilogue, flagoff):
        e = self.e
        PF, FR = 80, 64
        sSO, sBUF, sPREV = 56, 57, 58
        def pf_issue():
            e(f's_lshl_b32 s{sSO}, s61, 15\ns_lshl_b32 s55, s{sW}, 13\ns_add_u32 s{sSO}, s{sSO}, s55')
            e(f's_add_u32 s55, s{sSO}, 4096')
            for i in range(8):
                e(f'buffer_load_dwordx4 {v(PF+4*i,4)}, v1, {WSR}, s{sSO if i < 4 else 55} offen offset:{1024*(i%4)} sc1')
        e(f'v_lshlrev_b32 v1, 4, v0\ns_lshl_b32 s55, s{sW}, 13\nv_add_u32 v2, s55, v1\nv_mov_b32 v3, v1\nv_mov_b32 v4, 1')
        e(f's_lshl_b32 s{sPREV}, s{sJ}, 2\ns_add_u32 s{sPREV}, s{sPREV}, s{sW}\ns_lshl_b32 s{sPREV}, s{sPREV}, 7\ns_add_u32 s{sPREV}, s{sPREV}, {DUM}')
        e(f's_mov_b32 s61, s{sT}')
        pf_issue()
        nst = self._nst
        e('s_mov_b64 exec, 1')
        for _ in range(nst): e(f'buffer_store_dword v4, off, {WSR}, s{sPREV}')
        e('s_mov_b64 exec, -1')
        e('s_barrier')
        self.tick_init(6); self.tick(None)
        L = f'L_{name}_loop'
        e.label(L)
        q0 = list(e.vmq)
        for i in range(8): e(f'ds_write_b128 v2, {v(PF+4*i,4)} offset:{1024*i}')
        if step == 7: e(f's_cmp_lt_u32 s{sT}, 3\ns_cselect_b32 s60, 3, 7')
        else: e(f's_mov_b32 s60, {step}')
        e(f's_add_u32 s61, s{sT}, s60\ns_min_u32 s61, s61, 63')
        e('s_waitcnt lgkmcnt(0)')
        self.tick(0)
        pf_issue()
        self.tick(1)
        e('s_barrier')
        self.tick(2)
        rd = lambda k: (e(f'ds_read_b128 {v(FR+8*(k%2),4)}, v3 offset:{1024*k}'), e(f'ds_read_b128 {v(FR+8*(k%2)+4,4)}, v3 offset:{16384+1024*k}'))
        rd(0)
        for k in range(16):
            if k < 15: rd(k + 1)
            mf(k, FR + 8 * (k % 2), FR + 8 * (k % 2) + 4)
            if k == 7:
                e('s_waitcnt vmcnt(8)')
                e(f's_mov_b64 exec, 1\nbuffer_store_dword v4, off, {WSR}, s{sPREV} sc1\ns_mov_b64 exec, -1')
        e('v_xor_b32 v2, 0x8000, v2\nv_xor_b32 v3, 0x8000, v3')
        self.tick(3)
        flagoff(sPREV)
        epilogue()
        e('s_waitcnt lgkmcnt(0)')
        self.tick(5)
        assert len(e.vmq) == len(q0), (len(e.vmq), len(q0))
        e(f's_add_u32 s{sT}, s{sT}, s60\ns_cmp_lt_u32 s{sT}, 64\ns_cbranch_scc1 {L}')
        e('s_waitcnt vmcnt(0)')
        e(f's_mov_b64 exec, 1\nbuffer_store_dword v4, off, {WSR}, s{sPREV} sc1\ns_mov_b64 exec, -1')
        e('s_barrier')
        e.reset(vmq=[set()])
        self.tick_dump(6, 0 if name == 'qkv' else 1, 112)

    def qkv(self):
        e = self.e
        sH, sSUB, sT, sQ = 62, 63, 64, 65
        e(f's_mul_i32 s{sH}, s{sJ}, 9363\ns_lshr_b32 s{sH}, s{sH}, 16\ns_mul_i32 s54, s{sH}, 7\ns_sub_u32 s{sSUB}, s{sJ}, s54')
        self.srd(SRD_A, sWK, 1 << 22); self.srd(SRD_B, sWV, 1 << 22); self.srd(SRD_X, sWQ, 1 << 22)
        e(f'v_lshrrev_b32 v1, 4, v0\nv_lshlrev_b32 v1, 16, v1\nv_and_b32 v2, 15, v0\nv_lshlrev_b32 v2, 2, v2')
        e(f's_lshl_b32 s54, s{sH}, 8\ns_lshl_b32 s55, s{sW}, 6\ns_add_u32 s54, s54, s55\nv_add3_u32 v1, v1, v2, s54\nv_add_u32 v2, 8192, v1')
        W = lambda m, p, k: [256, 384, 128][m] + (k * 2 + p) * 4
        groups = []
        for m, srd in ((0, SRD_A), (1, SRD_B), (2, SRD_X)):
            for k2 in range(8):
                ents = []
                for k in (2 * k2, 2 * k2 + 1):
                    for i in range(4):
                        ents.append((f's_mov_b32 s54, {(32*k + 2*i) * 8192}', W(m, 0, k) + i, W(m, 1, k) + i))
                groups.append((srd, ents))
        if self.o.get('two', 1):
            L = self.lab('two')
            e(f's_cmp_lt_u32 s{sSUB}, 3\ns_cbranch_scc1 {L}')
            self.srd(84, sWO, 1 << 22)
            e(f's_lshl_b32 s54, s61, 2\ns_add_u32 s54, s54, s{sW}\ns_lshl_b32 s54, s54, 13\nv_lshlrev_b32 v120, 7, v0')
            e.raw('buffer_load_dword v121, v120, s[84:87], s54 offen')
            e.label(L)
        self.load_pairs(groups, 16, 3, 1, 2)
        self.stamp(2)
        self.wait_counter(192, 128, 8)
        self.stamp(3)
        self.dstamp(8, 112)
        ACC = lambda m, p, t: 16 + ((m * 2 + p) * 2 + t) * 4
        def mf(k, X0, X1):
            for m in (0, 1, 2):
                for p in (0, 1):
                    for t, X in ((0, X0), (1, X1)):
                        d = v(ACC(m, p, t), 4); c = '0' if k == 0 else d
                        if m == 1: e(f'v_mfma_f32_16x16x32_bf16 {d}, {v(X,4)}, {R(W(m,p,k),4)}, {c}')
                        else: e(f'v_mfma_f32_16x16x32_bf16 {d}, {R(W(m,p,k),4)}, {v(X,4)}, {c}')
        def flagoff(sd):
            e(f's_lshl_b32 s{sd}, s{sH}, 10\ns_lshl_b32 s55, s{sW}, 8\ns_add_u32 s{sd}, s{sd}, s55\ns_lshl_b32 s55, s{sT}, 2\ns_add_u32 s{sd}, s{sd}, s55\ns_add_u32 s{sd}, s{sd}, {F_KVX}')
        def epi():
            e(f's_lshl_b32 s54, s{sT}, 19\ns_lshl_b32 s55, s{sH}, 14\ns_add_u32 s54, s54, s55\ns_lshl_b32 s55, s{sW}, 12\ns_add_u32 s54, s54, s55\ns_add_u32 s54, s54, {KV}')
            for t in (0, 1):
                o = 112 + 4 * t
                for i in range(4): e(f'v_cvt_pk_bf16_f32 v{o+i}, v{ACC(0,0,t)+i}, v{ACC(0,1,t)+i}')
                e(f'buffer_store_dwordx4 {v(o,4)}, v1, {WSR}, s54 offen offset:{1024*t} sc1')
            for p in (0, 1):
                o = 120 + 4 * p
                for t in (0, 1):
                    for hh in (0, 1): e(f'v_cvt_pk_bf16_f32 v{o+2*t+hh}, v{ACC(1,p,t)+2*hh}, v{ACC(1,p,t)+2*hh+1}')
                e(f'buffer_store_dwordx4 {v(o,4)}, v1, {WSR}, s54 offen offset:{2048+1024*p} sc1')
            for t in (0, 1):
                o = 64 + 4 * t
                for i in range(4): e(f'v_cvt_pk_bf16_f32 v{o+i}, v{ACC(2,0,t)+i}, v{ACC(2,1,t)+i}')
                e(f'ds_write_b128 v6, {v(o,4)} offset:{4096*t}')
            e('v_add_u32 v6, 8192, v6')
        e(f'v_lshlrev_b32 v6, 4, v0\ns_lshl_b32 s55, s{sW}, 10\ns_add_u32 s55, s55, 65536\nv_add_u32 v6, s55, v6')
        e(f's_cmp_lt_u32 s{sSUB}, 3\ns_cselect_b32 s54, 0, 3\ns_add_u32 s{sSUB}, s{sSUB}, s54\ns_mov_b32 s{sT}, s{sSUB}')
        self._nst = 5
        self.row_loop('qkv', sT, 7, mf, None, epi, flagoff)
        self.stamp(4)

    def ffn1(self):
        e = self.e
        sT, sPH = 64, 65
        e(f's_cmp_ge_u32 s{sJ}, 220\ns_cbranch_scc1 L_noffn')
        e(f's_mul_i32 s{sT}, s{sJ}, 5958\ns_lshr_b32 s{sT}, s{sT}, 16\ns_mul_i32 s54, s{sT}, 11\ns_sub_u32 s54, s{sJ}, s54')
        e(f's_lshl_b32 s{sPH}, s54, 2\ns_add_u32 s{sPH}, s{sPH}, s{sW}')
        self.srd(SRD_A, sWG, 512 * 2752); self.srd(SRD_B, sWU, 512 * 2752)
        e(f'v_lshrrev_b32 v1, 4, v0\nv_mul_u32_u24 v1, {8*2752}, v1\nv_and_b32 v2, 15, v0\nv_lshlrev_b32 v2, 2, v2')
        e(f's_lshl_b32 s54, s{sPH}, 6\nv_add3_u32 v1, v1, v2, s54\nv_add_u32 v2, 2752, v1')
        W = lambda m, p, k: 256 + m * 128 + (k * 2 + p) * 4
        groups = []
        for m, srd in ((0, SRD_A), (1, SRD_B)):
            for k2 in range(8):
                ents = []
                for k in (2 * k2, 2 * k2 + 1):
                    for i in range(4):
                        ents.append((f's_mov_b32 s54, {(32*k + 2*i) * 2752}', W(m, 0, k) + i, W(m, 1, k) + i))
                groups.append((srd, ents))
        self.load_pairs(groups, 16, 3, 1, 2)
        ACC = lambda m, p, t: 16 + ((m * 2 + p) * 2 + t) * 4
        def mf(k, X0, X1):
            for m in (0, 1):
                for p in (0, 1):
                    for t, X in ((0, X0), (1, X1)):
                        d = v(ACC(m, p, t), 4); c = '0' if k == 0 else d
                        e(f'v_mfma_f32_16x16x32_bf16 {d}, {R(W(m,p,k),4)}, {v(X,4)}, {c}')
        def flagoff(sd):
            e(f's_lshl_b32 s{sd}, s{sT}, 8\ns_lshl_b32 s55, s{sPH}, 2\ns_add_u32 s{sd}, s{sd}, s55\ns_add_u32 s{sd}, s{sd}, {F_HFL}')
        def epi():
            e(f's_mul_i32 s54, s{sT}, {2*44*1024}\ns_lshl_b32 s55, s{sPH}, 10\ns_add_u32 s54, s54, s55\ns_add_u32 s54, s54, {HH}\ns_add_u32 s55, s54, {44*1024}')
            e('s_mov_b32 s59, 0xffff0000')
            for t in (0, 1):
                o = 112 + 4 * t
                for i in range(4):
                    g0, g1, u0, u1 = ACC(0, 0, t) + i, ACC(0, 1, t) + i, ACC(1, 0, t) + i, ACC(1, 1, t) + i
                    e(f'v_cvt_pk_bf16_f32 v120, v{g0}, v{g1}\nv_cvt_pk_bf16_f32 v121, v{u0}, v{u1}')
                    e(f'v_lshlrev_b32 v{g0}, 16, v120\nv_and_b32 v{g1}, s59, v120\nv_lshlrev_b32 v{u0}, 16, v121\nv_and_b32 v{u1}, s59, v121')
                    e(f'v_max_f32 v{g0}, 0, v{g0}\nv_max_f32 v{g1}, 0, v{g1}')
                    e(f'v_mul_f32 v{g0}, v{g0}, v{u0}\nv_mul_f32 v{g1}, v{g1}, v{u1}')
                    e(f'v_cvt_pk_bf16_f32 v{o+i}, v{g0}, v{g1}')
                e(f'buffer_store_dwordx4 {v(o,4)}, v1, {WSR}, s{54+t} offen sc1')
        self._nst = 3
        self.row_loop('ffn', sT, 20, mf, None, epi, flagoff)
        e.label('L_noffn')
        e.reset(); e('s_waitcnt vmcnt(0)')
        self.stamp(5)

    def tailphase(self):
        e = self.e
        sH, sSUB = 62, 63
        sA, sF, sCS, sQT, sEH, sQL, sSC = 64, 65, 66, 67, 68, 69, 70
        MK = 72
        e(f's_lshr_b32 s{sF}, s{sJ}, 5\ns_bfe_u32 s54, s{sJ}, 0x10004\ns_mul_i32 s54, s54, 7\ns_add_u32 s{sF}, s{sF}, s54\ns_and_b32 s{sCS}, s{sJ}, 15\ns_mov_b32 s{sA}, s{sSUB}')
        e(f's_lshr_b32 s{sQT}, s{sW}, 1\ns_and_b32 s{sEH}, s{sW}, 1')
        self.srd(SRD_A, sWO, 1 << 22); self.srd(SRD_B, sWD, 1376 * 1024)
        e(f'v_lshrrev_b32 v1, 4, v0\nv_lshlrev_b32 v1, 13, v1\nv_and_b32 v2, 15, v0\nv_lshlrev_b32 v2, 2, v2')
        e(f's_lshl_b32 s54, s{sCS}, 6\nv_add3_u32 v1, v1, v2, s54\nv_add_u32 v2, 1024, v1')
        e(f's_lshl_b32 s56, s{sW}, 20\ns_mul_i32 s57, s{sW}, {11*32*1024}')
        WO = lambda p, k: 256 + (k * 2 + p) * 4
        WD = lambda p, k: 168 + (k * 2 + p) * 4
        groups = []
        for k in range(11):
            groups.append((SRD_B, [(f's_add_u32 s54, s57, {(32*k + 2*i) * 1024}', WD(0, k) + i, WD(1, k) + i) for i in range(4)]))
        for k in range(32):
            groups.append((SRD_A, [(f's_add_u32 s54, s56, {(32*k + 2*i) * 1024}', WO(0, k) + i, WO(1, k) + i) for i in range(4)]))
        self.load_pairs(groups, 16, 7, 1, 2)
        self.srd(SRD_A, sOUT, 2048 * 1024); self.srd(SRD_X, sX, 2048 * 1024)
        L16, L8, ONE, QA, FO, FH, RW, RR, XO, PG = 1, 2, 3, 4, 5, 6, 7, 8, 9, 10
        e(f'v_lshlrev_b32 v{L16}, 4, v0\nv_lshlrev_b32 v{L8}, 3, v0\nv_mov_b32 v{ONE}, 1')
        e(f's_lshl_b32 s54, s{sQT}, 12\ns_add_u32 s54, s54, 65536\nv_add_u32 v{QA}, s54, v{L16}')
        e(f'v_and_b32 v11, 15, v0\nv_and_b32 v{FO}, 31, v0\nv_lshlrev_b32 v{FO}, 7, v{FO}')
        e(f'v_min_u32 v{FH}, 10, v0\nv_lshlrev_b32 v{FH}, 2, v{FH}\ns_mul_i32 s54, s{sW}, 44\nv_add_u32 v{FH}, s54, v{FH}')
        e(f's_lshl_b32 s54, s{sW}, 12\nv_add_u32 v{RW}, s54, v{L16}')
        e(f'v_lshrrev_b32 v12, 4, v0\nv_bfe_u32 v13, v0, 2, 2\nv_and_b32 v14, 3, v0')
        e(f'v_lshlrev_b32 v13, 8, v13\nv_lshlrev_b32 v15, 4, v12\nv_lshlrev_b32 v14, 2, v14\nv_add3_u32 v{RR}, v13, v15, v14')
        e(f's_lshl_b32 s54, s{sW}, 6\nv_add_u32 v{RR}, s54, v{RR}')
        e(f'v_lshlrev_b32 v12, 10, v12\nv_lshlrev_b32 v13, 2, v11\ns_lshl_b32 s54, s{sW}, 12\ns_lshl_b32 s55, s{sCS}, 6\ns_add_u32 s54, s54, s55\nv_add3_u32 v{XO}, v12, v13, s54')
        e(f'v_and_b32 v{PG}, 3, v0\nv_lshlrev_b32 v{PG}, 2, v{PG}')
        KMA = 160
        e(f'v_lshrrev_b32 v12, 2, v11\nv_lshlrev_b32 v12, 7, v12\nv_and_b32 v13, 1, v11\nv_lshlrev_b32 v13, 6, v13\nv_and_b32 v14, 48, v0\nv_add3_u32 v{KMA}, v12, v13, v14')
        e(f's_lshl_b32 s54, s{sQT}, 4\nv_add_u32 v12, s54, v11\nv_lshrrev_b32 v13, 4, v0\nv_lshlrev_b32 v13, 2, v13\nv_sub_u32 v12, v12, v13')
        for tk in (0, 1):
            for i in range(4):
                e(f'v_cmp_le_i32 {s(MK+2*(4*tk+i),2)}, {16*tk+i}, v12')
        e(f's_mov_b32 s{sSC}, {fbits(CSC):#x}\ns_mov_b32 s71, 0xffff0000')
        self.stamp(6)
        self.dstamp(9, 112)
        XR = 11; AS, AF = 16, 24
        Q, V, S0, S1, MX = 32, 48, 64, 68, 161
        RING = 72; NR = 22
        K, KM, VM, SMm, PX, PM, OA = 72, 104, 120, 128, 132, 136, 140
        def prepA():
            L = self.lab('pa')
            e(f's_cmp_ge_u32 s{sA}, 64\ns_cbranch_scc1 {L}')
            e(f's_lshl_b32 s56, s{sA}, 19\ns_lshl_b32 s57, s{sH}, 14\ns_add_u32 s56, s56, s57\ns_add_u32 s56, s56, {KV}')
            e(f's_lshl_b32 s57, s{sEH}, 13\ns_add_u32 s57, s57, s56\ns_add_u32 s58, s57, 4096')
            for k in range(4):
                for tk in (0, 1):
                    e(f'buffer_load_dwordx4 {v(K+8*k+4*tk,4)}, v{L16}, {WSR}, s56 offen offset:{1024*tk} sc1')
                if k < 3: e('s_add_u32 s56, s56, 4096')
            for u in (0, 1):
                for p in (0, 1):
                    e(f'buffer_load_dwordx4 {v(V+8*u+4*p,4)}, v{L16}, {WSR}, s{57+u} offen offset:{2048+1024*p} sc1')
            for k in range(4): e(f'ds_read_b128 {v(Q+4*k,4)}, v{QA} offset:{1024*k}')
            for k in range(4):
                for tk, S_ in ((0, S0), (1, S1)):
                    e(f'v_mfma_f32_16x16x32_bf16 {v(S_,4)}, {v(K+8*k+4*tk,4)}, {v(Q+4*k,4)}, {"0" if k == 0 else v(S_,4)}')
            e(f'v_add_u32 v{QA}, 8192, v{QA}')
            e(f'v_mov_b32 v13, {fbits(-1e9*math.log2(math.e)):#x}')
            for tk, S_ in ((0, S0), (1, S1)):
                for i in range(4):
                    e(f'v_mul_f32 v{S_+i}, s{sSC}, v{S_+i}')
                    e(f'v_cndmask_b32 v{S_+i}, v13, v{S_+i}, {s(MK+2*(4*tk+i),2)}')
            e(f'v_max3_f32 v{MX}, v{S0}, v{S0+1}, v{S0+2}\nv_max3_f32 v{MX}, v{MX}, v{S0+3}, v{S1}\nv_max3_f32 v{MX}, v{MX}, v{S1+1}, v{S1+2}\nv_max_f32 v{MX}, v{MX}, v{S1+3}')
            e.label(L); e('s_waitcnt vmcnt(0) lgkmcnt(0)')
        def prepF():
            L = self.lab('pf')
            e(f's_cmp_ge_u32 s{sF}, 128\ns_cbranch_scc1 {L}')
            e(f's_lshl_b32 s56, s{sF}, 14')
            e(f'buffer_load_dword v{XR}, v{XO}, {s(SRD_X,4)}, s56 offen')
            e(f's_lshr_b32 s57, s{sF}, 1\ns_lshl_b32 s57, s57, 8\ns_add_u32 s57, s57, {F_HFL}')
            self.wait_flags(FH, 's57', 12)
            e.reset()
            e(f's_mul_i32 s57, s{sF}, {44*1024}\ns_mul_i32 s58, s{sW}, {11*1024}\ns_add_u32 s57, s57, s58\ns_add_u32 s57, s57, {HH}')
            for k in range(11):
                if k and k % 4 == 0: e('s_add_u32 s57, s57, 4096')
                e(f'buffer_load_dwordx4 {v(RING+4*k,4)}, v{L16}, {WSR}, s57 offen offset:{1024*(k%4)} sc1')
            for k in range(11):
                for p in (0, 1):
                    d = v(AF + 4 * p, 4)
                    e(f'v_mfma_f32_16x16x32_bf16 {d}, {R(WD(p,k),4)}, {v(RING+4*k,4)}, {"0" if k == 0 else d}')
            e.label(L); e('s_waitcnt vmcnt(0) lgkmcnt(0)')
        prepA(); prepF()
        e(f's_lshl_b32 s{sQL}, s{sH}, 7\ns_add_u32 s{sQL}, s{sQL}, {F_PROG}')
        DA = 162
        e(f'v_mov_b32 v{DA}, 32768')
        e.label('L_task')
        e.reset()
        e(f's_lshr_b32 s54, s{sF}, 1\ns_min_u32 s54, s54, s{sA}\ns_cmp_ge_u32 s54, 64\ns_cbranch_scc1 L_WEND')
        e(f's_cmp_lg_u32 s{sW}, 0\ns_cbranch_scc1 L_join')
        e(f's_lshr_b32 s54, s{sF}, 1\ns_min_u32 s57, s54, 63\ns_lshl_b32 s57, s57, 12\ns_add_u32 s57, s57, {F_OFL}')
        e.label('L_poll')
        e(f'buffer_load_dword v12, v{PG}, {WSR}, s{sQL} offen sc1')
        e(f's_mov_b32 exec_hi, 0\nbuffer_load_dword v13, v{FO}, {WSR}, s57 offen sc1')
        e('s_waitcnt vmcnt(0)')
        e(f's_cmp_ge_u32 s{sA}, 64\ns_cbranch_scc1 L_noattn')
        e(f's_mov_b32 s56, 1\nv_cmp_ge_u32 vcc, s{sA}, v12\ns_cbranch_vccz L_dec')
        e(f's_cmp_le_u32 s{sA}, s54\ns_cbranch_scc1 L_idle')
        e(f's_cmp_lt_u32 s{sA}, {self.o.get("hfrom", 36)}\ns_cbranch_scc1 L_noattn')
        e(f'v_readfirstlane_b32 s55, v12\ns_add_u32 s55, s55, {self.o.get("hold", 0)}\ns_min_u32 s58, s{sA}, 61\ns_cmp_le_u32 s58, s55\ns_cbranch_scc1 L_idle')
        e.label('L_noattn')
        e(f's_mov_b32 s56, 0\ns_cmp_ge_u32 s{sF}, 128\ns_cbranch_scc1 L_dec')
        e(f's_mov_b32 s56, 2\nv_cmp_eq_u32 vcc, 0, v13\ns_cbranch_vccz L_dec')
        e.label('L_idle')
        e(f's_mov_b32 s56, 0\ns_add_u32 s{sSPIN}, s{sSPIN}, 1\ns_cmp_gt_u32 s{sSPIN}, {1 << 17}\ns_cbranch_scc1 L_dec')
        e(f's_sleep {self.o.get("slp", 2)}\nv_cmp_le_u32 vcc, {self.o.get("slpt", 60)}, v12\ns_cbranch_vccnz L_poll')
        e(f's_sleep {self.o.get("slp2", 20)}\ns_branch L_poll')
        e.label('L_dec')
        e('s_mov_b64 exec, -1')
        e(f'v_mov_b32 v12, s56\nds_write_b32 v{DA}, v12\ns_waitcnt lgkmcnt(0)')
        e.label('L_join')
        e(f's_barrier\nds_read_b32 v12, v{DA}\ns_waitcnt lgkmcnt(0)\nv_xor_b32 v{DA}, 4, v{DA}\nv_readfirstlane_b32 s56, v12')
        e('s_cmp_eq_u32 s56, 1\ns_cbranch_scc1 L_attn\ns_cmp_eq_u32 s56, 0\ns_cbranch_scc1 L_WEND')
        e.label('L_final')
        e.reset()
        self.stamp2(3)
        e(f's_lshl_b32 s57, s{sF}, 17\ns_lshl_b32 s58, s{sW}, 15\ns_add_u32 s57, s57, s58\ns_add_u32 s57, s57, {OO}')
        def old(k):
            if k and k % 4 == 0: e('s_add_u32 s57, s57, 4096')
            e(f'buffer_load_dwordx4 {v(RING+4*(k%NR),4)}, v{L16}, {WSR}, s57 offen offset:{1024*(k%4)} sc1')
        for k in range(NR): old(k)
        for k in range(32):
            for p in (0, 1):
                d = v(AS + 4 * p, 4)
                e(f'v_mfma_f32_16x16x32_bf16 {d}, {R(WO(p,k),4)}, {v(RING+4*(k%NR),4)}, {"0" if k == 0 else d}')
            if k + NR < 32: old(k + NR)
        self.stamp2(4)
        for q in range(4): e(f'ds_write_b128 v{RW}, {v(AS+4*q,4)} offset:{1024*q}')
        e('s_waitcnt lgkmcnt(0)\ns_barrier')
        self.stamp2(5)
        T = RING
        for w in range(4):
            for q in range(4): e(f'ds_read_b32 v{T+4*w+q}, v{RR} offset:{4096*w+1024*q}')
        e(f'v_xor_b32 v{RW}, 0x4000, v{RW}')
        for q in range(4): e(f'v_add_f32 v{T+q}, v{T+q}, v{T+4+q}')
        for q in range(4): e(f'v_add_f32 v{T+8+q}, v{T+8+q}, v{T+12+q}')
        e(f'v_xor_b32 v{RR}, 0x4000, v{RR}')
        for q in range(4): e(f'v_add_f32 v{T+q}, v{T+q}, v{T+8+q}')
        a0, a1, f0, f1, t0, t1, u0, u1 = range(T, T + 8)
        e(f'v_cvt_pk_bf16_f32 v{t0}, v{a0}, v{a1}\nv_cvt_pk_bf16_f32 v{t1}, v{f0}, v{f1}')
        e(f'v_lshlrev_b32 v{a0}, 16, v{t0}\nv_and_b32 v{a1}, s71, v{t0}\nv_lshlrev_b32 v{f0}, 16, v{t1}\nv_and_b32 v{f1}, s71, v{t1}')
        e(f's_mov_b32 s57, {fbits(-math.log2(math.e)):#x}\ns_lshl_b32 s56, s{sF}, 14')
        e(f'v_mul_f32 v{u0}, s57, v{f0}\nv_mul_f32 v{u1}, s57, v{f1}\nv_exp_f32 v{u0}, v{u0}\nv_exp_f32 v{u1}, v{u1}')
        e(f'v_add_f32 v{u0}, 1.0, v{u0}\nv_add_f32 v{u1}, 1.0, v{u1}\nv_rcp_f32 v{u0}, v{u0}\nv_rcp_f32 v{u1}, v{u1}')
        e(f'v_mul_f32 v{f0}, v{f0}, v{u0}\nv_mul_f32 v{f1}, v{f1}, v{u1}\nv_cvt_pk_bf16_f32 v{t1}, v{f0}, v{f1}')
        e(f'v_lshlrev_b32 v{f0}, 16, v{t1}\nv_and_b32 v{f1}, s71, v{t1}\nv_mul_f32 v{a0}, v{a0}, v{f0}\nv_mul_f32 v{a1}, v{a1}, v{f1}')
        e(f'v_cvt_pk_bf16_f32 v{t0}, v{a0}, v{a1}\nv_lshlrev_b32 v{a0}, 16, v{t0}\nv_and_b32 v{a1}, s71, v{t0}')
        e(f'v_lshlrev_b32 v{f0}, 16, v{XR}\nv_and_b32 v{f1}, s71, v{XR}\nv_add_f32 v{a0}, v{a0}, v{f0}\nv_add_f32 v{a1}, v{a1}, v{f1}')
        e(f'v_cvt_pk_bf16_f32 v{t0}, v{a0}, v{a1}')
        e(f'buffer_store_dword v{t0}, v{XO}, {s(SRD_A,4)}, s56 offen')
        e(f's_add_u32 s{sF}, s{sF}, 14')
        prepF()
        e('s_branch L_task')
        e.label('L_attn')
        e.reset()
        self.stamp2(0)
        e(f's_lshl_b32 s56, s{sA}, 18\ns_lshl_b32 s57, s{sH}, 13\ns_add_u32 s56, s56, s57\ns_add_u32 s56, s56, {KVM}')
        e(f's_add_u32 s57, s56, 4096\ns_lshl_b32 s58, s{sEH}, 12\ns_add_u32 s58, s58, s56')
        for k in range(4):
            e(f'buffer_load_dwordx4 {v(KM+4*k,4)}, v{KMA}, {WSR}, s{56+k//2} offen offset:{2048*(k%2)} sc1')
        for u in (0, 1):
            e(f'buffer_load_dwordx2 {v(VM+4*u,2)}, v{L8}, {WSR}, s58 offen offset:{2048*u+1024} sc1')
        e(f's_lshl_b32 s56, s{sA}, 1\ns_add_u32 s56, s56, s{sQT}\ns_lshl_b32 s57, s56, 17\ns_lshl_b32 s58, s{sH}, 12\ns_add_u32 s57, s57, s58')
        e(f's_lshl_b32 s58, s{sEH}, 11\ns_add_u32 s57, s57, s58\ns_add_u32 s57, s57, {OO}')
        e(f's_lshl_b32 s56, s{sA}, 12\ns_lshl_b32 s58, s{sH}, 7\ns_add_u32 s56, s56, s58\ns_add_u32 s56, s56, {F_OFL}')
        e(f'v_mov_b32 v{PM+1}, 0')
        for k in range(4):
            e(f'v_mfma_f32_16x16x32_bf16 {v(SMm,4)}, {v(KM+4*k,4)}, {v(Q+4*k,4)}, {"0" if k == 0 else v(SMm,4)}')
        for u in (0, 1): e(f'v_mov_b32 v{VM+4*u+2}, v{VM+4*u+1}\nv_mov_b32 v{VM+4*u+3}, v{VM+4*u}')
        self.stamp2(1)
        e(f'v_mul_f32 v{SMm}, s{sSC}, v{SMm}\nv_mul_f32 v{SMm+1}, s{sSC}, v{SMm+1}\nv_max3_f32 v14, v{MX}, v{SMm}, v{SMm+1}')
        self.red_g('v_max_f32', 14, 15)
        vals = [S0 + i for i in range(4)] + [S1 + i for i in range(4)] + [SMm, SMm + 1]
        for x in vals: e(f'v_sub_f32 v{x}, v{x}, v14')
        for x in vals: e(f'v_exp_f32 v{x}, v{x}')
        e(f'v_add_f32 v14, v{vals[0]}, v{vals[1]}')
        for x in vals[2:]: e(f'v_add_f32 v14, v14, v{x}')
        self.red_g('v_add_f32', 14, 15)
        e('v_rcp_f32 v14, v14')
        for x in vals: e(f'v_mul_f32 v{x}, v{x}, v14')
        for tk, S_ in ((0, S0), (1, S1)):
            for hh in (0, 1): e(f'v_cvt_pk_bf16_f32 v{PX+2*tk+hh}, v{S_+2*hh}, v{S_+2*hh+1}')
        e(f'v_cvt_pk_bf16_f32 v{PM}, v{SMm}, v{SMm+1}')
        for u in (0, 1):
            for p in (0, 1):
                e(f'v_mfma_f32_16x16x32_bf16 {v(OA + 8 * u + 4 * p, 4)}, {v(V+8*u+4*p,4)}, {v(PX,4)}, 0')
        for u in (0, 1):
            for p in (0, 1):
                d = v(OA + 8 * u + 4 * p, 4)
                e(f'v_mfma_f32_16x16x16_bf16 {d}, {v(VM+4*u+2*p,2)}, {v(PM,2)}, {d}')
        for u in (0, 1):
            for i in range(4): e(f'v_cvt_pk_bf16_f32 v{KM+4*u+i}, v{OA+8*u+i}, v{OA+8*u+4+i}')
            e(f'buffer_store_dwordx4 {v(KM+4*u,4)}, v{L16}, {WSR}, s57 offen offset:{1024*u} sc1')
        self.stamp2(6)
        e('s_waitcnt vmcnt(0)')
        self.stamp2(2)
        e(f's_barrier\ns_cmp_lg_u32 s{sW}, 0\ns_cbranch_scc1 L_nofl')
        e(f's_mov_b64 exec, 1\nbuffer_store_dword v{ONE}, off, {WSR}, s56 sc1\ns_mov_b64 exec, -1')
        e.label('L_nofl'); e.reset()
        e(f's_cmp_lt_u32 s{sA}, 3\ns_cselect_b32 s54, 3, 7\ns_add_u32 s{sA}, s{sA}, s54')
        prepA()
        e('s_branch L_task')
        e.label('L_WEND')
        e.reset()
        self.dstamp(7, 112)
        self.stamp(7)
        if self.dev:
            for idx in range(7):
                e.raw(f'v_mov_b32 v112, s{4+2*idx}'); e.raw(f'buffer_store_dword v112, off, {WSR}, s97 offset:{4*(idx+1)}')
        e('s_branch L_END')

    def chain(self):
        e = self.e; o = self.o
        e.label('L_CHAIN'); e.reset()
        self.dstamp(3, 6)
        sH = sJ
        LW, LMEM, LTR, LZ = 0, 131072, 139264, 144384
        SXO = 14336
        TRS = 1280
        L16, L8, IDX, H1S, H2S, MEMW, MEMR, WST, TRW, KTR, Q0R, Q1R, QQR, K2R, LN0, OW, OR_, PFA, PFL, FLGV, VMK = \
            0, 1, 2, 3, 4, 5, 6, 9, 10, 11, 12, 13, 14, 15, 16, 17, 18, 19, 20, 21, 22
        SEL, ONES, MEMA, ACK, ACQ, ACV, KX, VX, SX, SM_, ST = 24, 28, 32, 64, 72, 80, 88, 96, 104, 108, 112
        seq = []
        for m in 'qkv':
            for sl in (0, 1):
                for p in (0, 1): seq.append((m, sl, p))
        for m in 'qkv':
            for sl in range(2, 8):
                for p in (0, 1): seq.append((m, sl, p))
        for b in range(4): seq.append(('o', 0, b))
        for b in range(4):
            for sl in (1, 2, 3): seq.append(('o', sl, b))
        bA, bB, bC, bD = ST, ST + 8, KX, VX
        bE, bF, bG = MEMA + 8, MEMA + 16, MEMA + 24
        staged = {1: bC, 3: bD, 5: bA, 7: bB, 2: bE, 4: bF, 6: bG, 30: bA, 33: bB, 39: bA, 38: bB, 48: bB, 49: bA, 61: bD, 62: bA, 63: bB}
        slot = {n: i for i, n in enumerate(sorted(staged))}
        pool = list(range(256, 512, 8)) + list(range(128, 256, 8))
        home = {}; pos = {key: n for n, key in enumerate(seq)}
        gorder = [(m, sl) for m in o.get('mo', 'kvq') for sl in (0, 2, 4, 6, 1, 3, 5, 7)]
        for key in [(m, sl, p) for m, sl in gorder for p in (0, 1)] + [k_ for k_ in seq if k_[0] == 'o']:
            home[key] = None if pos[key] in staged else pool.pop(0)
        assert not pool
        LN = 111
        G, C = 110, 109
        e(f'v_mov_b32 v{LN}, v0\nv_lshrrev_b32 v{G}, 4, v0\nv_and_b32 v{C}, 15, v0')
        e(f'v_lshlrev_b32 v{L8}, 3, v{LN}\nv_lshlrev_b32 v{L16}, 4, v{LN}')
        e(f's_lshl_b32 s54, s{sW}, 15\nv_add_u32 v{WST}, s54, v{L16}')
        sH1S, sH1S2, sH1L, sH2S, sH2L, sKV, sKVM, sT, sSEN, sSC, sPROG, sFL = 60, 61, 62, 63, 64, 65, 66, 67, 68, 69, 70, 71
        e(f's_mov_b32 s{sSEN}, {SENT:#x}\ns_mov_b32 s{sSC}, {fbits(CSC):#x}\ns_mov_b32 s58, 0')
        e(f's_lshl_b32 s54, s{sH}, 2\ns_add_u32 s54, s54, s{sW}\ns_lshl_b32 s{sH1L}, s54, 11\ns_add_u32 s{sH1L}, s{sH1L}, {H1}')
        e(f's_mov_b32 s{sH1S}, {H1}\ns_mov_b32 s{sH1S2}, {H1+4096}')
        for i in range(4): e(f'v_mov_b32 v{SX+i}, s{sSEN}')
        e(f's_xor_b32 s55, s{sH1L}, 0x40000')
        for sb in (sH1L, 55):
            for m in (0, 1): e(f'buffer_store_dwordx4 {v(SX,4)}, v{L16}, {WSR}, s{sb} offen offset:{1024*m}')
        e(f's_lshr_b32 s54, s{sH}, 3\ns_bfe_u32 s55, s{sH}, 0x20001\ns_and_b32 s56, s{sH}, 1')
        e(f's_lshr_b32 s59, s55, 1\ns_and_b32 s55, s55, 1')
        e(f's_lshl_b32 s57, s{sW}, 1\ns_add_u32 s57, s57, s56\ns_lshl_b32 s57, s57, 10\ns_lshl_b32 s58, s54, 8\ns_add_u32 s57, s57, s58\ns_lshl_b32 s58, s55, 7\ns_add_u32 s57, s57, s58\ns_lshl_b32 s58, s59, 5\ns_add_u32 s57, s57, s58')
        e(f'v_lshrrev_b32 v100, 1, v{G}\nv_lshlrev_b32 v100, 6, v100\nv_and_b32 v102, 1, v{G}\nv_lshlrev_b32 v102, 4, v102\nv_add_u32 v100, v100, v102')
        e(f'v_lshlrev_b32 v101, 2, v{C}\nv_add3_u32 v{H2S}, v100, v101, s57')
        e(f's_mov_b32 s{sH2S}, {H2}\ns_lshl_b32 s{sH2L}, s{sW}, 11\ns_add_u32 s{sH2L}, s{sH2L}, {H2}')
        self.srd(SRD_A, sMEM, 8192)
        e(f's_lshl_b32 s57, s55, 12\ns_lshl_b32 s58, s54, 8\ns_add_u32 s57, s57, s58\ns_lshl_b32 s58, s56, 7\ns_add_u32 s57, s57, s58\ns_lshl_b32 s58, s{sW}, 2\ns_add_u32 s57, s57, s58\ns_lshl_b32 s58, s59, 1\ns_add_u32 s57, s57, s58')
        e(f'v_lshlrev_b32 v100, 10, v{G}\nv_lshlrev_b32 v101, 5, v{C}\nv_add_u32 v100, v100, v101')
        e(f's_mov_b32 s72, 0x000f000f\ns_mov_b32 s73, 0x000f000f\ns_mov_b32 s74, 0x00ff00ff\ns_mov_b32 s75, 0x00ff00ff')
        e(f's_mov_b64 exec, s[72:73]')
        e(f'buffer_load_ushort v20, v100, {s(SRD_A,4)}, s57 offen\nbuffer_load_ushort v21, v100, {s(SRD_A,4)}, s57 offen offset:16')
        e(f's_xor_b32 s55, s{sH2S}, 0x2000')
        e(f'buffer_store_dword v{SX}, v{H2S}, {WSR}, s55 offen')
        e(f's_mov_b64 exec, -1')
        def pub0():
            e(f'v_lshl_or_b32 v20, v21, 16, v20\nv_mov_b32 v21, -1\nv_cmp_eq_u32 vcc, s{sSEN}, v20\nv_cndmask_b32 v20, v20, v21, vcc')
            e(f's_mov_b64 exec, s[72:73]\nbuffer_store_dword v20, v{H2S}, {WSR}, s{sH2S} offen\ns_mov_b64 exec, -1')
        self.srd(SRD_A, sWO, 1 << 22)
        e(f'v_lshlrev_b32 v100, 12, v{G}\nv_lshlrev_b32 v101, 4, v{C}')
        e(f's_lshl_b32 s54, s{sH}, 17\ns_lshl_b32 s55, s{sW}, 8\ns_add_u32 s54, s54, s55\nv_add3_u32 v100, v100, v101, s54')
        TB = 24
        def stage_write(key, regs):
            sl = slot[pos[key]]
            e(f'ds_write_b128 v{WST}, {v(regs,4)} offset:{sl*2048}\nds_write_b128 v{WST}, {v(regs+4,4)} offset:{sl*2048+1024}')
        def arrive():
            e('s_barrier')
            L = self.lab('arr')
            e(f's_cmp_lg_u32 s{sW}, 0\ns_cbranch_scc1 {L}')
            e.raw(f'v_mov_b32 v102, 4'); e.raw('v_mov_b32 v103, 1'); e.raw('s_mov_b64 exec, 1')
            e.raw(f'global_atomic_add v102, v103, {s(sDBG,2)}'); e.raw('s_mov_b64 exec, -1')
            e.label(L)
        for u in range(4):
            e(f's_lshl_b32 s54, s{sW}, 3\ns_add_u32 s54, s54, {2*u}\ns_lshr_b32 s{56+u}, 0x93d2e1e4, s54\ns_and_b32 s{56+u}, s{56+u}, 3\ns_lshl_b32 s{80+u}, s{56+u}, 14\ns_lshl_b32 s{56+u}, s{56+u}, 15')
        SRD_K = 84
        self.srd(SRD_K, sWK, 1 << 22); self.srd(SRD_B, sWQ, 1 << 22); self.srd(SRD_X, sWV, 1 << 22)
        PV_, BW, BR = 101, 104, 105
        e(f's_lshr_b32 s54, s{sW}, 1\ns_lshl_b32 s54, s54, 20\ns_and_b32 s55, s{sW}, 1\ns_lshl_b32 s89, s55, 18\ns_add_u32 s54, s54, s89\ns_lshl_b32 s89, s{sH}, 8\ns_add_u32 s54, s54, s89')
        e(f'v_lshlrev_b32 v102, 13, v{G}\nv_lshlrev_b32 v103, 4, v{C}\nv_add3_u32 v{PV_}, v102, v103, s54')
        e(f's_lshl_b32 s55, s55, 6\nv_xor_b32 v102, s55, v{L16}\ns_lshl_b32 s54, s{sW}, 12\ns_add_u32 s54, s54, {LMEM}\nv_add_u32 v{BW}, s54, v102')
        e(f'v_lshlrev_b32 v102, 2, v{C}\ns_lshl_b32 s54, s{sW}, 6\nv_add_u32 v102, s54, v102\nv_and_b32 v103, 1, v{G}\nv_lshlrev_b32 v103, 6, v103\nv_xor_b32 v102, v102, v103')
        e(f'v_lshlrev_b32 v103, 12, v{G}\nv_add_u32 v102, v102, v103')
        for u in range(4): e(f's_lshr_b32 s54, s{80+u}, 5\ns_add_u32 s54, s54, {LMEM}\nv_add_u32 v{BR+u}, s54, v102')
        RB, TT = 2, 102
        rbk = list(range(88, 100)) + [12, 13, 14, 15]
        def put(d, Y, X, sel):
            if d < 256: e(f'v_perm_b32 v{d}, v{Y}, v{X}, s{sel}')
            else: e(f'v_perm_b32 v{TT + (d & 1)}, v{Y}, v{X}, s{sel}\nv_accvgpr_write_b32 a{d-256}, v{TT + (d & 1)}')
        def wo_issue(sl, t0):
            for rp in range(4):
                row = 16 * (rp >> 1) + 2 * (rp & 1)
                e(f's_add_u32 s54, s{56+sl}, {row*1024}')
                e(f'buffer_load_dwordx4 {v(t0+8*rp,4)}, v100, {s(SRD_A,4)}, s54 offen')
                e(f'buffer_load_dwordx4 {v(t0+8*rp+4,4)}, v100, {s(SRD_A,4)}, s54 offen offset:1024')
        def wo_finish(sl, t0):
            for bb in range(4):
                key = ('o', sl, bb); d = home[key]; dd = ST + 8 * (bb & 1) if d is None else d
                for rho in range(8):
                    t_ = t0 + 8 * (rho >> 1)
                    put(dd + rho, t_ + 4 + bb, t_ + bb, sPHI if rho & 1 else sPLO)
                if d is None: stage_write(key, dd)
            e('s_waitcnt lgkmcnt(0)')
        corder = [(m, x, j) for m in o.get('mo', 'kvq') for x in (0, 1) for j in range(4)]
        def pj_issue(k, t0):
            m, x, j = corder[k]; srd = {'k': SRD_K, 'q': SRD_B, 'v': SRD_X}[m]
            for i in range(4):
                row = 256 * (j >> 1) + 16 * (j & 1) + 64 * x + 4 * i
                e(f's_mov_b32 s54, {row*8192}')
                e(f'buffer_load_dwordx4 {R(t0+4*i,4)}, v{PV_}, {s(srd,4)}, s54 offen')
        def pj_finish(k, t0):
            m, x, j = corder[k]; bo = (k & 1) * 16384
            for i in range(4): e(f'ds_write_b128 v{BW}, {R(t0+4*i,4)} offset:{bo + 1024*i}')
            e('s_waitcnt lgkmcnt(0)\ns_barrier')
            for u in range(4):
                for hf in (0, 1):
                    e(f'ds_read2st64_b32 {v(rbk[4*u+2*hf],2)}, v{BR+u} offset0:{bo//256 + hf} offset1:{bo//256 + hf + 8}')
            for u in range(4):
                for p in (0, 1):
                    key = (m, 2 * u + x, p); d = home[key]; t_ = ST + 4 * u + 2 * p
                    for hf in (0, 1):
                        put(d + 2 * j + hf if d is not None else t_ + hf, rbk[4*u+2*hf] + 1, rbk[4*u+2*hf], sPHI if p else sPLO)
                    if d is None:
                        e(f'ds_write_b64 v{WST}, {v(t_,2)} offset:{slot[pos[key]]*2048 + 1024*(j>>1) + 8*(j&1)}')
        first_user = {}
        for k, (m, x, j) in enumerate(corder):
            for u in range(4):
                for p in (0, 1):
                    h_ = home[(m, 2 * u + x, p)]
                    if h_ is not None: first_user.setdefault(h_ & ~15, k)
        free = list(range(496, 255, -16))
        land = {}; nxt_g = [0]
        def pump(cap):
            while nxt_g[0] < 24 and len(e.vmq) + 4 <= cap:
                k = nxt_g[0]
                c_ = [b_ for b_ in free if first_user.get(b_, 99) >= k]
                if not c_: break
                b_ = min(c_, key=lambda x: first_user.get(x, 99)); free.remove(b_); land[k] = b_
                pj_issue(k, b_); nxt_g[0] += 1
        cap = o.get('cap', 12)
        e('s_movk_i32 s88, 0x80')
        e(f's_lshl_b32 s54, s{sH}, 10\ns_lshl_b32 s55, s{sW}, 8\ns_add_u32 s{sFL}, s54, s55\ns_add_u32 s{sFL}, s{sFL}, {F_KVX}')
        free[:] = [176, 192, 208, 224, 240, 24, 40, 56, 72]
        for b_ in (24, 40, 56, 72): first_user[b_] = 16
        def chk_issue():
            e(f'v_mov_b32 v18, 0\nglobal_load_dword v16, v18, {s(sDBG,2)} offset:4 sc1\nglobal_load_dword v17, v18, {s(sDBG,2)} offset:192 sc1')
        def chk_done():
            e(f'v_cmp_gt_u32 vcc, 32, v16\nv_cmp_gt_u32 s[76:77], s88, v17')
            e('s_or_b64 vcc, vcc, s[76:77]\ns_cbranch_vccz L_cok')
            q_ = (list(e.dsq), list(e.vmq))
            self.wait_counter(4, 32, 16); self.wait_counter(192, 128, 16)
            e.label('L_cok'); e.reset(*q_)
        pump(o.get('cap0', 20) + 7)
        pub0()
        for k in range(24):
            pj_finish(k, land[k]); free.append(land[k]); pump(o.get('cap0', 20) if k < o.get('capn', 4) else cap)
            if k == 10: arrive()
            if o.get('wst') and k in (7, 15, 23): self.stamp2({7: 4, 15: 5, 23: 6}[k])
            if k == 21: wo_issue(0, 24)
            if k == 23: chk_issue(); wo_issue(1, 56)
        wo_finish(0, 24); wo_issue(2, 24)
        wo_finish(1, 56); wo_issue(3, 56); chk_done()
        wo_finish(2, 24)
        e(f'buffer_load_dwordx2 v[22:23], off, {WSR}, s{sFL} sc1')
        wo_finish(3, 56)
        e('s_waitcnt lgkmcnt(0)\ns_barrier')
        self.dstamp(4, 100)
        self.stamp(2, (100,))
        if self.dev and o.get('wst'):
            for idx in (4, 5, 6):
                e.raw(f'v_mov_b32 v100, s{4+2*idx}'); e.raw(f'buffer_store_dword v100, off, {WSR}, s97 offset:{4*(idx-2)}')
            e.raw('s_waitcnt vmcnt(0)')
        e(f'v_bfe_u32 v100, v{C}, 1, 1\nv_mov_b32 v101, 0x4444\nv_mov_b32 v102, 0xeeee\nv_cmp_eq_u32 vcc, 1, v100\nv_cndmask_b32 v{IDX}, v101, v102, vcc')
        e(f'v_cmp_lt_u32 vcc, 7, v{C}\nv_cndmask_b32 v101, v101, v102, vcc\nv_lshl_or_b32 v{IDX}, v101, 16, v{IDX}')
        e(f'v_lshlrev_b32 v101, 1, v{G}\nv_lshrrev_b32 v102, 3, v{C}\nv_add_u32 v101, v101, v102\nv_lshlrev_b32 v101, 13, v101')
        e(f'v_and_b32 v103, 7, v{C}\nv_lshlrev_b32 v104, 3, v103\ns_lshl_b32 s54, s{sW}, 16\ns_lshl_b32 s55, s{sH}, 6\ns_add_u32 s54, s54, s55\nv_add3_u32 v{H1S}, v101, v104, s54')
        e(f's_lshl_b32 s54, s{sW}, 11\ns_add_u32 s54, s54, {LMEM}\nv_add_u32 v{MEMW}, s54, v{L16}')
        for u in (1, 2, 3):
            e(f's_lshr_b32 s54, s{80+u}, 3\ns_add_u32 s54, s54, {LMEM}\nv_add_u32 v{MEMR+u-1}, s54, v{L16}')
        e(f's_mul_i32 s56, s{sW}, {TRS}\ns_add_u32 s56, s56, {LTR}')
        e(f'v_lshrrev_b32 v101, 2, v{C}\nv_mul_u32_u24 v101, 144, v101\nv_lshlrev_b32 v104, 5, v{G}\nv_and_b32 v105, 3, v{C}\nv_lshlrev_b32 v105, 2, v105')
        e(f'v_add3_u32 v101, v101, v104, v105\nv_add_u32 v{TRW}, s56, v101')
        e(f'v_lshrrev_b32 v101, 2, v{C}\nv_lshlrev_b32 v101, 1, v101\nv_and_b32 v104, 1, v{C}\nv_add_u32 v106, v101, v104')
        e(f'v_mul_u32_u24 v107, 144, v{G}\nv_lshlrev_b32 v101, 7, v{G}\nv_lshlrev_b32 v104, 2, v{C}\nv_add_u32 v{KTR}, v101, v104')
        e(f'v_lshlrev_b32 v101, 4, v103\ns_add_u32 s57, s56, 640\nv_add3_u32 v{QQR}, v107, v101, s57')
        e(f'v_mov_b32 v101, {LZ}\nv_cmp_eq_u32 vcc, 0, v102\nv_cndmask_b32 v{Q0R}, v101, v{QQR}, vcc\nv_cndmask_b32 v{Q1R}, v{QQR}, v101, vcc')
        e(f'v_mul_u32_u24 v101, {TRS}, v102\nv_lshlrev_b32 v104, 4, v103\nv_add3_u32 v101, v101, v104, v107\nv_add_u32 v{QQR}, {LTR+640}, v101')
        e(f'v_mul_u32_u24 v101, {TRS}, v100\nv_lshlrev_b32 v104, 4, v106\nv_add3_u32 v101, v101, v104, v107\nv_add_u32 v{K2R}, {LTR}, v101')
        e(f'v_lshlrev_b32 v101, 3, v{G}\nv_add_u32 v101, v101, v103')
        e(f'v_lshlrev_b32 v{PFA}, 7, v{LN}\nv_mov_b32 v101, {WS_BYTES:#x}\nv_cmp_lt_u32 vcc, 31, v{LN}\nv_cndmask_b32 v{PFA}, v{PFA}, v101, vcc')
        e(f'v_mov_b32 v101, 0x3f80\nv_mov_b32 v104, 0x3f800000\nv_mov_b32 v105, 0')
        for i in range(4):
            c0 = 4 * (2 * (i & 1)) + (i >> 1); c1 = c0 + 4
            e(f'v_cmp_eq_u32 vcc, {c0}, v{C}\nv_cndmask_b32 v{SEL+i}, v105, v101, vcc\nv_cmp_eq_u32 vcc, {c1}, v{C}\nv_cndmask_b32 v{SEL+i}, v{SEL+i}, v104, vcc')
        for i in range(4): e(f'v_mov_b32 v{ONES+i}, 0x3f803f80')
        for i in range(4): e(f'v_mov_b32 v{SX+i}, 0')
        e(f'v_mov_b32 v101, {LZ}\nds_write_b128 v101, {v(SX,4)}')
        FLA = L8
        e(f's_lshl_b32 s54, s{sH}, 14\ns_lshl_b32 s55, s{sW}, 12\ns_add_u32 s{sKV}, s54, s55\ns_add_u32 s{sKV}, s{sKV}, {KV}')
        e(f's_lshl_b32 s54, s{sH}, 13\ns_lshl_b32 s55, s{sW}, 11\ns_add_u32 s{sKVM}, s54, s55\ns_add_u32 s{sKVM}, s{sKVM}, {KVM - 0x40000}')
        e(f's_lshl_b32 s54, s{sH}, 7\ns_lshl_b32 s55, s{sW}, 2\ns_add_u32 s{sPROG}, s54, s55\ns_add_u32 s{sPROG}, s{sPROG}, {F_PROG}')
        e(f's_mov_b32 s{sT}, 0')
        e('s_waitcnt lgkmcnt(0)')
        def flag_spin(off):
            L = self.lab('fs'); D = self.lab('fsd')
            e.label(L)
            e.raw(f'buffer_load_dword v{FLGV}, off, {WSR}, s{sFL} offset:{off} sc1'); e.raw('s_waitcnt vmcnt(0)')
            e.raw(f'v_cmp_eq_u32 vcc, 0, v{FLGV}'); e.raw(f's_cbranch_vccz {D}')
            self.spin_check()
            e.raw('s_sleep 1'); e.raw(f's_branch {L}')
            e.label(D)
        e('s_waitcnt vmcnt(0)\nv_min_u32 v22, v22, v23\nv_cmp_eq_u32 vcc, 0, v22\ns_cbranch_vccz L_f01')
        flag_spin(0); flag_spin(4)
        e.label('L_f01')
        e(f's_add_u32 s{sFL}, s{sFL}, 8')
        e('s_barrier')
        self.dstamp(5, 100)
        self.stamp(3, (100,))
        def rf(n, half=None):
            r = staged[n]; sl = slot[n]
            t = [f'ds_read_b128 {v(r,4)}, v{WST} offset:{sl*2048}', f'ds_read_b128 {v(r+4,4)}, v{WST} offset:{sl*2048+1024}']
            return '\n'.join(t) if half is None else t[half]
        OAq = 64; WA = MEMA
        def S(n, fill=None):
            m, sl, p = seq[n]
            if m == 'o': d, A = WA + 4 * p, (SX if sl == 0 else OAq + 4 * (sl - 1))
            else: d, A = {'k': ACK, 'q': ACQ, 'v': ACV}[m] + 4 * p, MEMA + 4 * sl
            hm = home[seq[n]]
            B = R(hm, 8) if hm is not None else v(staged[n], 8)
            e(f'v_smfmac_f32_16x16x64_bf16 {v(d,4)}, {v(A,4)}, {B}, v{IDX}' + (' abid:1' if m == 'o' else ''))
            if fill: e(fill)
            if n in o.get('at', ()): self.ct(f'*.n{n}')
        def zero(r0, n):
            for r in range(r0, r0 + n, 2): e(f'v_mov_b64 {v(r,2)}, 0')
        def nops(cyc):
            n = cyc // 4
            while n > 0:
                k = min(n, 16); e(f's_nop {k-1}'); n -= k
        for n in (1, 3, 5, 7, 2, 6): e(rf(n))
        zero(ACK, 24)
        sTC, sTT, sTM = 74, 75, 57
        e(f's_mov_b32 s{sTC}, 0x10000\ns_mov_b32 s{sTT}, 0\ns_mov_b32 s{sTM}, 0\nv_mov_b32 v{OW}, s{sSEN}\nv_mov_b32 v{OR_}, 0xfffe0000')
        e(f'v_mov_b32 v{FLGV}, 0\nv_mov_b32 v{LN0}, {WS_BYTES:#x}\nv_mov_b32 v{SM_}, v{H2S}\nv_mov_b32 v{H2S}, {WS_BYTES:#x}\nv_mov_b64 {v(VMK,2)}, 0')
        e(f's_mov_b64 exec, 1\nv_mov_b32 v{LN0}, 0\ns_mov_b64 exec, s[72:73]\nv_mov_b32 v{H2S}, v{SM_}\ns_mov_b64 exec, -1')
        e('s_mov_b32 s58, 0')
        if self.dev: e('s_mov_b32 s93, 0\ns_mov_b32 s94, 0\ns_memtime s[100:101]\ns_waitcnt lgkmcnt(0)')
        self.ct_init()
        e('s_waitcnt lgkmcnt(0)')
        add = lambda x: f'v_add_f32 v{x}, v{x}, v{x+2}'
        z1 = lambda r0: f'v_mov_b64 {v(r0,2)}, 0'
        J = lambda *t: '\n'.join(t)
        def nxt():
            e(f's_xor_b32 s{sH2S}, s{sH2S}, 0x2000')
            e(f's_bfe_u32 s{sTM}, s{sT}, 0x10001\ns_lshl_b32 s{sTT}, s{sTM}, 16\ns_xor_b32 s{sTC}, s{sTT}, 0x10000')
            e(f's_add_u32 s55, s{sKV}, 0x80000\ns_add_u32 s56, s{sKVM}, 0x40000')
        nxt()
        y1, y2 = o.get('y1', 120), o.get('y2', 120)
        P1, RD = MEMA + 16, MEMA + 24
        p2 = lambda: [e(f'buffer_load_dwordx4 {v(MEMA+4*m,4)}, v{L16}, {WSR}, s{sH2L} offen offset:{1024*m} sc1') for m in (0, 1)]
        p1 = lambda: [e(f'buffer_load_dwordx4 {v(P1+4*m,4)}, v{L16}, {WSR}, s{sH1L} offen offset:{1024*m} sc1') for m in (0, 1)]
        red1 = f'v_mfma_f32_16x16x32_bf16 {v(RD,4)}, {v(SEL,4)}, {v(P1,4)}, 0'
        red2 = f'v_mfma_f32_16x16x32_bf16 {v(RD,4)}, {v(SEL,4)}, {v(P1+4,4)}, {v(RD,4)}'
        def wait_check(r, x, fail, m1='', m2=''):
            e(f's_waitcnt vmcnt({x+1})')
            e(f'v_max3_u32 v{SM_}, v{r}, v{r+1}, v{r+2}\nv_max_u32 v{SM_}, v{SM_}, v{r+3}')
            e(m1)
            e(f's_waitcnt vmcnt({x})')
            e(f'v_max3_u32 v{SM_}, v{SM_}, v{r+4}, v{r+5}\nv_max3_u32 v{SM_}, v{SM_}, v{r+6}, v{r+7}')
            e(m2)
            e(f'v_cmp_le_u32 vcc, s{sSEN}, v{SM_}\ns_cbranch_vccnz {fail}')
        def wait_check1(x, fail):
            r = P1
            e(f's_waitcnt vmcnt({x+1})')
            e(f'v_bitop3_b32 v{SM_}, v{r}, v{r+2}, s{sTM} bitop3:0x7e')
            e(red1)
            e(f's_waitcnt vmcnt({x})')
            e(f'v_bitop3_b32 v{SM_+1}, v{r+4}, v{r+6}, s{sTM} bitop3:0x7e')
            e(red2)
            e(f'v_bitop3_b32 v{SM_}, v{SM_}, v{SM_+1}, 1 bitop3:0xa8')
            e(f'v_cmp_ne_u32 vcc, 0, v{SM_}\ns_cbranch_vccnz {fail}')
        def publish():
            for sh in (4, 8):
                e(f'v_add_f32_dpp v{RD}, v{RD}, v{RD} row_ror:{sh} row_mask:0xf bank_mask:0xf\nv_add_f32_dpp v{RD+1}, v{RD+1}, v{RD+1} row_ror:{sh} row_mask:0xf bank_mask:0xf')
            e(f'v_cvt_pk_bf16_f32 v{PFL}, v{RD}, v{RD+1}')
            e(f'buffer_store_dword v{PFL}, v{H2S}, {WSR}, s{sH2S} offen')
        e.raw('.p2align 6')
        for _ in range(o.get('al', 0)): e.raw('s_nop 0')
        mw = lambda i: f'ds_write_b64 v{MEMW}, {v(MEMA+2*i,2)} offset:{1024*(i>>1)+8*(i&1)}'
        mr = lambda u, m: f'ds_read_b128 {v(MEMA+8+8*u+4*m,4)}, v{MEMR+u} offset:{1024*m}'
        kvl = lambda i: f'buffer_load_dwordx4 {v(KX+4*i,4)}, v{L16}, {WSR}, s{sKV} offen offset:{1024*i} sc1'
        RM = 108; KP = 110
        kst = lambda i, sr: f'buffer_store_dword v{KP+i}, v{KTR}, {WSR}, s{sr} offen offset:{64*i} sc1'
        arm2 = f'buffer_store_dword v{OW}, v{H2S}, {WSR}, s{sH2S} offen'
        spec = 0
        def poll2(tag):
            e.label(f'L_step{tag}')
            e.reset(); e.track = False
            p2()
            if y2:
                nops(y2); p2()
            if y1: e(f's_waitcnt vmcnt({4 if y2 else 2})')
            e(rf(4))
            dsq0 = list(e.dsq)
            wait_check(MEMA, 2 if y2 else 0, 'L_f2')
            e.label(f'L_ok2{tag}')
            e.track = True
            e.reset(dsq=dsq0, vmq=[set(), set()] if y2 else [])
        def early():
            cts = list(self.cts); self.cts = []
            poll2('e')
            self.ct('01.got2'); self.cts = cts
            e(mw(0)); S(0, mw(1)); S(1, mw(2)); S(2, mw(3)); S(3, J(arm2, kvl(0))); S(4, kvl(1)); S(5, kvl(2)); S(6, kvl(3))
            if o.get('eb', 7) == 8: S(7)
            e.lgkm_for_writes()
            e('s_barrier')
            e(J(mr(0, 0), mr(0, 1), mr(1, 0)))
            if o.get('eb', 7) == 7: S(7)
            e('s_branch L_join2')
        e(f's_cmp_lt_u32 s{sW}, 3\ns_cbranch_scc1 L_stepe')
        poll2('')
        self.ct('01.got2')
        nb = o.get('nb', 5)
        fl = {n: [] for n in range(64)}
        e(mw(0)); fl[0].append(mw(1)); fl[1].append(mw(2)); fl[2].append(mw(3))
        fl[nb].append(mr(0, 1)); fl[min(7, nb + 2)].append(mr(1, 0))
        fl[3] += [arm2, kvl(0)]; fl[4].append(kvl(1)); fl[5].append(kvl(2)); fl[6].append(kvl(3))
        for n in range(8):
            if n == nb: e(J('s_barrier', mr(0, 0)))
            S(n, J(*fl[n]))
        e.label('L_join2')
        self.ct('1.join')
        pf = f'buffer_load_dword v{PFL}, v{PFA}, {WSR}, s55 offen sc1'
        pfn = o.get('pfn', 30)
        for n, t_ in ((12, mr(1, 1)), (14, mr(2, 0)), (16, mr(2, 1)),
                      (13, kst(0, sKVM)), (15, kst(1, sKVM)), (17, f'buffer_store_dwordx2 {v(VMK,2)}, v{L8}, {WSR}, s{sKVM} offen offset:1024 sc1'),
                      (21, f'buffer_store_dword v{SX}, v{LN0}, {WSR}, s{sPROG} offen sc1'), (23, f'buffer_load_dword v{FLGV}, off, {WSR}, s{sFL} sc1'),
                      (pfn, pf),
                      (18, rf(30, 0)), (20, rf(30, 1)), (22, rf(33, 0)), (23, 's_nop 0'), (24, rf(33, 1)), (24, 's_nop 0'),
                      (25, add(ACQ)), (25, add(ACQ + 1)), (26, add(ACQ + 4)), (26, add(ACQ + 5)),
                      (14, f'v_mov_b32 v{RM}, 0xff800000'), (16, f'v_mov_b32 v{RM+1}, 0xff800000'), (19, f'v_mov_b32 v{SX}, s58')):
            fl[n].append(t_)
        for n in range(12, 27):
            S(n, J(*fl[n]))
            if n == 13:
                e.lgkm_for_writes()
                e('s_barrier')
            if n in (13, 18, 25): self.ct(f'1.s{n}')
        S(27, f'v_cvt_pk_bf16_f32 v{ACQ+2}, v{ACQ}, v{ACQ+4}\nv_cvt_pk_bf16_f32 v{ACQ+3}, v{ACQ+1}, v{ACQ+5}')
        QB0, QB1 = ACQ, ACQ + 4
        S(28, J(f'ds_write2_b32 v{TRW}, v{ACQ+2}, v{ACQ+3} offset0:160 offset1:164', f'ds_read_b128 {v(QB0,4)}, v{Q0R}'))
        S(29, f'ds_read_b128 {v(QB1,4)}, v{Q1R}')
        S(30, J(*fl[30], 's_waitcnt vmcnt(6)'))
        self.ct('1.s30')
        S(31, rf(39, 0))
        S(32, rf(39, 1))
        S(33, rf(38, 0))
        S(34, J(rf(38, 1), 's_nop 0'))
        S(35, 's_nop 1')
        self.ct('015.kend')
        Q2 = MEMA
        e(f'v_mfma_f32_16x16x32_bf16 {v(SX,4)}, {v(KX,4)}, {v(QB0,4)}, 0')
        e(J(add(ACK), add(ACK + 1)))
        e(f'v_mfma_f32_16x16x32_bf16 {v(SX,4)}, {v(KX+4,4)}, {v(QB1,4)}, {v(SX,4)}')
        e(J(add(ACK + 4), add(ACK + 5)))
        e(f'v_cvt_pk_bf16_f32 v{KP}, v{ACK}, v{ACK+4}\nv_cvt_pk_bf16_f32 v{KP+1}, v{ACK+1}, v{ACK+5}')
        self.ct('5.kp')
        S(8, J(f'ds_write2_b32 v{TRW}, v{KP}, v{KP+1} offset0:0 offset1:4', f'ds_write_b128 v{MEMW}, {v(SX,4)} offset:{SXO}'))
        self.ct('5.w')
        S(9, f's_cmp_eq_u32 s{sT}, 63')
        S(10)
        S(11)
        z5 = o.get('z5', 1)
        rest = [36, 37, 39, 40, 41, 42, 43]
        for n in rest[:z5]: S(n)
        rest = rest[z5:]
        self.ct('5.s40')
        e.lgkm_for_writes()
        e('s_barrier')
        e('s_cbranch_scc1 L_CEND')
        st63 = (list(e.dsq), list(e.vmq)); rest63 = list(rest)
        self.ct('0125.barS')
        K2 = ACK
        RX = [88, 72, 92]; SMD = 76
        pka = lambda d, x: f'v_pk_add_f32 {v(d,2)}, {v(d,2)}, {v(x,2)}'
        rx = lambda u: f'ds_read_b128 {v(RX[u],4)}, v{MEMR+u} offset:{SXO}'
        e(f'ds_read_b128 {v(K2,4)}, v{K2R}\nds_read_b128 {v(Q2,4)}, v{QQR}')
        S(rest.pop(0), J(f'ds_read_b128 {v(K2+4,4)}, v{K2R} offset:{2*TRS}', f'ds_read_b128 {v(Q2+4,4)}, v{QQR} offset:{2*TRS}'))
        S(rest.pop(0), rx(0))
        S(rest.pop(0), rx(1))
        S(rest.pop(0), rx(2))
        self.ct('2.s43')
        e(f'v_mfma_f32_16x16x32_bf16 {v(SMD,4)}, {v(K2,4)}, {v(Q2,4)}, 0')
        S(rest.pop(0))
        e(f'v_mfma_f32_16x16x32_bf16 {v(SMD,4)}, {v(K2+4,4)}, {v(Q2+4,4)}, {v(SMD,4)}')
        while rest: S(rest.pop(0))
        self.ct('2.m2')
        for i in range(4): e(f'v_add_f32 v{SX+i}, v{SX+i}, v{RX[0]+i}')
        e(J(pka(SX, RX[1]), pka(SX + 2, RX[1] + 2), pka(SX, RX[2]), pka(SX + 2, RX[2] + 2)))
        e(f'v_add_f32_dpp v{RM}, v{SMD+2}, v{SMD} row_ror:8 row_mask:0xf bank_mask:0x3\nv_add_f32_dpp v{RM+1}, v{SMD+3}, v{SMD+1} row_ror:8 row_mask:0xf bank_mask:0x3')
        self.ct('2.sum')
        M0, M1 = 64, 65
        e(f'v_max3_f32 v{M0}, v{SX}, v{SX+1}, v{SX+2}\nv_max3_f32 v{M0}, v{M0}, v{SX+3}, v{RM}\nv_max_f32 v{M0}, v{M0}, v{RM+1}')
        S(44, rf(49, 0))
        e(f'v_max_f32_dpp v{M1}, v{M0}, v{M0} row_ror:8 row_mask:0xf bank_mask:0xf')
        e(f'v_max_f32_dpp v{M0}, v{M0}, v{M0} row_ror:8 row_mask:0xf bank_mask:0xf')
        S(45, rf(49, 1))
        e(f'v_permlane16_swap_b32 v{M0}, v{M1}\nv_max_f32 v{M1+1}, v{M0}, v{M1}\nv_max_f32 v{M0}, v{M0}, v{M1}')
        S(38, rf(48, 0))
        e(f'v_permlane32_swap_b32 v{M0}, v{M1+1}\nv_max_f32 v{M0}, v{M0}, v{M1+1}\nv_mul_f32 v{M0}, s{sSC}, v{M0}')
        self.ct('2.red')
        fma = lambda x: f'v_fma_f32 v{x}, v{x}, s{sSC}, -v{M0}'
        ex = lambda x: f'v_exp_f32 v{x}, v{x}'
        e(J(fma(SX), fma(SX + 1), fma(SX + 2), fma(SX + 3), ex(SX), ex(SX + 1), ex(SX + 2), ex(SX + 3)))
        self.ct('2.exp')
        PX, PM, LA, OE, OO_ = 92, 68, 88, 72, 76
        e(f'v_cvt_pk_bf16_f32 v{PX}, v{SX}, v{SX+1}\nv_cvt_pk_bf16_f32 v{PX+2}, v{SX}, v{SX+1}\nv_cvt_pk_bf16_f32 v{PX+1}, v{SX+2}, v{SX+3}\nv_cvt_pk_bf16_f32 v{PX+3}, v{SX+2}, v{SX+3}')
        dp = lambda x, bm: f'v_mov_b32_dpp v{x}, v{x} row_ror:8 row_mask:0xf bank_mask:{bm}'
        e(J(dp(PX, '0xc'), dp(PX + 2, '0x3'), dp(PX + 1, '0xc'), dp(PX + 3, '0x3')))
        S(46, J(rf(48, 1), fma(RM)))
        S(47, fma(RM + 1))
        self.ct('023.P')
        e(f'v_mfma_f32_16x16x32_bf16 {v(LA,4)}, {v(ONES,4)}, {v(PX,4)}, 0')
        e(ex(RM))
        e(f'v_mfma_f32_16x16x32_bf16 {v(OE,4)}, {v(VX,4)}, {v(PX,4)}, 0')
        e(ex(RM + 1))
        e(f'v_mfma_f32_16x16x32_bf16 {v(OO_,4)}, {v(VX+4,4)}, {v(PX,4)}, 0')
        e(J(f'v_cvt_pk_bf16_f32 v{PM}, v{RM}, v{RM+1}', add(ACV), add(ACV + 1), dp(PM, '0xc'), f'v_mov_b32 v{PM+1}, 0', f'v_cvt_pk_bf16_f32 v{VMK}, v{ACV}, v{ACV+1}', add(ACV + 4)))
        self.ct('3.x')
        e(f'v_mfma_f32_16x16x16_bf16 {v(LA,4)}, {v(ONES,2)}, {v(PM,2)}, {v(LA,4)}')
        e(J(add(ACV + 5), f'v_cvt_pk_bf16_f32 v{ACV+2}, v{ACV+4}, v{ACV+5}'))
        e(f'v_mfma_f32_16x16x16_bf16 {v(OE,4)}, {v(VMK,2)}, {v(PM,2)}, {v(OE,4)}')
        e(J(f'v_mov_b32 v{ACV+3}, 0', z1(WA)))
        e(f'v_mfma_f32_16x16x16_bf16 {v(OO_,4)}, {v(ACV+2,2)}, {v(PM,2)}, {v(OO_,4)}')
        e(J(z1(WA + 2), z1(WA + 4)))
        self.ct('3.m')
        e(f'v_rcp_f32 v{LA}, v{LA}')
        e(z1(WA + 6))
        if o.get('pk', 1):
            for x in (OE, OE + 2, OO_, OO_ + 2): e(f'v_pk_mul_f32 {v(x,2)}, {v(x,2)}, {v(LA,2)} op_sel_hi:[1,0]')
        else:
            for i in range(4): e(f'v_mul_f32 v{OE+i}, v{OE+i}, v{LA}')
            for i in range(4): e(f'v_mul_f32 v{OO_+i}, v{OO_+i}, v{LA}')
        for i in range(4): e(f'v_cvt_pk_bf16_f32 v{SX+i}, v{OE+i}, v{OO_+i}')
        self.ct('3.cvt')
        if o.get('o64', 0):
            e(f'ds_write_b64 v{MEMW}, {v(SX,2)} offset:1024\nds_write_b64 v{MEMW}, {v(SX+2,2)} offset:1032')
        else:
            e(f'ds_write_b128 v{MEMW}, {v(SX,4)} offset:1024')
        S(48, J(f's_mov_b32 s{sKV}, s55', z1(WA + 8), z1(WA + 10)))
        S(49, J(f's_mov_b32 s{sKVM}, s56', z1(WA + 12), z1(WA + 14)))
        self.ct('3.z')
        e.lgkm_for_writes()
        e('s_barrier')
        self.ct('034.barB')
        for u in range(3): e(f'ds_read_b128 {v(OAq+4*u,4)}, v{MEMR+u} offset:1024')
        S(50, f'v_mov_b32 v{VMK+1}, v{ACV+2}')
        S(51)
        PK = 80
        def post(b):
            t0 = WA + 4 * b
            return [f'v_add_u32 v{t0}, s{sTC}, v{t0}', f'v_and_or_b32 v{t0}, v{t0}, v{OR_}, s{sTT}',
                    f'v_cvt_pk_bf16_f32 v{PK+1+2*b}, v{t0+2}, v{t0+3}', f'v_cvt_pk_bf16_f32 v{PK+2*b}, v{t0}, v{t0+1}',
                    f'buffer_store_dwordx2 {v(PK+2*b,2)}, v{H1S}, {WSR}, s{sH1S if b < 2 else sH1S2} offen offset:{2048*(b&1)}']
        P = [post(b) for b in range(4)]
        self.ct('4.pre')
        S(52); self.ct('4.s52'); S(53); S(54, 's_nop 1')
        S(55, J('s_nop 3', *P[0][:4])); S(56, J(P[0][4], rf(61, 0))); self.ct('4.st0')
        S(57, J(rf(61, 1), rf(62, 0))); S(58, J(rf(62, 1), rf(63, 0))); S(59, J(rf(63, 1), *P[1][:4])); S(60, J(P[1][4], 's_nop 0')); self.ct('4.s60')
        S(61, 's_nop 1'); S(62, J('s_nop 0', *P[2][:4])); S(63, P[2][4]); self.ct('4.b2')
        e(J(*P[3]))
        self.ct('04.wo')
        def stagger(d0, dd, tag):
            nops(d0)
            if dd:
                for w in (1, 2, 3):
                    e(f's_cmp_lt_u32 s{sW}, {w}\ns_cbranch_scc1 L_sg{tag}')
                    nops(dd - 8 + (o.get('g3', 70) if w == 3 else 0))
            e.label(f'L_sg{tag}')
        nr = o.get('nr', 2)
        for n in (1, 3, 5)[:nr]: e(rf(n))
        stagger(o.get('d1', 40), o.get('g1', 32), 1)
        self.ct('0.d1')
        p1()
        for n in (1, 3, 5)[nr:] + (7, 2): e(rf(n))
        if y1:
            nops(y1); p1()
        for i in range(6): e(J(z1(ACK + 2 * i), 's_nop 0'))
        e.track = False
        wait_check1(2 if y1 else 0, 'L_f1')
        e.label('L_ok1')
        publish()
        e.label('L_pub1')
        e.track = True
        e.reset(dsq=e.dsq)
        self.ct('0.pub')
        e(rf(6))
        for i in range(6, 12): e(z1(ACK + 2 * i))
        e(f's_xor_b32 s{sH1S}, s{sH1S}, 0x40000\ns_xor_b32 s{sH1S2}, s{sH1S2}, 0x40000\ns_xor_b32 s{sH1L}, s{sH1L}, 0x40000\ns_xor_b32 s{sH2L}, s{sH2L}, 0x2000')
        e(f'v_readfirstlane_b32 s54, v{FLGV}\ns_cmp_lg_u32 s54, 0\ns_cbranch_scc0 L_fslow')
        e.label('L_fok')
        e(f's_mov_b32 s58, s{sT}')
        e(f's_add_u32 s{sFL}, s{sFL}, 4\ns_add_u32 s{sT}, s{sT}, 1')
        nxt()
        if self.dev:
            e.raw(f's_cmp_lg_u32 s{sT}, 3'); e.raw('s_cbranch_scc0 L_T0'); e.label('L_T0r')
        e('s_waitcnt lgkmcnt(0)')
        self.ct_acc()
        if self.dev and o.get('trace'):
            e.raw(f's_lshl_b32 s97, s98, 2'); e.raw(f's_add_u32 s97, s97, s{sW}'); e.raw('s_lshl_b32 s97, s97, 6'); e.raw(f's_add_u32 s97, s97, s{sT}'); e.raw('s_lshl_b32 s97, s97, 5'); e.raw(f's_add_u32 s97, s97, {STP+0x40000}')
            if o.get('trace') == 2:
                e.raw('s_memrealtime s[94:95]'); e.raw('s_waitcnt lgkmcnt(0)')
            for i, sr in enumerate((26, 4, 6, 14, 16, 18, 93, 94)):
                e.raw(f'v_mov_b32 v{32+i}, s{sr}')
            e.raw(f'buffer_store_dwordx4 v[32:35], v{LN0}, {WSR}, s97 offen'); e.raw(f'buffer_store_dwordx4 v[36:39], v{LN0}, {WSR}, s97 offen offset:16')
        nops(max(0, o.get('d2', 48) - self.ct_cost() - (72 if o.get('trace') else 0)))
        e(f's_cmp_lt_u32 s{sW}, 3')
        self.ct_last()
        e('s_cbranch_scc0 L_step')
        nops(o.get('d2e', 0))
        early()
        e.label('L_fslow')
        e(f's_cmp_ge_u32 s{sT}, 62\ns_cbranch_scc1 L_fok')
        flag_spin(0)
        e('s_branch L_fok')
        if self.dev:
            e.label('L_T0'); e.raw('s_memtime s[100:101]'); e.raw('s_mov_b32 s93, 0'); e.raw('s_mov_b32 s94, 0'); e.raw('s_branch L_T0r')
        e.track = False
        def spin(tag):
            if self.dev: e(f's_add_u32 s{92+tag}, s{92+tag}, 1')
            e(f's_add_u32 s{sSPIN}, s{sSPIN}, 1\ns_cmp_gt_u32 s{sSPIN}, {1 << 19}\ns_cbranch_scc1 L_END')
        e.label('L_f1')
        p1(); spin(1)
        wait_check1(2 if y1 else 0, 'L_f1')
        publish(); e('s_branch L_pub1')
        e.label('L_f2')
        p2()
        e(f'v_cmp_lt_u32 vcc, s{sSEN}, v{SM_}')
        spin(2)
        e('s_cbranch_vccnz L_x2')
        if spec:
            e('s_nop 1'); zero(ACQ, 8); e('s_nop 0\ns_branch L_w2')
        else:
            wait_check(MEMA, 2 if y2 else 0, 'L_f2')
            e.label('L_ret2')
            e(f's_cmp_lt_u32 s{sW}, 3\ns_cbranch_scc0 L_ok2\ns_branch L_ok2e')
        e.label('L_x2')
        e('s_waitcnt vmcnt(0)')
        e(f'v_cmp_eq_u32 s[76:77], s{sSEN}, v{MEMA}')
        for i in range(1, 8): e(f'v_cmp_eq_u32 vcc, s{sSEN}, v{MEMA+i}\ns_or_b64 s[76:77], s[76:77], vcc')
        if spec:
            e('s_cbranch_scc1 L_f2'); zero(ACQ, 8); e('s_waitcnt lgkmcnt(0)'); head(0, False); e('s_branch L_ok2')
        else:
            e('s_cbranch_scc0 L_ret2\ns_branch L_f2')
        e.track = True
        e.label('L_CEND')
        e.reset(*st63)
        e(J(kst(0, 56), kst(1, 56)))
        for n in rest63 + [44, 45, 46, 47, 38]: S(n)
        e(J(add(ACV), add(ACV + 1), add(ACV + 4), add(ACV + 5)))
        e(f'v_cvt_pk_bf16_f32 v{ACV}, v{ACV}, v{ACV+1}\nv_cvt_pk_bf16_f32 v{ACV+1}, v{ACV+4}, v{ACV+5}')
        e(f'buffer_store_dwordx2 {v(ACV,2)}, v{L8}, {WSR}, s56 offen offset:1024 sc1')
        e(f's_waitcnt vmcnt(0) lgkmcnt(0)\nv_mov_b32 v{SM_}, 64\ns_mov_b64 exec, 1\nbuffer_store_dword v{SM_}, off, {WSR}, s{sPROG} sc1\ns_mov_b64 exec, -1')
        if self.dev:
            e('s_memtime s[90:91]\ns_waitcnt lgkmcnt(0)\ns_sub_u32 s90, s90, s100')
            e(f's_lshl_b32 s97, s98, 8\ns_lshl_b32 s99, s{sW}, 6\ns_add_u32 s97, s97, s99\ns_add_u32 s97, s97, {STP+32}')
            e(f'v_mov_b32 v100, s90\nv_mov_b32 v101, s93\nv_mov_b32 v102, s94\nv_mov_b32 v103, s{sSPIN}\nbuffer_store_dwordx4 v[100:103], off, {WSR}, s97')
        self.dstamp(6, 100)
        self.tick_dump(11, 2, 100, 78)
        self.stamp(7, (100,))

    def build(self):
        e = self.e
        self.prologue()
        self.ln(); self.stamp(1)
        self.qkv(); self.ffn1(); self.tailphase()
        self.chain()
        e.label('L_END')
        e('s_endpgm')
        if self.o.get('drop'):
            out_ = []; on = False
            for l in e.lines:
                if l == 'L_ok2:': on = True
                if l.startswith('s_cbranch_scc1 L_CEND'): on = False
                d = self.o['drop']
                if on and ((d & 1 and l.startswith('buffer_load_dwordx4')) or (d & 2 and l.startswith('buffer_store') and 'sc1' in l and 's70' not in l) or (d & 4 and l.startswith('buffer_load_dword v20')) or (d & 8 and l.startswith('ds_read_b128') and 'v9 ' in l) or (d & 16 and l.startswith('buffer_load_dword v21'))): l = 's_nop 0'
                out_.append(l)
            e.lines = out_
        body = fix_hazards(e.lines)
        hdr = open('recurrent_scan__memory_aug_recurrent_mem_tr__glu_gated_reglu__prompt.s.ref').read().split('\n')
        top = [l for l in hdr if l.startswith(';') and '@launch' not in l and not l.startswith('; Override') and not l.startswith('; grid=')]
        out = top + ['; @launch grid=(256,1,1) block=(256,1,1) lds=163840', '.amdgcn_target "amdgcn-amd-amdhsa--gfx950"', '.text', f'.globl {KNAME}', '.p2align 8', f'.type {KNAME},@function', f'{KNAME}:']
        out += body
        out += ['.section .rodata,"a"', '.p2align 6', f'.amdhsa_kernel {KNAME}', '  .amdhsa_next_free_vgpr 512', '  .amdhsa_next_free_sgpr 102', '  .amdhsa_accum_offset 256',
                '  .amdhsa_group_segment_fixed_size 0', '  .amdhsa_kernarg_size 112', '  .amdhsa_user_sgpr_count 2', '  .amdhsa_user_sgpr_kernarg_segment_ptr 1',
                '  .amdhsa_system_sgpr_workgroup_id_x 1', '  .amdhsa_float_denorm_mode_32 3', '.end_amdhsa_kernel', '']
        return '\n'.join(out)

if __name__ == '__main__':
    import json
    dev = 'dev' in sys.argv[2:]
    opts = {}
    for a_ in sys.argv[2:]:
        if '=' in a_:
            k, x = a_.split('='); opts[k] = int(x)
    open(sys.argv[1], 'w').write(Gen(dev, opts).build())
```

```python
import sys, math
sys.path.insert(0, 'gen')
from asmlib import *

KNAME = 'recurrent_scan__memory_aug_recurrent_mem_tr__glu_gated_reglu__prompt_kernel'
XN   = 0x0000000
FLG  = 0x0200000
F_KVX, F_OFL, F_HFL, F_PROG = FLG, FLG + 0x40000, FLG + 0x10000, FLG + 0x14000
H1   = 0x0300000
H2   = 0x0380000
STP  = 0x0390000
DUM  = 0x0500000
KV   = 0x1000000
KVM  = 0x3040000
OO   = 0x4100000
HH   = 0x5100000
WS_BYTES = 0x10000000
SENT = 0xFFBFFFBF
CSC = (128 ** -0.5) * math.log2(math.e)
import struct
def fbits(x): return struct.unpack('<I', struct.pack('<f', x))[0]

sX, sMEM, sWQ, sWK, sWV, sWO, sWG, sWU, sWD, sOUT, sDBG, sWS = 4, 6, 8, 10, 12, 14, 20, 22, 24, 26, 28, 30
sW, sXCC, sJ = 32, 33, 34
SRD_WS, SRD_A, SRD_B, SRD_X = 36, 40, 44, 48
sPLO, sPHI = 52, 53
sSPIN = 35
WSR = s(SRD_WS, 4)

class Gen:
    def __init__(self, dev=False, opts=None):
        self.e = Emitter(); self.dev = dev; self.o = opts or {}
        self.uid = 0
    def lab(self, p):
        self.uid += 1; return f'L_{p}_{self.uid}'
    def srd(self, d, ptr, nbytes):
        e = self.e
        e(f's_mov_b32 s{d}, s{ptr}\ns_and_b32 s{d+1}, s{ptr+1}, 0xffff\ns_mov_b32 s{d+2}, {nbytes:#x}\ns_mov_b32 s{d+3}, 0x20000')
    def stamp(self, idx, vt=(112,)):
        if not self.dev: return
        e = self.e; t = vt[0]
        sv = (list(e.dsq), list(e.vmq))
        e.raw('s_memrealtime s[96:97]')
        e.raw('s_waitcnt lgkmcnt(0)')
        e.raw(f's_lshl_b32 s97, s98, 8')
        e.raw(f's_lshl_b32 s99, s{sW}, 6')
        e.raw(f's_add_u32 s97, s97, s99')
        e.raw(f's_add_u32 s97, s97, {STP + idx*4}')
        e.raw(f'v_mov_b32 v{t}, s96')
        e.raw(f'buffer_store_dword v{t}, off, {WSR}, s97')
        e.raw('s_waitcnt vmcnt(0)')
        e.reset()
    def dstamp(self, idx, vt, inv=False):
        if not self.o.get('dbg'): return
        e = self.e
        L = self.lab('ds')
        e.raw(f's_cmp_lg_u32 s{sW}, 0'); e.raw(f's_cbranch_scc1 {L}')
        e.raw('s_memrealtime s[96:97]'); e.raw('s_waitcnt lgkmcnt(0)')
        if inv: e.raw('s_not_b32 s96, s96')
        e.raw(f'v_mov_b32 v{vt}, {4*idx}'); e.raw(f'v_mov_b32 v{vt+1}, s96'); e.raw('s_mov_b64 exec, 1')
        e.raw(f'global_atomic_umax v{vt}, v{vt+1}, {s(sDBG,2)}'); e.raw('s_mov_b64 exec, -1')
        e.label(L); e.raw('s_waitcnt lgkmcnt(0)'); e.dsq = []
    def stamp2(self, idx):
        if self.dev: self.e.raw(f's_memrealtime s[{4+2*idx}:{5+2*idx}]')
    def tick(self, k, base=76):
        if not self.dev or not self.o.get('tick'): return
        e = self.e
        e.raw('s_memtime s[90:91]'); e.raw('s_waitcnt lgkmcnt(0)'); e.dsq = []
        if k is not None:
            e.raw('s_sub_u32 s91, s90, s88'); e.raw(f's_add_u32 s{base+k}, s{base+k}, s91')
        e.raw('s_mov_b32 s88, s90')
    def tick_init(self, n, base=76):
        if not self.dev or not self.o.get('tick'): return
        for k in range(n): self.e.raw(f's_mov_b32 s{base+k}, 0')
    def tick_dump(self, n, slot, vt, base=76):
        if not self.dev or not self.o.get('tick'): return
        e = self.e
        e.raw(f's_lshl_b32 s97, s98, 8'); e.raw(f's_lshl_b32 s99, s{sW}, 6'); e.raw('s_add_u32 s97, s97, s99')
        e.raw(f's_add_u32 s97, s97, {STP + 0x10000*(slot+1)}')
        for k in range(n):
            e.raw(f'v_mov_b32 v{vt}, s{base+k}'); e.raw(f'buffer_store_dword v{vt}, off, {WSR}, s97 offset:{4*k}')
        e.raw('s_waitcnt vmcnt(0)'); e.vmq = []
    def ct(self, tag):
        if not (self.dev and self.o.get('tick')): return
        z = tag.split('.')[0]
        if z != '*' and str(self.o.get('zoom', 0)) not in z: return
        k = len(self.cts); self.cts.append(tag); assert k < 11
        self.e.raw(f's_memtime s[{4+2*k}:{5+2*k}]')
    def ct_last(self):
        if self.dev and self.o.get('tick'): self.e.raw('s_memtime s[26:27]')
    def ct_init(self):
        self.cts = []
        if self.dev and self.o.get('tick'):
            for k in range(11): self.e.raw(f's_mov_b32 s{78+k}, 0')
            self.ct_last()
    def ct_cost(self):
        return 8 * len(self.cts)
    def ct_acc(self):
        if not (self.dev and self.o.get('tick')): return
        e = self.e
        for k in range(len(self.cts)):
            p = 26 if k == 0 else 4 + 2 * (k - 1)
            e.raw(f's_sub_u32 s91, s{4+2*k}, s{p}'); e.raw(f's_add_u32 s{78+k}, s{78+k}, s91')
        sys.stderr.write('stamps: %s\n' % self.cts)
    def spin_check(self, fail='L_END', lim=1 << 17):
        e = self.e
        e(f's_add_u32 s{sSPIN}, s{sSPIN}, 1\ns_cmp_gt_u32 s{sSPIN}, {lim}\ns_cbranch_scc1 {fail}')
    def wait_counter(self, off, target, vt):
        e = self.e; L = self.lab('wc'); D = self.lab('wcd')
        e(f'v_mov_b32 v{vt}, {off}')
        e.label(L)
        e(f'global_load_dword v{vt+1}, v{vt}, {s(sDBG,2)} sc1')
        e('s_waitcnt vmcnt(0)')
        e(f'v_readfirstlane_b32 s54, v{vt+1}')
        e(f's_cmp_ge_u32 s54, {target}\ns_cbranch_scc1 {D}')
        self.spin_check()
        e(f's_sleep 2\ns_branch {L}')
        e.label(D)
    def wait_flags(self, voff, soff, vt, thr=None):
        e = self.e; L = self.lab('wf'); D = self.lab('wfd')
        e.label(L)
        e(f'buffer_load_dword v{vt}, v{voff}, {WSR}, {soff} offen sc1')
        e('s_waitcnt vmcnt(0)')
        if thr is None: e(f'v_cmp_eq_u32 vcc, 0, v{vt}')
        else: e(f'v_cmp_ge_u32 vcc, {thr}, v{vt}')
        e(f's_cbranch_vccz {D}')
        self.spin_check()
        e(f's_sleep 2\ns_branch {L}')
        e.label(D)
    def red_g(self, op, x, t):
        e = self.e
        e(f'v_mov_b32 v{t}, v{x}\nv_permlane16_swap_b32 v{x}, v{t}\n{op} v{x}, v{x}, v{t}')
        e(f'v_mov_b32 v{t}, v{x}\nv_permlane32_swap_b32 v{x}, v{t}\n{op} v{x}, v{x}, v{t}')
    def rbf(self, d, x):
        self.e(f'v_cvt_pk_bf16_f32 v{d}, v{x}, v{x}\nv_lshlrev_b32 v{d}, 16, v{d}')

    def prologue(self):
        e = self.e
        e('s_cmp_ge_u32 s2, 256\ns_cbranch_scc1 L_END')
        e('s_load_dwordx16 s[4:19], s[0:1], 0\ns_load_dwordx8 s[20:27], s[0:1], 64\ns_load_dwordx4 s[28:31], s[0:1], 96')
        e(f's_getreg_b32 s{sXCC}, hwreg(HW_REG_XCC_ID)\ns_and_b32 s{sXCC}, s{sXCC}, 7')
        e(f's_xor_b32 s{sXCC}, s{sXCC}, {self.o.get("cx", 3)}')
        e(f'v_lshrrev_b32 v1, 6, v0\nv_readfirstlane_b32 s{sW}, v1\nv_and_b32 v0, 63, v0')
        e(f's_mov_b32 s{sSPIN}, 0\ns_mov_b32 s{sPLO}, 0x05040100\ns_mov_b32 s{sPHI}, 0x07060302')
        e('s_waitcnt lgkmcnt(0)')
        self.srd(SRD_WS, sWS, WS_BYTES)
        if self.o.get('dbg'):
            e(f's_cmp_lg_u32 s{sXCC}, 0\ns_cbranch_scc1 L_nod'); self.dstamp(2, 6, True); e.label('L_nod')
        e(f's_cmp_lg_u32 s{sW}, 0\ns_cbranch_scc1 L_notick')
        e(f's_lshl_b32 s54, s{sXCC}, 2\ns_add_u32 s54, s54, 128\ns_cmp_eq_u32 s{sXCC}, 0\ns_cselect_b32 s54, 0, s54')
        e(f'v_mov_b32 v2, s54\nv_mov_b32 v3, 1\ns_mov_b64 exec, 1')
        e(f'global_atomic_add v4, v2, v3, {s(sDBG,2)} sc0\ns_mov_b64 exec, -1')
        e.label('L_notick')
        e.reset()
        nt = 0
        if self.o.get('cpf', 1):
            nt = 1
            e.raw('s_getpc_b64 s[56:57]')
            e.label('L_pc')
            e(f's_lshr_b32 s54, s2, 3\ns_lshl_b32 s54, s54, 2\ns_add_u32 s54, s54, s{sW}\ns_and_b32 s54, s54, 7\ns_lshl_b32 s54, s54, 13')
            e('v_lshlrev_b32 v6, 7, v0\nv_add_u32 v6, s54, v6')
            e.raw('v_min_u32 v6, L_END-L_pc, v6')
            e('global_load_dword v127, v6, s[56:57]')
        if self.o.get('pre', 0):
            nt = 3
            e(f's_cmp_eq_u32 s{sW}, 1\ns_cselect_b64 s[56:57], {s(sWK,2)}, {s(sWO,2)}\ns_cmp_eq_u32 s{sW}, 2\ns_cselect_b64 s[56:57], {s(sWV,2)}, s[56:57]\ns_cmp_eq_u32 s{sW}, 3\ns_cselect_b64 s[56:57], {s(sWQ,2)}, s[56:57]')
            e(f's_lshl_b32 s54, s2, 14\ns_lshr_b32 s55, s2, 3\ns_lshl_b32 s55, s55, 2\ns_add_u32 s55, s55, s{sW}\ns_lshl_b32 s55, s55, 15')
            e(f's_cmp_eq_u32 s{sXCC}, 0\ns_cselect_b64 s[56:57], {s(sWO,2)}, s[56:57]\ns_cselect_b32 s54, s55, s54')
            self.srd(SRD_A, 56, 1 << 22); self.srd(SRD_X, sX, 2048 * 1024)
            e(f'v_lshlrev_b32 v6, 7, v0\ns_add_u32 s55, s54, 8192')
            e(f'buffer_load_dword v7, v6, {s(SRD_A,4)}, s54 offen\nbuffer_load_dword v7, v6, {s(SRD_A,4)}, s55 offen')
            e(f's_lshl_b32 s54, s2, 13\ns_cmp_eq_u32 s{sXCC}, 0\ns_cselect_b32 s{SRD_X+2}, 0, s{SRD_X+2}\ns_cmp_eq_u32 s{sW}, 1\ns_cselect_b32 s{SRD_X+2}, s{SRD_X+2}, 0')
            e(f'buffer_load_dword v7, v6, {s(SRD_X,4)}, s54 offen')
        e(f's_cmp_lg_u32 s{sW}, 0\ns_cbranch_scc1 L_notick2')
        e(f's_waitcnt vmcnt({nt})\nv_mov_b32 v5, 0\ns_mov_b64 exec, 1\nds_write_b32 v5, v4\ns_waitcnt lgkmcnt(0)\ns_mov_b64 exec, -1')
        e.label('L_notick2')
        e.reset()
        e('s_barrier\nv_mov_b32 v5, 0\nds_read_b32 v4, v5\ns_waitcnt lgkmcnt(0)')
        e(f'v_readfirstlane_b32 s{sJ}, v4')
        e('s_barrier')
        e(f's_cmp_ge_u32 s{sJ}, 32\ns_cbranch_scc1 L_END')
        if self.dev:
            e(f's_lshl_b32 s98, s{sXCC}, 5\ns_add_u32 s98, s98, s{sJ}')
            self.stamp(0)
        e(f's_cmp_eq_u32 s{sXCC}, 0\ns_cbranch_scc1 L_CHAIN')
        e(f's_sub_u32 s54, s{sXCC}, 1\ns_lshl_b32 s54, s54, 5\ns_add_u32 s{sJ}, s{sJ}, s54')

    def load_pairs(self, groups, tmp, depth, vA, vB, post=None):
        e = self.e
        n = len(groups[0][1]); T = tmp + depth * 2 * n
        def issue(k):
            srd, ents = groups[k][0], groups[k][1]
            b = tmp + (k % depth) * 2 * n
            for i, (so, _, _) in enumerate(ents):
                e(so)
                e(f'buffer_load_dword v{b+2*i}, v{vA}, {s(srd,4)}, s54 offen')
                e(f'buffer_load_dword v{b+2*i+1}, v{vB}, {s(srd,4)}, s54 offen')
        def finish(k):
            ents = groups[k][1]
            b = tmp + (k % depth) * 2 * n
            for i, (_, dE, dO) in enumerate(ents):
                for d, sel, tt in ((dE, sPLO, T), (dO, sPHI, T + 1)):
                    if d < 256: e(f'v_perm_b32 v{d}, v{b+2*i+1}, v{b+2*i}, s{sel}')
                    else: e(f'v_perm_b32 v{tt}, v{b+2*i+1}, v{b+2*i}, s{sel}\nv_accvgpr_write_b32 a{d-256}, v{tt}')
            if len(groups[k]) > 2 and groups[k][2]: groups[k][2]()
        for k in range(len(groups) + depth - 1):
            if k < len(groups): issue(k)
            if k - (depth - 1) >= 0: finish(k - (depth - 1))
            if post and k == depth - 1: post()

    def touch_qkv(self):
        e = self.e
        e(f'v_lshrrev_b32 v120, 1, v0\nv_lshlrev_b32 v120, 13, v120\nv_and_b32 v121, 1, v0\nv_lshlrev_b32 v121, 7, v121')
        e(f's_lshl_b32 s55, s62, 8\ns_sub_u32 s56, s63, 3\ns_lshl_b32 s56, s56, 2\ns_add_u32 s56, s56, s{sW}\ns_lshl_b32 s56, s56, 18\ns_add_u32 s55, s55, s56\nv_add3_u32 v120, v120, v121, s55')
        for ptr in (sWK, sWV, sWQ)[:3 - self.o.get('tq', 0)]:
            self.srd(SRD_A, ptr, 1 << 22)
            e(f'buffer_load_dword v121, v120, {s(SRD_A,4)}, 0 offen')
    def touch_rest(self):
        for ptr in (sWK, sWV, sWQ)[3 - self.o.get('tq', 0):]:
            self.srd(SRD_A, ptr, 1 << 22)
            self.e(f'buffer_load_dword v121, v120, {s(SRD_A,4)}, 0 offen')
    def ln(self):
        e = self.e
        sLN = 61
        e(f's_mul_i32 s62, s{sJ}, 9363\ns_lshr_b32 s62, s62, 16\ns_mul_i32 s54, s62, 7\ns_sub_u32 s63, s{sJ}, s54')
        e(f's_cmp_lt_u32 s63, 3\ns_cbranch_scc1 L_skipln')
        e(f's_lshl_b32 s{sLN}, s62, 2\ns_add_u32 s{sLN}, s{sLN}, s63\ns_sub_u32 s{sLN}, s{sLN}, 3')
        self.srd(SRD_X, sX, 2048 * 1024)
        e(f'v_lshlrev_b32 v1, 4, v0')
        e(f's_lshl_b32 s54, s{sLN}, 14\ns_lshl_b32 s55, s{sW}, 12\ns_add_u32 s54, s54, s55')
        for r in range(4):
            e(f'buffer_load_dwordx4 {v(16+4*r,4)}, v1, {s(SRD_X,4)}, s54 offen offset:{1024*r}')
        if self.o.get('touch', 1): self.touch_qkv()
        e(f'v_lshlrev_b32 v2, 2, v0\nv_mov_b32 v3, 0')
        e(f's_lshl_b32 s55, s{sLN}, 10\ns_lshl_b32 s56, s{sW}, 8\ns_add_u32 s55, s55, s56\ns_add_u32 s55, s55, {FLG}')
        e(f'buffer_store_dword v3, v2, {WSR}, s55 offen sc1')
        e(f'v_lshlrev_b32 v2, 7, v0\ns_lshl_b32 s55, s{sLN}, 11\ns_lshl_b32 s56, s{sW}, 9\ns_add_u32 s55, s55, s56\ns_add_u32 s55, s55, {F_OFL}')
        e(f's_mov_b64 exec, 15\nbuffer_store_dword v3, v2, {WSR}, s55 offen sc1\ns_mov_b64 exec, -1')
        F = lambda r, i: 32 + 8 * r + i
        Dv = lambda r, i: 64 + 8 * r + i
        SM, VR, T = 96, 100, 104
        e(f's_mov_b32 s56, 0xffff0000\ns_mov_b32 s57, {fbits(1.0/512):#x}\ns_mov_b32 s58, {fbits(1e-5):#x}')
        for r in range(4):
            for i in range(4):
                e(f'v_lshlrev_b32 v{F(r,2*i)}, 16, v{16+4*r+i}\nv_and_b32 v{F(r,2*i+1)}, s56, v{16+4*r+i}')
        self.touch_rest()
        def red64(base):
            for sh in (1, 2, 4, 8):
                for r in range(4):
                    e(f'v_add_f32_dpp v{base+r}, v{base+r}, v{base+r} row_ror:{sh} row_mask:0xf bank_mask:0xf')
            for sw in ('16', '32'):
                for r in range(4): e(f'v_mov_b32 v{T+r}, v{base+r}')
                for r in range(4): e(f'v_permlane{sw}_swap_b32 v{base+r}, v{T+r}')
                for r in range(4): e(f'v_add_f32 v{base+r}, v{base+r}, v{T+r}')
        for r in range(4): e(f'v_add_f32 v{SM+r}, v{F(r,0)}, v{F(r,1)}')
        for i in range(2, 8):
            for r in range(4): e(f'v_add_f32 v{SM+r}, v{SM+r}, v{F(r,i)}')
        red64(SM)
        for r in range(4): e(f'v_mul_f32 v{SM+r}, s57, v{SM+r}')
        for r in range(4):
            for i in range(8): e(f'v_sub_f32 v{Dv(r,i)}, v{F(r,i)}, v{SM+r}')
        for r in range(4): e(f'v_mul_f32 v{VR+r}, v{Dv(r,0)}, v{Dv(r,0)}')
        for i in range(1, 8):
            for r in range(4): e(f'v_fmac_f32 v{VR+r}, v{Dv(r,i)}, v{Dv(r,i)}')
        red64(VR)
        for r in range(4):
            e(f'v_mul_f32 v{VR+r}, s57, v{VR+r}')
            self.rbf(VR + r, VR + r); self.rbf(SM + r, SM + r)
            e(f'v_add_f32 v{VR+r}, s58, v{VR+r}')
            self.rbf(VR + r, VR + r)
            e(f'v_sqrt_f32 v{VR+r}, v{VR+r}')
            self.rbf(VR + r, VR + r)
            e(f'v_rcp_f32 v{T+r}, v{VR+r}')
        for r in range(4):
            for i in range(8): e(f'v_sub_f32 v{F(r,i)}, v{F(r,i)}, v{SM+r}')
            for i in range(4):
                e(f'v_cvt_pk_bf16_f32 v108, v{F(r,2*i)}, v{F(r,2*i+1)}')
                e(f'v_lshlrev_b32 v{F(r,2*i)}, 16, v108\nv_and_b32 v{F(r,2*i+1)}, s56, v108')
            for i in range(8): e(f'v_mul_f32 v{Dv(r,i)}, v{F(r,i)}, v{T+r}')
            for i in range(8): e(f'v_fma_f32 v{F(r,i)}, -v{Dv(r,i)}, v{VR+r}, v{F(r,i)}')
            for i in range(8): e(f'v_fmac_f32 v{Dv(r,i)}, v{F(r,i)}, v{T+r}')
            for i in range(4): e(f'v_cvt_pk_bf16_f32 v{16+4*r+i}, v{Dv(r,2*i)}, v{Dv(r,2*i+1)}')
        e(f'v_lshlrev_b32 v2, 8, v0\ns_lshl_b32 s55, s{sW}, 6\nv_add_u32 v2, s55, v2')
        for r in range(4): e(f'ds_write_b128 v2, {v(16+4*r,4)} offset:{16*r}')
        e('s_waitcnt lgkmcnt(0)\ns_barrier')
        e(f's_lshl_b32 s55, s{sW}, 12\nv_add_u32 v2, s55, v1')
        for r in range(4): e(f'ds_read_b128 {v(16+4*r,4)}, v2 offset:{1024*r}')
        for r in range(4): e(f'buffer_store_dwordx4 {v(16+4*r,4)}, v1, {WSR}, s54 offen offset:{1024*r} sc1')
        e('s_waitcnt vmcnt(0)\ns_barrier')
        e(f's_cmp_lg_u32 s{sW}, 0\ns_cbranch_scc1 L_noln')
        e(f'v_mov_b32 v2, 192\nv_mov_b32 v3, 1\ns_mov_b64 exec, 1\nglobal_atomic_add v2, v3, {s(sDBG,2)}\ns_mov_b64 exec, -1')
        e('s_branch L_noln')
        e.label('L_skipln')
        e.label('L_noln')
        e.reset(); e('s_waitcnt vmcnt(0)')

    def row_loop(self, name, sT, step, mf, nacc_desc, epilogue, flagoff):
        e = self.e
        PF, FR = 80, 64
        sSO, sBUF, sPREV = 56, 57, 58
        def pf_issue():
            e(f's_lshl_b32 s{sSO}, s61, 15\ns_lshl_b32 s55, s{sW}, 13\ns_add_u32 s{sSO}, s{sSO}, s55')
            e(f's_add_u32 s55, s{sSO}, 4096')
            for i in range(8):
                e(f'buffer_load_dwordx4 {v(PF+4*i,4)}, v1, {WSR}, s{sSO if i < 4 else 55} offen offset:{1024*(i%4)} sc1')
        e(f'v_lshlrev_b32 v1, 4, v0\ns_lshl_b32 s55, s{sW}, 13\nv_add_u32 v2, s55, v1\nv_mov_b32 v3, v1\nv_mov_b32 v4, 1')
        e(f's_lshl_b32 s{sPREV}, s{sJ}, 2\ns_add_u32 s{sPREV}, s{sPREV}, s{sW}\ns_lshl_b32 s{sPREV}, s{sPREV}, 7\ns_add_u32 s{sPREV}, s{sPREV}, {DUM}')
        e(f's_mov_b32 s61, s{sT}')
        pf_issue()
        nst = self._nst
        e('s_mov_b64 exec, 1')
        for _ in range(nst): e(f'buffer_store_dword v4, off, {WSR}, s{sPREV}')
        e('s_mov_b64 exec, -1')
        e('s_barrier')
        self.tick_init(6); self.tick(None)
        L = f'L_{name}_loop'
        e.label(L)
        q0 = list(e.vmq)
        for i in range(8): e(f'ds_write_b128 v2, {v(PF+4*i,4)} offset:{1024*i}')
        if step == 7: e(f's_cmp_lt_u32 s{sT}, 3\ns_cselect_b32 s60, 3, 7')
        else: e(f's_mov_b32 s60, {step}')
        e(f's_add_u32 s61, s{sT}, s60\ns_min_u32 s61, s61, 63')
        e('s_waitcnt lgkmcnt(0)')
        self.tick(0)
        pf_issue()
        self.tick(1)
        e('s_barrier')
        self.tick(2)
        rd = lambda k: (e(f'ds_read_b128 {v(FR+8*(k%2),4)}, v3 offset:{1024*k}'), e(f'ds_read_b128 {v(FR+8*(k%2)+4,4)}, v3 offset:{16384+1024*k}'))
        rd(0)
        for k in range(16):
            if k < 15: rd(k + 1)
            mf(k, FR + 8 * (k % 2), FR + 8 * (k % 2) + 4)
            if k == 7:
                e('s_waitcnt vmcnt(8)')
                e(f's_mov_b64 exec, 1\nbuffer_store_dword v4, off, {WSR}, s{sPREV} sc1\ns_mov_b64 exec, -1')
        e('v_xor_b32 v2, 0x8000, v2\nv_xor_b32 v3, 0x8000, v3')
        self.tick(3)
        flagoff(sPREV)
        epilogue()
        e('s_waitcnt lgkmcnt(0)')
        self.tick(5)
        assert len(e.vmq) == len(q0), (len(e.vmq), len(q0))
        e(f's_add_u32 s{sT}, s{sT}, s60\ns_cmp_lt_u32 s{sT}, 64\ns_cbranch_scc1 {L}')
        e('s_waitcnt vmcnt(0)')
        e(f's_mov_b64 exec, 1\nbuffer_store_dword v4, off, {WSR}, s{sPREV} sc1\ns_mov_b64 exec, -1')
        e('s_barrier')
        e.reset(vmq=[set()])
        self.tick_dump(6, 0 if name == 'qkv' else 1, 112)

    def qkv(self):
        e = self.e
        sH, sSUB, sT, sQ = 62, 63, 64, 65
        e(f's_mul_i32 s{sH}, s{sJ}, 9363\ns_lshr_b32 s{sH}, s{sH}, 16\ns_mul_i32 s54, s{sH}, 7\ns_sub_u32 s{sSUB}, s{sJ}, s54')
        self.srd(SRD_A, sWK, 1 << 22); self.srd(SRD_B, sWV, 1 << 22); self.srd(SRD_X, sWQ, 1 << 22)
        W = lambda m, p, k: [256, 384, 128][m] + (k * 2 + p) * 4
        if self.o.get('two', 1):
            L = self.lab('two')
            e(f's_cmp_lt_u32 s{sSUB}, 3\ns_cbranch_scc1 {L}')
            self.srd(84, sWO, 1 << 22)
            e(f's_lshl_b32 s54, s61, 2\ns_add_u32 s54, s54, s{sW}\ns_lshl_b32 s54, s54, 13\nv_lshlrev_b32 v120, 7, v0')
            e.raw('buffer_load_dword v121, v120, s[84:87], s54 offen')
            e.label(L)
        e(f'v_lshrrev_b32 v3, 4, v0\nv_and_b32 v4, 15, v0\nv_lshlrev_b32 v1, 13, v3\nv_lshlrev_b32 v2, 4, v4')
        e(f's_lshl_b32 s54, s{sH}, 8\ns_lshl_b32 s55, s{sW}, 17\ns_add_u32 s54, s54, s55\nv_add3_u32 v1, v1, v2, s54\nv_xor_b32 v2, 64, v1')
        e(f'v_lshlrev_b32 v4, 2, v4\ns_lshl_b32 s54, s{sW}, 6\nv_add_u32 v4, s54, v4\nv_and_b32 v5, 1, v3\nv_lshlrev_b32 v5, 6, v5\nv_xor_b32 v4, v4, v5')
        e(f'v_lshlrev_b32 v3, 11, v3\nv_add_u32 v3, v3, v4\nv_add_u32 v4, 0x10000, v3\ns_lshl_b32 s56, s{sW}, 12')
        dep = self.o.get('wdep', 5)
        def w_issue(k):
            srd = (SRD_A, SRD_B, SRD_X)[k >> 3]
            e(f's_add_u32 m0, s56, {(k & 7) * 16384}')
            for n in range(4):
                e(f's_mov_b32 s54, {((k & 7) * 64 + 4 * n) * 8192 - 1024 * n}')
                e(f'buffer_load_dwordx4 v{1 + (n >> 1)}, {s(srd,4)}, s54 offen offset:{1024*n} lds')
        e('s_barrier')
        for k in range(dep): w_issue(k)
        for k in range(24):
            e(f's_waitcnt vmcnt({4 * (min(24, k + dep) - k - 1)})\ns_barrier')
            if k + dep < 24: w_issue(k + dep)
            m = k >> 3; T0 = 16 + 16 * (k & 1)
            for j in range(8):
                of = 64 * (k & 3) + 32 * (j >> 2) + 2 * (j & 3)
                e(f'ds_read2st64_b32 {v(T0+2*j,2)}, v{3 + ((k >> 2) & 1)} offset0:{of} offset1:{of+1}')
            for j in range(8):
                kk = 2 * (k & 7) + (j >> 2)
                for p, sel in ((0, sPLO), (1, sPHI)):
                    d = W(m, p, kk) + (j & 3)
                    if d < 256: e(f'v_perm_b32 v{d}, v{T0+2*j+1}, v{T0+2*j}, s{sel}')
                    else: e(f'v_perm_b32 v{48+p}, v{T0+2*j+1}, v{T0+2*j}, s{sel}\nv_accvgpr_write_b32 a{d-256}, v{48+p}')
        self.stamp(2)
        self.wait_counter(192, 128, 8)
        self.stamp(3)
        self.dstamp(8, 112)
        if self.o.get('dbg'):
            e(f's_cmp_ge_u32 s{sSUB}, 3\ns_cbranch_scc1 L_nod2'); self.dstamp(11, 112); e.label('L_nod2')
        ACC = lambda m, p, t: 16 + ((m * 2 + p) * 2 + t) * 4
        def mf(k, X0, X1):
            for m in (0, 1, 2):
                for p in (0, 1):
                    for t, X in ((0, X0), (1, X1)):
                        d = v(ACC(m, p, t), 4); c = '0' if k == 0 else d
                        if m == 1: e(f'v_mfma_f32_16x16x32_bf16 {d}, {v(X,4)}, {R(W(m,p,k),4)}, {c}')
                        else: e(f'v_mfma_f32_16x16x32_bf16 {d}, {R(W(m,p,k),4)}, {v(X,4)}, {c}')
        def flagoff(sd):
            e(f's_lshl_b32 s{sd}, s{sH}, 10\ns_lshl_b32 s55, s{sW}, 8\ns_add_u32 s{sd}, s{sd}, s55\ns_lshl_b32 s55, s{sT}, 2\ns_add_u32 s{sd}, s{sd}, s55\ns_add_u32 s{sd}, s{sd}, {F_KVX}')
        def epi():
            e(f's_lshl_b32 s54, s{sT}, 19\ns_lshl_b32 s55, s{sH}, 14\ns_add_u32 s54, s54, s55\ns_lshl_b32 s55, s{sW}, 12\ns_add_u32 s54, s54, s55\ns_add_u32 s54, s54, {KV}')
            for t in (0, 1):
                o = 112 + 4 * t
                for i in range(4): e(f'v_cvt_pk_bf16_f32 v{o+i}, v{ACC(0,0,t)+i}, v{ACC(0,1,t)+i}')
                e(f'buffer_store_dwordx4 {v(o,4)}, v1, {WSR}, s54 offen offset:{1024*t} sc1')
            for p in (0, 1):
                o = 120 + 4 * p
                for t in (0, 1):
                    for hh in (0, 1): e(f'v_cvt_pk_bf16_f32 v{o+2*t+hh}, v{ACC(1,p,t)+2*hh}, v{ACC(1,p,t)+2*hh+1}')
                e(f'buffer_store_dwordx4 {v(o,4)}, v1, {WSR}, s54 offen offset:{2048+1024*p} sc1')
            for t in (0, 1):
                o = 64 + 4 * t
                for i in range(4): e(f'v_cvt_pk_bf16_f32 v{o+i}, v{ACC(2,0,t)+i}, v{ACC(2,1,t)+i}')
                e(f'ds_write_b128 v6, {v(o,4)} offset:{4096*t}')
            e('v_add_u32 v6, 8192, v6')
        e(f'v_lshlrev_b32 v6, 4, v0\ns_lshl_b32 s55, s{sW}, 10\ns_add_u32 s55, s55, 65536\nv_add_u32 v6, s55, v6')
        e(f's_cmp_lt_u32 s{sSUB}, 3\ns_cselect_b32 s54, 0, 3\ns_add_u32 s{sSUB}, s{sSUB}, s54\ns_mov_b32 s{sT}, s{sSUB}')
        self._nst = 5
        self.row_loop('qkv', sT, 7, mf, None, epi, flagoff)
        self.stamp(4)

    def ffn1(self):
        e = self.e
        sT, sPH = 64, 65
        e(f's_cmp_ge_u32 s{sJ}, 220\ns_cbranch_scc1 L_noffn')
        e(f's_mul_i32 s{sT}, s{sJ}, 5958\ns_lshr_b32 s{sT}, s{sT}, 16\ns_mul_i32 s54, s{sT}, 11\ns_sub_u32 s54, s{sJ}, s54')
        e(f's_lshl_b32 s{sPH}, s54, 2\ns_add_u32 s{sPH}, s{sPH}, s{sW}')
        self.srd(SRD_A, sWG, 512 * 2752); self.srd(SRD_B, sWU, 512 * 2752)
        e(f'v_lshrrev_b32 v1, 4, v0\nv_mul_u32_u24 v1, {8*2752}, v1\nv_and_b32 v2, 15, v0\nv_lshlrev_b32 v2, 2, v2')
        e(f's_lshl_b32 s54, s{sPH}, 6\nv_add3_u32 v1, v1, v2, s54\nv_add_u32 v2, 2752, v1')
        W = lambda m, p, k: 256 + m * 128 + (k * 2 + p) * 4
        groups = []
        for m, srd in ((0, SRD_A), (1, SRD_B)):
            for k2 in range(8):
                ents = []
                for k in (2 * k2, 2 * k2 + 1):
                    for i in range(4):
                        ents.append((f's_mov_b32 s54, {(32*k + 2*i) * 2752}', W(m, 0, k) + i, W(m, 1, k) + i))
                groups.append((srd, ents))
        self.load_pairs(groups, 16, 3, 1, 2)
        ACC = lambda m, p, t: 16 + ((m * 2 + p) * 2 + t) * 4
        def mf(k, X0, X1):
            for m in (0, 1):
                for p in (0, 1):
                    for t, X in ((0, X0), (1, X1)):
                        d = v(ACC(m, p, t), 4); c = '0' if k == 0 else d
                        e(f'v_mfma_f32_16x16x32_bf16 {d}, {R(W(m,p,k),4)}, {v(X,4)}, {c}')
        def flagoff(sd):
            e(f's_lshl_b32 s{sd}, s{sT}, 8\ns_lshl_b32 s55, s{sPH}, 2\ns_add_u32 s{sd}, s{sd}, s55\ns_add_u32 s{sd}, s{sd}, {F_HFL}')
        def epi():
            e(f's_mul_i32 s54, s{sT}, {2*44*1024}\ns_lshl_b32 s55, s{sPH}, 10\ns_add_u32 s54, s54, s55\ns_add_u32 s54, s54, {HH}\ns_add_u32 s55, s54, {44*1024}')
            e('s_mov_b32 s59, 0xffff0000')
            for t in (0, 1):
                o = 112 + 4 * t
                for i in range(4):
                    g0, g1, u0, u1 = ACC(0, 0, t) + i, ACC(0, 1, t) + i, ACC(1, 0, t) + i, ACC(1, 1, t) + i
                    e(f'v_cvt_pk_bf16_f32 v120, v{g0}, v{g1}\nv_cvt_pk_bf16_f32 v121, v{u0}, v{u1}')
                    e(f'v_lshlrev_b32 v{g0}, 16, v120\nv_and_b32 v{g1}, s59, v120\nv_lshlrev_b32 v{u0}, 16, v121\nv_and_b32 v{u1}, s59, v121')
                    e(f'v_max_f32 v{g0}, 0, v{g0}\nv_max_f32 v{g1}, 0, v{g1}')
                    e(f'v_mul_f32 v{g0}, v{g0}, v{u0}\nv_mul_f32 v{g1}, v{g1}, v{u1}')
                    e(f'v_cvt_pk_bf16_f32 v{o+i}, v{g0}, v{g1}')
                e(f'buffer_store_dwordx4 {v(o,4)}, v1, {WSR}, s{54+t} offen sc1')
        self._nst = 3
        self.row_loop('ffn', sT, 20, mf, None, epi, flagoff)
        e.label('L_noffn')
        e.reset(); e('s_waitcnt vmcnt(0)')
        self.stamp(5)

    def tailphase(self):
        e = self.e
        sH, sSUB = 62, 63
        sA, sF, sCS, sQT, sEH, sQL, sSC = 64, 65, 66, 67, 68, 69, 70
        MK = 72
        e(f's_lshr_b32 s{sF}, s{sJ}, 5\ns_bfe_u32 s54, s{sJ}, 0x10004\ns_mul_i32 s54, s54, 7\ns_add_u32 s{sF}, s{sF}, s54\ns_and_b32 s{sCS}, s{sJ}, 15\ns_mov_b32 s{sA}, s{sSUB}')
        e(f's_lshr_b32 s{sQT}, s{sW}, 1\ns_and_b32 s{sEH}, s{sW}, 1')
        self.srd(SRD_A, sWO, 1 << 22); self.srd(SRD_B, sWD, 1376 * 1024)
        e(f'v_lshrrev_b32 v1, 4, v0\nv_lshlrev_b32 v1, 13, v1\nv_and_b32 v2, 15, v0\nv_lshlrev_b32 v2, 2, v2')
        e(f's_lshl_b32 s54, s{sCS}, 6\nv_add3_u32 v1, v1, v2, s54\nv_add_u32 v2, 1024, v1')
        e(f's_lshl_b32 s56, s{sW}, 20\ns_mul_i32 s57, s{sW}, {11*32*1024}')
        WO = lambda p, k: 256 + (k * 2 + p) * 4
        WD = lambda p, k: 168 + (k * 2 + p) * 4
        groups = []
        for k in range(11):
            groups.append((SRD_B, [(f's_add_u32 s54, s57, {(32*k + 2*i) * 1024}', WD(0, k) + i, WD(1, k) + i) for i in range(4)]))
        for k in range(32):
            groups.append((SRD_A, [(f's_add_u32 s54, s56, {(32*k + 2*i) * 1024}', WO(0, k) + i, WO(1, k) + i) for i in range(4)]))
        self.load_pairs(groups, 16, 7, 1, 2)
        self.srd(SRD_A, sOUT, 2048 * 1024); self.srd(SRD_X, sX, 2048 * 1024)
        L16, L8, ONE, QA, FO, FH, RW, RR, XO, PG = 1, 2, 3, 4, 5, 6, 7, 8, 9, 10
        e(f'v_lshlrev_b32 v{L16}, 4, v0\nv_lshlrev_b32 v{L8}, 3, v0\nv_mov_b32 v{ONE}, 1')
        e(f's_lshl_b32 s54, s{sQT}, 12\ns_add_u32 s54, s54, 65536\nv_add_u32 v{QA}, s54, v{L16}')
        e(f'v_and_b32 v11, 15, v0\nv_and_b32 v{FO}, 31, v0\nv_lshlrev_b32 v{FO}, 7, v{FO}')
        e(f'v_min_u32 v{FH}, 10, v0\nv_lshlrev_b32 v{FH}, 2, v{FH}\ns_mul_i32 s54, s{sW}, 44\nv_add_u32 v{FH}, s54, v{FH}')
        e(f's_lshl_b32 s54, s{sW}, 12\nv_add_u32 v{RW}, s54, v{L16}')
        e(f'v_lshrrev_b32 v12, 4, v0\nv_bfe_u32 v13, v0, 2, 2\nv_and_b32 v14, 3, v0')
        e(f'v_lshlrev_b32 v13, 8, v13\nv_lshlrev_b32 v15, 4, v12\nv_lshlrev_b32 v14, 2, v14\nv_add3_u32 v{RR}, v13, v15, v14')
        e(f's_lshl_b32 s54, s{sW}, 6\nv_add_u32 v{RR}, s54, v{RR}')
        e(f'v_lshlrev_b32 v12, 10, v12\nv_lshlrev_b32 v13, 2, v11\ns_lshl_b32 s54, s{sW}, 12\ns_lshl_b32 s55, s{sCS}, 6\ns_add_u32 s54, s54, s55\nv_add3_u32 v{XO}, v12, v13, s54')
        e(f'v_and_b32 v{PG}, 3, v0\nv_lshlrev_b32 v{PG}, 2, v{PG}')
        KMA = 160
        e(f'v_lshrrev_b32 v12, 2, v11\nv_lshlrev_b32 v12, 7, v12\nv_and_b32 v13, 1, v11\nv_lshlrev_b32 v13, 6, v13\nv_and_b32 v14, 48, v0\nv_add3_u32 v{KMA}, v12, v13, v14')
        e(f's_lshl_b32 s54, s{sQT}, 4\nv_add_u32 v12, s54, v11\nv_lshrrev_b32 v13, 4, v0\nv_lshlrev_b32 v13, 2, v13\nv_sub_u32 v12, v12, v13')
        for tk in (0, 1):
            for i in range(4):
                e(f'v_cmp_le_i32 {s(MK+2*(4*tk+i),2)}, {16*tk+i}, v12')
        e(f's_mov_b32 s{sSC}, {fbits(CSC):#x}\ns_mov_b32 s71, 0xffff0000')
        self.stamp(6)
        self.dstamp(9, 112)
        XR = 11; AS, AF = 16, 24
        Q, V, S0, S1, MX = 32, 48, 64, 68, 161
        RING = 72; NR = 22
        K, KM, VM, SMm, PX, PM, OA = 72, 104, 120, 128, 132, 136, 140
        def prepA():
            L = self.lab('pa')
            e(f's_cmp_ge_u32 s{sA}, 64\ns_cbranch_scc1 {L}')
            e(f's_lshl_b32 s56, s{sA}, 19\ns_lshl_b32 s57, s{sH}, 14\ns_add_u32 s56, s56, s57\ns_add_u32 s56, s56, {KV}')
            e(f's_lshl_b32 s57, s{sEH}, 13\ns_add_u32 s57, s57, s56\ns_add_u32 s58, s57, 4096')
            for k in range(4):
                for tk in (0, 1):
                    e(f'buffer_load_dwordx4 {v(K+8*k+4*tk,4)}, v{L16}, {WSR}, s56 offen offset:{1024*tk} sc1')
                if k < 3: e('s_add_u32 s56, s56, 4096')
            for u in (0, 1):
                for p in (0, 1):
                    e(f'buffer_load_dwordx4 {v(V+8*u+4*p,4)}, v{L16}, {WSR}, s{57+u} offen offset:{2048+1024*p} sc1')
            for k in range(4): e(f'ds_read_b128 {v(Q+4*k,4)}, v{QA} offset:{1024*k}')
            for k in range(4):
                for tk, S_ in ((0, S0), (1, S1)):
                    e(f'v_mfma_f32_16x16x32_bf16 {v(S_,4)}, {v(K+8*k+4*tk,4)}, {v(Q+4*k,4)}, {"0" if k == 0 else v(S_,4)}')
            e(f'v_add_u32 v{QA}, 8192, v{QA}')
            e(f'v_mov_b32 v13, {fbits(-1e9*math.log2(math.e)):#x}')
            for tk, S_ in ((0, S0), (1, S1)):
                for i in range(4):
                    e(f'v_mul_f32 v{S_+i}, s{sSC}, v{S_+i}')
                    e(f'v_cndmask_b32 v{S_+i}, v13, v{S_+i}, {s(MK+2*(4*tk+i),2)}')
            e(f'v_max3_f32 v{MX}, v{S0}, v{S0+1}, v{S0+2}\nv_max3_f32 v{MX}, v{MX}, v{S0+3}, v{S1}\nv_max3_f32 v{MX}, v{MX}, v{S1+1}, v{S1+2}\nv_max_f32 v{MX}, v{MX}, v{S1+3}')
            e.label(L); e('s_waitcnt vmcnt(0) lgkmcnt(0)')
        def prepF():
            L = self.lab('pf')
            e(f's_cmp_ge_u32 s{sF}, 128\ns_cbranch_scc1 {L}')
            e(f's_lshl_b32 s56, s{sF}, 14')
            e(f'buffer_load_dword v{XR}, v{XO}, {s(SRD_X,4)}, s56 offen')
            e(f's_lshr_b32 s57, s{sF}, 1\ns_lshl_b32 s57, s57, 8\ns_add_u32 s57, s57, {F_HFL}')
            self.wait_flags(FH, 's57', 12)
            e.reset()
            e(f's_mul_i32 s57, s{sF}, {44*1024}\ns_mul_i32 s58, s{sW}, {11*1024}\ns_add_u32 s57, s57, s58\ns_add_u32 s57, s57, {HH}')
            for k in range(11):
                if k and k % 4 == 0: e('s_add_u32 s57, s57, 4096')
                e(f'buffer_load_dwordx4 {v(RING+4*k,4)}, v{L16}, {WSR}, s57 offen offset:{1024*(k%4)} sc1')
            for k in range(11):
                for p in (0, 1):
                    d = v(AF + 4 * p, 4)
                    e(f'v_mfma_f32_16x16x32_bf16 {d}, {R(WD(p,k),4)}, {v(RING+4*k,4)}, {"0" if k == 0 else d}')
            e.label(L); e('s_waitcnt vmcnt(0) lgkmcnt(0)')
        prepA(); prepF()
        e(f's_lshl_b32 s{sQL}, s{sH}, 7\ns_add_u32 s{sQL}, s{sQL}, {F_PROG}')
        DA = 162
        e(f'v_mov_b32 v{DA}, 32768')
        e.label('L_task')
        e.reset()
        e(f's_lshr_b32 s54, s{sF}, 1\ns_min_u32 s54, s54, s{sA}\ns_cmp_ge_u32 s54, 64\ns_cbranch_scc1 L_WEND')
        e(f's_cmp_lg_u32 s{sW}, 0\ns_cbranch_scc1 L_join')
        e(f's_lshr_b32 s54, s{sF}, 1\ns_min_u32 s57, s54, 63\ns_lshl_b32 s57, s57, 12\ns_add_u32 s57, s57, {F_OFL}')
        e.label('L_poll')
        e(f'buffer_load_dword v12, v{PG}, {WSR}, s{sQL} offen sc1')
        e(f's_mov_b32 exec_hi, 0\nbuffer_load_dword v13, v{FO}, {WSR}, s57 offen sc1')
        e('s_waitcnt vmcnt(0)')
        e(f's_cmp_ge_u32 s{sA}, 64\ns_cbranch_scc1 L_noattn')
        e(f's_mov_b32 s56, 1\nv_cmp_ge_u32 vcc, s{sA}, v12\ns_cbranch_vccz L_dec')
        e(f's_cmp_le_u32 s{sA}, s54\ns_cbranch_scc1 L_idle')
        e(f's_cmp_lt_u32 s{sA}, {self.o.get("hfrom", 36)}\ns_cbranch_scc1 L_noattn')
        e(f'v_readfirstlane_b32 s55, v12\ns_add_u32 s55, s55, {self.o.get("hold", 0)}\ns_min_u32 s58, s{sA}, 61\ns_cmp_le_u32 s58, s55\ns_cbranch_scc1 L_idle')
        e.label('L_noattn')
        e(f's_mov_b32 s56, 0\ns_cmp_ge_u32 s{sF}, 128\ns_cbranch_scc1 L_dec')
        e(f's_mov_b32 s56, 2\nv_cmp_eq_u32 vcc, 0, v13\ns_cbranch_vccz L_dec')
        e.label('L_idle')
        e(f's_mov_b32 s56, 0\ns_add_u32 s{sSPIN}, s{sSPIN}, 1\ns_cmp_gt_u32 s{sSPIN}, {1 << 17}\ns_cbranch_scc1 L_dec')
        e(f's_sleep {self.o.get("slp", 2)}\nv_cmp_le_u32 vcc, {self.o.get("slpt", 60)}, v12\ns_cbranch_vccnz L_poll')
        e(f's_sleep {self.o.get("slp2", 20)}\ns_branch L_poll')
        e.label('L_dec')
        e('s_mov_b64 exec, -1')
        e(f'v_mov_b32 v12, s56\nds_write_b32 v{DA}, v12\ns_waitcnt lgkmcnt(0)')
        e.label('L_join')
        e(f's_barrier\nds_read_b32 v12, v{DA}\ns_waitcnt lgkmcnt(0)\nv_xor_b32 v{DA}, 4, v{DA}\nv_readfirstlane_b32 s56, v12')
        e('s_cmp_eq_u32 s56, 1\ns_cbranch_scc1 L_attn\ns_cmp_eq_u32 s56, 0\ns_cbranch_scc1 L_WEND')
        e.label('L_final')
        e.reset()
        self.stamp2(3)
        e(f's_lshl_b32 s57, s{sF}, 17\ns_lshl_b32 s58, s{sW}, 15\ns_add_u32 s57, s57, s58\ns_add_u32 s57, s57, {OO}')
        def old(k):
            if k and k % 4 == 0: e('s_add_u32 s57, s57, 4096')
            e(f'buffer_load_dwordx4 {v(RING+4*(k%NR),4)}, v{L16}, {WSR}, s57 offen offset:{1024*(k%4)} sc1')
        for k in range(NR): old(k)
        for k in range(32):
            for p in (0, 1):
                d = v(AS + 4 * p, 4)
                e(f'v_mfma_f32_16x16x32_bf16 {d}, {R(WO(p,k),4)}, {v(RING+4*(k%NR),4)}, {"0" if k == 0 else d}')
            if k + NR < 32: old(k + NR)
        self.stamp2(4)
        for q in range(4): e(f'ds_write_b128 v{RW}, {v(AS+4*q,4)} offset:{1024*q}')
        e('s_waitcnt lgkmcnt(0)\ns_barrier')
        self.stamp2(5)
        T = RING
        for w in range(4):
            for q in range(4): e(f'ds_read_b32 v{T+4*w+q}, v{RR} offset:{4096*w+1024*q}')
        e(f'v_xor_b32 v{RW}, 0x4000, v{RW}')
        for q in range(4): e(f'v_add_f32 v{T+q}, v{T+q}, v{T+4+q}')
        for q in range(4): e(f'v_add_f32 v{T+8+q}, v{T+8+q}, v{T+12+q}')
        e(f'v_xor_b32 v{RR}, 0x4000, v{RR}')
        for q in range(4): e(f'v_add_f32 v{T+q}, v{T+q}, v{T+8+q}')
        a0, a1, f0, f1, t0, t1, u0, u1 = range(T, T + 8)
        e(f'v_cvt_pk_bf16_f32 v{t0}, v{a0}, v{a1}\nv_cvt_pk_bf16_f32 v{t1}, v{f0}, v{f1}')
        e(f'v_lshlrev_b32 v{a0}, 16, v{t0}\nv_and_b32 v{a1}, s71, v{t0}\nv_lshlrev_b32 v{f0}, 16, v{t1}\nv_and_b32 v{f1}, s71, v{t1}')
        e(f's_mov_b32 s57, {fbits(-math.log2(math.e)):#x}\ns_lshl_b32 s56, s{sF}, 14')
        e(f'v_mul_f32 v{u0}, s57, v{f0}\nv_mul_f32 v{u1}, s57, v{f1}\nv_exp_f32 v{u0}, v{u0}\nv_exp_f32 v{u1}, v{u1}')
        e(f'v_add_f32 v{u0}, 1.0, v{u0}\nv_add_f32 v{u1}, 1.0, v{u1}\nv_rcp_f32 v{u0}, v{u0}\nv_rcp_f32 v{u1}, v{u1}')
        e(f'v_mul_f32 v{f0}, v{f0}, v{u0}\nv_mul_f32 v{f1}, v{f1}, v{u1}\nv_cvt_pk_bf16_f32 v{t1}, v{f0}, v{f1}')
        e(f'v_lshlrev_b32 v{f0}, 16, v{t1}\nv_and_b32 v{f1}, s71, v{t1}\nv_mul_f32 v{a0}, v{a0}, v{f0}\nv_mul_f32 v{a1}, v{a1}, v{f1}')
        e(f'v_cvt_pk_bf16_f32 v{t0}, v{a0}, v{a1}\nv_lshlrev_b32 v{a0}, 16, v{t0}\nv_and_b32 v{a1}, s71, v{t0}')
        e(f'v_lshlrev_b32 v{f0}, 16, v{XR}\nv_and_b32 v{f1}, s71, v{XR}\nv_add_f32 v{a0}, v{a0}, v{f0}\nv_add_f32 v{a1}, v{a1}, v{f1}')
        e(f'v_cvt_pk_bf16_f32 v{t0}, v{a0}, v{a1}')
        e(f'buffer_store_dword v{t0}, v{XO}, {s(SRD_A,4)}, s56 offen')
        e(f's_add_u32 s{sF}, s{sF}, 14')
        prepF()
        e('s_branch L_task')
        e.label('L_attn')
        e.reset()
        self.stamp2(0)
        e(f's_lshl_b32 s56, s{sA}, 18\ns_lshl_b32 s57, s{sH}, 13\ns_add_u32 s56, s56, s57\ns_add_u32 s56, s56, {KVM}')
        e(f's_add_u32 s57, s56, 4096\ns_lshl_b32 s58, s{sEH}, 12\ns_add_u32 s58, s58, s56')
        for k in range(4):
            e(f'buffer_load_dwordx4 {v(KM+4*k,4)}, v{KMA}, {WSR}, s{56+k//2} offen offset:{2048*(k%2)} sc1')
        for u in (0, 1):
            e(f'buffer_load_dwordx2 {v(VM+4*u,2)}, v{L8}, {WSR}, s58 offen offset:{2048*u+1024} sc1')
        e(f's_lshl_b32 s56, s{sA}, 1\ns_add_u32 s56, s56, s{sQT}\ns_lshl_b32 s57, s56, 17\ns_lshl_b32 s58, s{sH}, 12\ns_add_u32 s57, s57, s58')
        e(f's_lshl_b32 s58, s{sEH}, 11\ns_add_u32 s57, s57, s58\ns_add_u32 s57, s57, {OO}')
        e(f's_lshl_b32 s56, s{sA}, 12\ns_lshl_b32 s58, s{sH}, 7\ns_add_u32 s56, s56, s58\ns_add_u32 s56, s56, {F_OFL}')
        e(f'v_mov_b32 v{PM+1}, 0')
        for k in range(4):
            e(f'v_mfma_f32_16x16x32_bf16 {v(SMm,4)}, {v(KM+4*k,4)}, {v(Q+4*k,4)}, {"0" if k == 0 else v(SMm,4)}')
        for u in (0, 1): e(f'v_mov_b32 v{VM+4*u+2}, v{VM+4*u+1}\nv_mov_b32 v{VM+4*u+3}, v{VM+4*u}')
        self.stamp2(1)
        e(f'v_mul_f32 v{SMm}, s{sSC}, v{SMm}\nv_mul_f32 v{SMm+1}, s{sSC}, v{SMm+1}\nv_max3_f32 v14, v{MX}, v{SMm}, v{SMm+1}')
        self.red_g('v_max_f32', 14, 15)
        vals = [S0 + i for i in range(4)] + [S1 + i for i in range(4)] + [SMm, SMm + 1]
        for x in vals: e(f'v_sub_f32 v{x}, v{x}, v14')
        for x in vals: e(f'v_exp_f32 v{x}, v{x}')
        e(f'v_add_f32 v14, v{vals[0]}, v{vals[1]}')
        for x in vals[2:]: e(f'v_add_f32 v14, v14, v{x}')
        self.red_g('v_add_f32', 14, 15)
        e('v_rcp_f32 v14, v14')
        for x in vals: e(f'v_mul_f32 v{x}, v{x}, v14')
        for tk, S_ in ((0, S0), (1, S1)):
            for hh in (0, 1): e(f'v_cvt_pk_bf16_f32 v{PX+2*tk+hh}, v{S_+2*hh}, v{S_+2*hh+1}')
        e(f'v_cvt_pk_bf16_f32 v{PM}, v{SMm}, v{SMm+1}')
        for u in (0, 1):
            for p in (0, 1):
                e(f'v_mfma_f32_16x16x32_bf16 {v(OA + 8 * u + 4 * p, 4)}, {v(V+8*u+4*p,4)}, {v(PX,4)}, 0')
        for u in (0, 1):
            for p in (0, 1):
                d = v(OA + 8 * u + 4 * p, 4)
                e(f'v_mfma_f32_16x16x16_bf16 {d}, {v(VM+4*u+2*p,2)}, {v(PM,2)}, {d}')
        for u in (0, 1):
            for i in range(4): e(f'v_cvt_pk_bf16_f32 v{KM+4*u+i}, v{OA+8*u+i}, v{OA+8*u+4+i}')
            e(f'buffer_store_dwordx4 {v(KM+4*u,4)}, v{L16}, {WSR}, s57 offen offset:{1024*u} sc1')
        self.stamp2(6)
        e('s_waitcnt vmcnt(0)')
        self.stamp2(2)
        e(f's_barrier\ns_cmp_lg_u32 s{sW}, 0\ns_cbranch_scc1 L_nofl')
        e(f's_mov_b64 exec, 1\nbuffer_store_dword v{ONE}, off, {WSR}, s56 sc1\ns_mov_b64 exec, -1')
        e.label('L_nofl'); e.reset()
        e(f's_cmp_lt_u32 s{sA}, 3\ns_cselect_b32 s54, 3, 7\ns_add_u32 s{sA}, s{sA}, s54')
        prepA()
        e('s_branch L_task')
        e.label('L_WEND')
        e.reset()
        self.dstamp(7, 112)
        self.stamp(7)
        if self.dev:
            for idx in range(7):
                e.raw(f'v_mov_b32 v112, s{4+2*idx}'); e.raw(f'buffer_store_dword v112, off, {WSR}, s97 offset:{4*(idx+1)}')
        e('s_branch L_END')

    def chain(self):
        e = self.e; o = self.o
        e.label('L_CHAIN'); e.reset()
        self.dstamp(3, 6)
        sH = sJ
        LW, LMEM, LTR, LZ = 0, 131072, 139264, 144384
        SXO = 14336
        TRS = 1280
        L16, L8, IDX, H1S, H2S, MEMW, MEMR, WST, TRW, KTR, Q0R, Q1R, QQR, K2R, LN0, OW, OR_, PFA, PFL, FLGV, VMK = \
            0, 1, 2, 3, 4, 5, 6, 9, 10, 11, 12, 13, 14, 15, 16, 17, 18, 19, 20, 21, 22
        SEL, ONES, MEMA, ACK, ACQ, ACV, KX, VX, SX, SM_, ST = 24, 28, 32, 64, 72, 80, 88, 96, 104, 108, 112
        seq = []
        for m in 'qkv':
            for sl in (0, 1):
                for p in (0, 1): seq.append((m, sl, p))
        for m in 'qkv':
            for sl in range(2, 8):
                for p in (0, 1): seq.append((m, sl, p))
        for b in range(4): seq.append(('o', 0, b))
        for b in range(4):
            for sl in (1, 2, 3): seq.append(('o', sl, b))
        bA, bB, bC, bD = ST, ST + 8, KX, VX
        bE, bF, bG = MEMA + 8, MEMA + 16, MEMA + 24
        staged = {1: bC, 3: bD, 5: bA, 7: bB, 2: bE, 4: bF, 6: bG, 30: bA, 33: bB, 39: bA, 38: bB, 48: bB, 49: bA, 61: bD, 62: bA, 63: bB}
        slot = {n: i for i, n in enumerate(sorted(staged))}
        pool = list(range(256, 512, 8)) + list(range(128, 256, 8))
        home = {}; pos = {key: n for n, key in enumerate(seq)}
        gorder = [(m, sl) for m in o.get('mo', 'kvq') for sl in (0, 2, 4, 6, 1, 3, 5, 7)]
        for key in [(m, sl, p) for m, sl in gorder for p in (0, 1)] + [k_ for k_ in seq if k_[0] == 'o']:
            home[key] = None if pos[key] in staged else pool.pop(0)
        assert not pool
        LN = 111
        G, C = 110, 109
        e(f'v_mov_b32 v{LN}, v0\nv_lshrrev_b32 v{G}, 4, v0\nv_and_b32 v{C}, 15, v0')
        e(f'v_lshlrev_b32 v{L8}, 3, v{LN}\nv_lshlrev_b32 v{L16}, 4, v{LN}')
        e(f's_lshl_b32 s54, s{sW}, 15\nv_add_u32 v{WST}, s54, v{L16}')
        sH1S, sH1S2, sH1L, sH2S, sH2L, sKV, sKVM, sT, sSEN, sSC, sPROG, sFL = 60, 61, 62, 63, 64, 65, 66, 67, 68, 69, 70, 71
        e(f's_mov_b32 s{sSEN}, {SENT:#x}\ns_mov_b32 s{sSC}, {fbits(CSC):#x}\ns_mov_b32 s58, 0')
        e(f's_lshl_b32 s54, s{sH}, 2\ns_add_u32 s54, s54, s{sW}\ns_lshl_b32 s{sH1L}, s54, 11\ns_add_u32 s{sH1L}, s{sH1L}, {H1}')
        e(f's_mov_b32 s{sH1S}, {H1}\ns_mov_b32 s{sH1S2}, {H1+4096}')
        for i in range(4): e(f'v_mov_b32 v{SX+i}, s{sSEN}')
        e(f's_xor_b32 s55, s{sH1L}, 0x40000')
        for sb in (sH1L, 55):
            for m in (0, 1): e(f'buffer_store_dwordx4 {v(SX,4)}, v{L16}, {WSR}, s{sb} offen offset:{1024*m}')
        e(f's_lshr_b32 s54, s{sH}, 3\ns_bfe_u32 s55, s{sH}, 0x20001\ns_and_b32 s56, s{sH}, 1')
        e(f's_lshr_b32 s59, s55, 1\ns_and_b32 s55, s55, 1')
        e(f's_lshl_b32 s57, s{sW}, 1\ns_add_u32 s57, s57, s56\ns_lshl_b32 s57, s57, 10\ns_lshl_b32 s58, s54, 8\ns_add_u32 s57, s57, s58\ns_lshl_b32 s58, s55, 7\ns_add_u32 s57, s57, s58\ns_lshl_b32 s58, s59, 5\ns_add_u32 s57, s57, s58')
        e(f'v_lshrrev_b32 v100, 1, v{G}\nv_lshlrev_b32 v100, 6, v100\nv_and_b32 v102, 1, v{G}\nv_lshlrev_b32 v102, 4, v102\nv_add_u32 v100, v100, v102')
        e(f'v_lshlrev_b32 v101, 2, v{C}\nv_add3_u32 v{H2S}, v100, v101, s57')
        e(f's_mov_b32 s{sH2S}, {H2}\ns_lshl_b32 s{sH2L}, s{sW}, 11\ns_add_u32 s{sH2L}, s{sH2L}, {H2}')
        self.srd(SRD_A, sMEM, 8192)
        e(f's_lshl_b32 s57, s55, 12\ns_lshl_b32 s58, s54, 8\ns_add_u32 s57, s57, s58\ns_lshl_b32 s58, s56, 7\ns_add_u32 s57, s57, s58\ns_lshl_b32 s58, s{sW}, 2\ns_add_u32 s57, s57, s58\ns_lshl_b32 s58, s59, 1\ns_add_u32 s57, s57, s58')
        e(f'v_lshlrev_b32 v100, 10, v{G}\nv_lshlrev_b32 v101, 5, v{C}\nv_add_u32 v100, v100, v101')
        e(f's_mov_b32 s72, 0x000f000f\ns_mov_b32 s73, 0x000f000f\ns_mov_b32 s74, 0x00ff00ff\ns_mov_b32 s75, 0x00ff00ff')
        e(f's_mov_b64 exec, s[72:73]')
        e(f'buffer_load_ushort v20, v100, {s(SRD_A,4)}, s57 offen\nbuffer_load_ushort v21, v100, {s(SRD_A,4)}, s57 offen offset:16')
        e(f's_xor_b32 s55, s{sH2S}, 0x2000')
        e(f'buffer_store_dword v{SX}, v{H2S}, {WSR}, s55 offen')
        e(f's_mov_b64 exec, -1')
        def pub0():
            e(f'v_lshl_or_b32 v20, v21, 16, v20\nv_mov_b32 v21, -1\nv_cmp_eq_u32 vcc, s{sSEN}, v20\nv_cndmask_b32 v20, v20, v21, vcc')
            e(f's_mov_b64 exec, s[72:73]\nbuffer_store_dword v20, v{H2S}, {WSR}, s{sH2S} offen\ns_mov_b64 exec, -1')
        self.srd(SRD_A, sWO, 1 << 22)
        e(f'v_lshlrev_b32 v100, 12, v{G}\nv_lshlrev_b32 v101, 4, v{C}')
        e(f's_lshl_b32 s54, s{sH}, 17\ns_lshl_b32 s55, s{sW}, 8\ns_add_u32 s54, s54, s55\nv_add3_u32 v100, v100, v101, s54')
        TB = 24
        def stage_write(key, regs):
            sl = slot[pos[key]]
            e(f'ds_write_b128 v{WST}, {v(regs,4)} offset:{sl*2048}\nds_write_b128 v{WST}, {v(regs+4,4)} offset:{sl*2048+1024}')
        def arrive():
            e('s_barrier')
            L = self.lab('arr')
            e(f's_cmp_lg_u32 s{sW}, 0\ns_cbranch_scc1 {L}')
            e.raw(f'v_mov_b32 v102, 4'); e.raw('v_mov_b32 v103, 1'); e.raw('s_mov_b64 exec, 1')
            e.raw(f'global_atomic_add v102, v103, {s(sDBG,2)}'); e.raw('s_mov_b64 exec, -1')
            e.label(L)
        for u in range(4):
            e(f's_lshl_b32 s54, s{sW}, 3\ns_add_u32 s54, s54, {2*u}\ns_lshr_b32 s{56+u}, 0x93d2e1e4, s54\ns_and_b32 s{56+u}, s{56+u}, 3\ns_lshl_b32 s{80+u}, s{56+u}, 14\ns_lshl_b32 s{56+u}, s{56+u}, 15')
        SRD_K = 84
        self.srd(SRD_K, sWK, 1 << 22); self.srd(SRD_B, sWQ, 1 << 22); self.srd(SRD_X, sWV, 1 << 22)
        PV_, BW, BR = 101, 104, 105
        e(f's_lshr_b32 s54, s{sW}, 1\ns_lshl_b32 s54, s54, 20\ns_and_b32 s55, s{sW}, 1\ns_lshl_b32 s89, s55, 18\ns_add_u32 s54, s54, s89\ns_lshl_b32 s89, s{sH}, 8\ns_add_u32 s54, s54, s89')
        e(f'v_lshlrev_b32 v102, 13, v{G}\nv_lshlrev_b32 v103, 4, v{C}\nv_add3_u32 v{PV_}, v102, v103, s54')
        e(f's_lshl_b32 s55, s55, 6\nv_xor_b32 v102, s55, v{L16}\ns_lshl_b32 s54, s{sW}, 12\ns_add_u32 s54, s54, {LMEM}\nv_add_u32 v{BW}, s54, v102')
        e(f'v_lshlrev_b32 v102, 2, v{C}\ns_lshl_b32 s54, s{sW}, 6\nv_add_u32 v102, s54, v102\nv_and_b32 v103, 1, v{G}\nv_lshlrev_b32 v103, 6, v103\nv_xor_b32 v102, v102, v103')
        e(f'v_lshlrev_b32 v103, 12, v{G}\nv_add_u32 v102, v102, v103')
        for u in range(4): e(f's_lshr_b32 s54, s{80+u}, 5\ns_add_u32 s54, s54, {LMEM}\nv_add_u32 v{BR+u}, s54, v102')
        RB, TT = 2, 102
        rbk = list(range(176, 192))
        def put(d, Y, X, sel):
            if d < 256: e(f'v_perm_b32 v{d}, v{Y}, v{X}, s{sel}')
            else: e(f'v_perm_b32 v{TT + (d & 1)}, v{Y}, v{X}, s{sel}\nv_accvgpr_write_b32 a{d-256}, v{TT + (d & 1)}')
        def wo_issue(sl, t0):
            for rp in range(4):
                row = 16 * (rp >> 1) + 2 * (rp & 1)
                e(f's_add_u32 s54, s{56+sl}, {row*1024}')
                e(f'buffer_load_dwordx4 {v(t0+8*rp,4)}, v100, {s(SRD_A,4)}, s54 offen')
                e(f'buffer_load_dwordx4 {v(t0+8*rp+4,4)}, v100, {s(SRD_A,4)}, s54 offen offset:1024')
        def wo_finish(sl, t0):
            for bb in range(4):
                key = ('o', sl, bb); d = home[key]; dd = ST + 8 * (bb & 1) if d is None else d
                for rho in range(8):
                    t_ = t0 + 8 * (rho >> 1)
                    put(dd + rho, t_ + 4 + bb, t_ + bb, sPHI if rho & 1 else sPLO)
                if d is None: stage_write(key, dd)
            e('s_waitcnt lgkmcnt(0)')
        corder = [(m, x, j) for m in o.get('mo', 'kvq') for x in (0, 1) for j in range(4)]
        def pj_issue(k, t0):
            m, x, j = corder[k]; srd = {'k': SRD_K, 'q': SRD_B, 'v': SRD_X}[m]
            for i in range(4):
                row = 256 * (j >> 1) + 16 * (j & 1) + 64 * x + 4 * i
                e(f's_mov_b32 s54, {row*8192}')
                e(f'buffer_load_dwordx4 {R(t0+4*i,4)}, v{PV_}, {s(srd,4)}, s54 offen')
        def pj_finish(k, t0):
            m, x, j = corder[k]; bo = (k & 1) * 16384
            for i in range(4): e(f'ds_write_b128 v{BW}, {R(t0+4*i,4)} offset:{bo + 1024*i}')
            e('s_waitcnt lgkmcnt(0)\ns_barrier')
            for u in range(4):
                for hf in (0, 1):
                    e(f'ds_read2st64_b32 {v(rbk[4*u+2*hf],2)}, v{BR+u} offset0:{bo//256 + hf} offset1:{bo//256 + hf + 8}')
            for u in range(4):
                for p in (0, 1):
                    key = (m, 2 * u + x, p); d = home[key]; t_ = ST + 4 * u + 2 * p
                    for hf in (0, 1):
                        put(d + 2 * j + hf if d is not None else t_ + hf, rbk[4*u+2*hf] + 1, rbk[4*u+2*hf], sPHI if p else sPLO)
                    if d is None:
                        e(f'ds_write_b64 v{WST}, {v(t_,2)} offset:{slot[pos[key]]*2048 + 1024*(j>>1) + 8*(j&1)}')
        first_user = {}
        for k, (m, x, j) in enumerate(corder):
            for u in range(4):
                for p in (0, 1):
                    h_ = home[(m, 2 * u + x, p)]
                    if h_ is not None: first_user.setdefault(h_ & ~15, k)
        free = list(range(496, 255, -16))
        land = {}; nxt_g = [0]
        def pump(cap):
            while nxt_g[0] < 24 and len(e.vmq) + 4 <= cap:
                k = nxt_g[0]
                c_ = [b_ for b_ in free if first_user.get(b_, 99) >= k]
                if not c_: break
                b_ = min(c_, key=lambda x: first_user.get(x, 99)); free.remove(b_); land[k] = b_
                pj_issue(k, b_); nxt_g[0] += 1
        cap = o.get('cap', 12)
        e('s_movk_i32 s88, 0x80')
        e(f's_lshl_b32 s54, s{sH}, 10\ns_lshl_b32 s55, s{sW}, 8\ns_add_u32 s{sFL}, s54, s55\ns_add_u32 s{sFL}, s{sFL}, {F_KVX}')
        free[:] = [192, 208, 224, 240, 32, 48, 64, 80]
        for b_ in (32, 48, 64, 80): first_user[b_] = 16
        def chk_issue():
            e(f'v_mov_b32 v98, 0\nglobal_load_dword v96, v98, {s(sDBG,2)} offset:4 sc1\nglobal_load_dword v97, v98, {s(sDBG,2)} offset:192 sc1')
        def chk_done():
            e(f'v_cmp_gt_u32 vcc, 32, v96\nv_cmp_gt_u32 s[76:77], s88, v97')
            e('s_or_b64 vcc, vcc, s[76:77]\ns_cbranch_vccz L_cok')
            q_ = (list(e.dsq), list(e.vmq))
            self.wait_counter(4, 32, 96); self.wait_counter(192, 128, 96)
            e.label('L_cok'); e.reset(*q_)
        def consts():
            e(f'v_bfe_u32 v113, v{C}, 1, 1\nv_mov_b32 v114, 0x4444\nv_mov_b32 v115, 0xeeee\nv_cmp_eq_u32 vcc, 1, v113\nv_cndmask_b32 v{IDX}, v114, v115, vcc')
            e(f'v_cmp_lt_u32 vcc, 7, v{C}\nv_cndmask_b32 v114, v114, v115, vcc\nv_lshl_or_b32 v{IDX}, v114, 16, v{IDX}')
            e(f'v_lshlrev_b32 v114, 1, v{G}\nv_lshrrev_b32 v115, 3, v{C}\nv_add_u32 v114, v114, v115\nv_lshlrev_b32 v114, 13, v114')
            e(f'v_and_b32 v116, 7, v{C}\nv_lshlrev_b32 v117, 3, v116\ns_lshl_b32 s54, s{sW}, 16\ns_lshl_b32 s55, s{sH}, 6\ns_add_u32 s54, s54, s55\nv_add3_u32 v{H1S}, v114, v117, s54')
            e(f's_lshl_b32 s54, s{sW}, 11\ns_add_u32 s54, s54, {LMEM}\nv_add_u32 v{MEMW}, s54, v{L16}')
            for u in (1, 2, 3):
                e(f's_lshr_b32 s54, s{80+u}, 3\ns_add_u32 s54, s54, {LMEM}\nv_add_u32 v{MEMR+u-1}, s54, v{L16}')
            e(f's_mul_i32 s90, s{sW}, {TRS}\ns_add_u32 s90, s90, {LTR}')
            e(f'v_lshrrev_b32 v114, 2, v{C}\nv_mul_u32_u24 v114, 144, v114\nv_lshlrev_b32 v117, 5, v{G}\nv_and_b32 v118, 3, v{C}\nv_lshlrev_b32 v118, 2, v118')
            e(f'v_add3_u32 v114, v114, v117, v118\nv_add_u32 v{TRW}, s90, v114')
            e(f'v_lshrrev_b32 v114, 2, v{C}\nv_lshlrev_b32 v114, 1, v114\nv_and_b32 v117, 1, v{C}\nv_add_u32 v119, v114, v117')
            e(f'v_mul_u32_u24 v120, 144, v{G}\nv_lshlrev_b32 v114, 7, v{G}\nv_lshlrev_b32 v117, 2, v{C}\nv_add_u32 v{KTR}, v114, v117')
            e(f'v_lshlrev_b32 v114, 4, v116\ns_add_u32 s91, s90, 640\nv_add3_u32 v{QQR}, v120, v114, s91')
            e(f'v_mov_b32 v114, {LZ}\nv_cmp_eq_u32 vcc, 0, v115\nv_cndmask_b32 v{Q0R}, v114, v{QQR}, vcc\nv_cndmask_b32 v{Q1R}, v{QQR}, v114, vcc')
            e(f'v_mul_u32_u24 v114, {TRS}, v115\nv_lshlrev_b32 v117, 4, v116\nv_add3_u32 v114, v114, v117, v120\nv_add_u32 v{QQR}, {LTR+640}, v114')
            e(f'v_mul_u32_u24 v114, {TRS}, v113\nv_lshlrev_b32 v117, 4, v119\nv_add3_u32 v114, v114, v117, v120\nv_add_u32 v{K2R}, {LTR}, v114')
            e(f'v_lshlrev_b32 v114, 3, v{G}\nv_add_u32 v114, v114, v116')
            e(f'v_lshlrev_b32 v{PFA}, 7, v{LN}\nv_mov_b32 v114, {WS_BYTES:#x}\nv_cmp_lt_u32 vcc, 31, v{LN}\nv_cndmask_b32 v{PFA}, v{PFA}, v114, vcc')
            e(f'v_mov_b32 v114, 0x3f80\nv_mov_b32 v117, 0x3f800000\nv_mov_b32 v118, 0')
            for i in range(4):
                c0 = 4 * (2 * (i & 1)) + (i >> 1); c1 = c0 + 4
                e(f'v_cmp_eq_u32 vcc, {c0}, v{C}\nv_cndmask_b32 v{SEL+i}, v118, v114, vcc\nv_cmp_eq_u32 vcc, {c1}, v{C}\nv_cndmask_b32 v{SEL+i}, v{SEL+i}, v117, vcc')
            for i in range(4): e(f'v_mov_b32 v{ONES+i}, 0x3f803f80')
            e(f's_lshl_b32 s54, s{sH}, 14\ns_lshl_b32 s55, s{sW}, 12\ns_add_u32 s{sKV}, s54, s55\ns_add_u32 s{sKV}, s{sKV}, {KV}')
            e(f's_lshl_b32 s54, s{sH}, 13\ns_lshl_b32 s55, s{sW}, 11\ns_add_u32 s{sKVM}, s54, s55\ns_add_u32 s{sKVM}, s{sKVM}, {KVM - 0x40000}')
            e(f's_lshl_b32 s54, s{sH}, 7\ns_lshl_b32 s55, s{sW}, 2\ns_add_u32 s{sPROG}, s54, s55\ns_add_u32 s{sPROG}, s{sPROG}, {F_PROG}')
            e(f's_mov_b32 s{sT}, 0')
        pump(o.get('cap0', 20) + 7)
        consts()
        pub0()
        for k in range(24):
            pj_finish(k, land[k]); free.append(land[k]); pump(o.get('cap0', 20) if k < o.get('capn', 4) else cap)
            if k == 10: arrive()
            if k == o.get('padk', 14): e.raw('; PADCALL')
            if o.get('wst') and k in (7, 15, 23): self.stamp2({7: 4, 15: 5, 23: 6}[k])
            if k == 21: wo_issue(0, 32)
            if k == 23: chk_issue(); wo_issue(1, 64)
        wo_finish(0, 32); wo_issue(2, 32)
        wo_finish(1, 64); wo_issue(3, 64); chk_done()
        wo_finish(2, 32)
        e(f'buffer_load_dwordx2 v[22:23], off, {WSR}, s{sFL} sc1')
        wo_finish(3, 64)
        e('s_waitcnt lgkmcnt(0)\ns_barrier')
        self.dstamp(4, 100)
        self.stamp(2, (100,))
        if self.dev and o.get('wst'):
            for idx in (4, 5, 6):
                e.raw(f'v_mov_b32 v100, s{4+2*idx}'); e.raw(f'buffer_store_dword v100, off, {WSR}, s97 offset:{4*(idx-2)}')
            e.raw('s_waitcnt vmcnt(0)')
        for i in range(4): e(f'v_mov_b32 v{SX+i}, 0')
        e(f'v_mov_b32 v101, {LZ}\nds_write_b128 v101, {v(SX,4)}')
        FLA = L8
        e('s_waitcnt lgkmcnt(0)')
        def flag_spin(off):
            L = self.lab('fs'); D = self.lab('fsd')
            e.label(L)
            e.raw(f'buffer_load_dword v{FLGV}, off, {WSR}, s{sFL} offset:{off} sc1'); e.raw('s_waitcnt vmcnt(0)')
            e.raw(f'v_cmp_eq_u32 vcc, 0, v{FLGV}'); e.raw(f's_cbranch_vccz {D}')
            self.spin_check()
            e.raw('s_sleep 1'); e.raw(f's_branch {L}')
            e.label(D)
        self.dstamp(10, 100)
        e('s_waitcnt vmcnt(0)\nv_min_u32 v22, v22, v23\nv_cmp_eq_u32 vcc, 0, v22\ns_cbranch_vccz L_f01')
        flag_spin(0); flag_spin(4)
        e.label('L_f01')
        e(f's_add_u32 s{sFL}, s{sFL}, 8')
        e('s_barrier')
        self.dstamp(5, 100)
        self.stamp(3, (100,))
        def rf(n, half=None):
            r = staged[n]; sl = slot[n]
            t = [f'ds_read_b128 {v(r,4)}, v{WST} offset:{sl*2048}', f'ds_read_b128 {v(r+4,4)}, v{WST} offset:{sl*2048+1024}']
            return '\n'.join(t) if half is None else t[half]
        OAq = 64; WA = MEMA
        def S(n, fill=None):
            m, sl, p = seq[n]
            if m == 'o': d, A = WA + 4 * p, (SX if sl == 0 else OAq + 4 * (sl - 1))
            else: d, A = {'k': ACK, 'q': ACQ, 'v': ACV}[m] + 4 * p, MEMA + 4 * sl
            hm = home[seq[n]]
            B = R(hm, 8) if hm is not None else v(staged[n], 8)
            e(f'v_smfmac_f32_16x16x64_bf16 {v(d,4)}, {v(A,4)}, {B}, v{IDX}' + (' abid:1' if m == 'o' else ''))
            if fill: e(fill)
            if n in o.get('at', ()): self.ct(f'*.n{n}')
        def zero(r0, n):
            for r in range(r0, r0 + n, 2): e(f'v_mov_b64 {v(r,2)}, 0')
        def nops(cyc):
            n = cyc // 4
            while n > 0:
                k = min(n, 16); e(f's_nop {k-1}'); n -= k
        for n in (1, 3, 5, 7, 2, 6): e(rf(n))
        zero(ACK, 24)
        sTC, sTT, sTM = 74, 75, 57
        e(f's_mov_b32 s{sTC}, 0x10000\ns_mov_b32 s{sTT}, 0\ns_mov_b32 s{sTM}, 0\nv_mov_b32 v{OW}, s{sSEN}\nv_mov_b32 v{OR_}, 0xfffe0000')
        e(f'v_mov_b32 v{FLGV}, 0\nv_mov_b32 v{LN0}, {WS_BYTES:#x}\nv_mov_b32 v{SM_}, v{H2S}\nv_mov_b32 v{H2S}, {WS_BYTES:#x}\nv_mov_b64 {v(VMK,2)}, 0')
        e(f's_mov_b64 exec, 1\nv_mov_b32 v{LN0}, 0\ns_mov_b64 exec, s[72:73]\nv_mov_b32 v{H2S}, v{SM_}\ns_mov_b64 exec, -1')
        e('s_mov_b32 s58, 0')
        if self.dev: e('s_mov_b32 s93, 0\ns_mov_b32 s94, 0\ns_memtime s[100:101]\ns_waitcnt lgkmcnt(0)')
        self.ct_init()
        e('s_waitcnt lgkmcnt(0)')
        add = lambda x: f'v_add_f32 v{x}, v{x}, v{x+2}'
        z1 = lambda r0: f'v_mov_b64 {v(r0,2)}, 0'
        J = lambda *t: '\n'.join(t)
        def nxt():
            e(f's_xor_b32 s{sH2S}, s{sH2S}, 0x2000')
            e(f's_bfe_u32 s{sTM}, s{sT}, 0x10001\ns_lshl_b32 s{sTT}, s{sTM}, 16\ns_xor_b32 s{sTC}, s{sTT}, 0x10000')
            e(f's_add_u32 s55, s{sKV}, 0x80000\ns_add_u32 s56, s{sKVM}, 0x40000')
        nxt()
        y1, y2 = o.get('y1', 120), o.get('y2', 120)
        P1, RD = MEMA + 16, MEMA + 24
        p2 = lambda: [e(f'buffer_load_dwordx4 {v(MEMA+4*m,4)}, v{L16}, {WSR}, s{sH2L} offen offset:{1024*m} sc1') for m in (0, 1)]
        p1 = lambda: [e(f'buffer_load_dwordx4 {v(P1+4*m,4)}, v{L16}, {WSR}, s{sH1L} offen offset:{1024*m} sc1') for m in (0, 1)]
        red1 = f'v_mfma_f32_16x16x32_bf16 {v(RD,4)}, {v(SEL,4)}, {v(P1,4)}, 0'
        red2 = f'v_mfma_f32_16x16x32_bf16 {v(RD,4)}, {v(SEL,4)}, {v(P1+4,4)}, {v(RD,4)}'
        def wait_check(r, x, fail, m1='', m2=''):
            e(f's_waitcnt vmcnt({x+1})')
            e(f'v_max3_u32 v{SM_}, v{r}, v{r+1}, v{r+2}\nv_max_u32 v{SM_}, v{SM_}, v{r+3}')
            e(m1)
            e(f's_waitcnt vmcnt({x})')
            e(f'v_max3_u32 v{SM_}, v{SM_}, v{r+4}, v{r+5}\nv_max3_u32 v{SM_}, v{SM_}, v{r+6}, v{r+7}')
            e(m2)
            e(f'v_cmp_le_u32 vcc, s{sSEN}, v{SM_}\ns_cbranch_vccnz {fail}')
        def wait_check1(x, fail):
            r = P1
            e(f's_waitcnt vmcnt({x+1})')
            e(f'v_bitop3_b32 v{SM_}, v{r}, v{r+2}, s{sTM} bitop3:0x7e')
            e(red1)
            e(f's_waitcnt vmcnt({x})')
            e(f'v_bitop3_b32 v{SM_+1}, v{r+4}, v{r+6}, s{sTM} bitop3:0x7e')
            e(red2)
            e(f'v_bitop3_b32 v{SM_}, v{SM_}, v{SM_+1}, 1 bitop3:0xa8')
            e(f'v_cmp_ne_u32 vcc, 0, v{SM_}\ns_cbranch_vccnz {fail}')
        def publish():
            for sh in (4, 8):
                e(f'v_add_f32_dpp v{RD}, v{RD}, v{RD} row_ror:{sh} row_mask:0xf bank_mask:0xf\nv_add_f32_dpp v{RD+1}, v{RD+1}, v{RD+1} row_ror:{sh} row_mask:0xf bank_mask:0xf')
            e(f'v_cvt_pk_bf16_f32 v{PFL}, v{RD}, v{RD+1}')
            e(f'buffer_store_dword v{PFL}, v{H2S}, {WSR}, s{sH2S} offen')
        e.raw('.p2align 6')
        for _ in range(o.get('al', 0)): e.raw('s_nop 0')
        mw = lambda i: f'ds_write_b64 v{MEMW}, {v(MEMA+2*i,2)} offset:{1024*(i>>1)+8*(i&1)}'
        mr = lambda u, m: f'ds_read_b128 {v(MEMA+8+8*u+4*m,4)}, v{MEMR+u} offset:{1024*m}'
        kvl = lambda i: f'buffer_load_dwordx4 {v(KX+4*i,4)}, v{L16}, {WSR}, s{sKV} offen offset:{1024*i} sc1'
        RM = 108; KP = 110
        kst = lambda i, sr: f'buffer_store_dword v{KP+i}, v{KTR}, {WSR}, s{sr} offen offset:{64*i} sc1'
        arm2 = f'buffer_store_dword v{OW}, v{H2S}, {WSR}, s{sH2S} offen'
        spec = 0
        def poll2(tag):
            e.label(f'L_step{tag}')
            e.reset(); e.track = False
            p2()
            if y2:
                nops(y2); p2()
            if y1: e(f's_waitcnt vmcnt({4 if y2 else 2})')
            e(rf(4))
            dsq0 = list(e.dsq)
            wait_check(MEMA, 2 if y2 else 0, 'L_f2')
            e.label(f'L_ok2{tag}')
            e.track = True
            e.reset(dsq=dsq0, vmq=[set(), set()] if y2 else [])
        def early():
            cts = list(self.cts); self.cts = []
            poll2('e')
            self.ct('01.got2'); self.cts = cts
            e(mw(0)); S(0, mw(1)); S(1, mw(2)); S(2, mw(3)); S(3, J(arm2, kvl(0))); S(4, kvl(1)); S(5, kvl(2)); S(6, kvl(3))
            if o.get('eb', 7) == 8: S(7)
            e.lgkm_for_writes()
            e('s_barrier')
            e(J(mr(0, 0), mr(0, 1), mr(1, 0)))
            if o.get('eb', 7) == 7: S(7)
            e('s_branch L_join2')
        e(f's_cmp_lt_u32 s{sW}, 3\ns_cbranch_scc1 L_stepe')
        poll2('')
        self.ct('01.got2')
        nb = o.get('nb', 5)
        fl = {n: [] for n in range(64)}
        e(mw(0)); fl[0].append(mw(1)); fl[1].append(mw(2)); fl[2].append(mw(3))
        fl[nb].append(mr(0, 1)); fl[min(7, nb + 2)].append(mr(1, 0))
        fl[3] += [arm2, kvl(0)]; fl[4].append(kvl(1)); fl[5].append(kvl(2)); fl[6].append(kvl(3))
        for n in range(8):
            if n == nb: e(J('s_barrier', mr(0, 0)))
            S(n, J(*fl[n]))
        e.label('L_join2')
        self.ct('1.join')
        pf = f'buffer_load_dword v{PFL}, v{PFA}, {WSR}, s55 offen sc1'
        pfn = o.get('pfn', 30)
        for n, t_ in ((12, mr(1, 1)), (14, mr(2, 0)), (16, mr(2, 1)),
                      (13, kst(0, sKVM)), (15, kst(1, sKVM)), (17, f'buffer_store_dwordx2 {v(VMK,2)}, v{L8}, {WSR}, s{sKVM} offen offset:1024 sc1'),
                      (21, f'buffer_store_dword v{SX}, v{LN0}, {WSR}, s{sPROG} offen sc1'), (23, f'buffer_load_dword v{FLGV}, off, {WSR}, s{sFL} sc1'),
                      (pfn, pf),
                      (18, rf(30, 0)), (20, rf(30, 1)), (22, rf(33, 0)), (23, 's_nop 0'), (24, rf(33, 1)), (24, 's_nop 0'),
                      (25, add(ACQ)), (25, add(ACQ + 1)), (26, add(ACQ + 4)), (26, add(ACQ + 5)),
                      (14, f'v_mov_b32 v{RM}, 0xff800000'), (16, f'v_mov_b32 v{RM+1}, 0xff800000'), (19, f'v_mov_b32 v{SX}, s58')):
            fl[n].append(t_)
        for n in range(12, 27):
            S(n, J(*fl[n]))
            if n == 13:
                e.lgkm_for_writes()
                e('s_barrier')
            if n in (13, 18, 25): self.ct(f'1.s{n}')
        S(27, f'v_cvt_pk_bf16_f32 v{ACQ+2}, v{ACQ}, v{ACQ+4}\nv_cvt_pk_bf16_f32 v{ACQ+3}, v{ACQ+1}, v{ACQ+5}')
        QB0, QB1 = ACQ, ACQ + 4
        S(28, J(f'ds_write2_b32 v{TRW}, v{ACQ+2}, v{ACQ+3} offset0:160 offset1:164', f'ds_read_b128 {v(QB0,4)}, v{Q0R}'))
        S(29, f'ds_read_b128 {v(QB1,4)}, v{Q1R}')
        S(30, J(*fl[30], 's_waitcnt vmcnt(6)'))
        self.ct('1.s30')
        S(31, rf(39, 0))
        S(32, rf(39, 1))
        S(33, rf(38, 0))
        S(34, J(rf(38, 1), 's_nop 0'))
        S(35, 's_nop 1')
        self.ct('015.kend')
        Q2 = MEMA
        e(f'v_mfma_f32_16x16x32_bf16 {v(SX,4)}, {v(KX,4)}, {v(QB0,4)}, 0')
        e(J(add(ACK), add(ACK + 1)))
        e(f'v_mfma_f32_16x16x32_bf16 {v(SX,4)}, {v(KX+4,4)}, {v(QB1,4)}, {v(SX,4)}')
        e(J(add(ACK + 4), add(ACK + 5)))
        e(f'v_cvt_pk_bf16_f32 v{KP}, v{ACK}, v{ACK+4}\nv_cvt_pk_bf16_f32 v{KP+1}, v{ACK+1}, v{ACK+5}')
        self.ct('5.kp')
        S(8, J(f'ds_write2_b32 v{TRW}, v{KP}, v{KP+1} offset0:0 offset1:4', f'ds_write_b128 v{MEMW}, {v(SX,4)} offset:{SXO}'))
        self.ct('5.w')
        S(9, f's_cmp_eq_u32 s{sT}, 63')
        S(10)
        S(11)
        z5 = o.get('z5', 1)
        rest = [36, 37, 39, 40, 41, 42, 43]
        for n in rest[:z5]: S(n)
        rest = rest[z5:]
        self.ct('5.s40')
        e.lgkm_for_writes()
        e('s_barrier')
        e('s_cbranch_scc1 L_CEND')
        st63 = (list(e.dsq), list(e.vmq)); rest63 = list(rest)
        self.ct('0125.barS')
        K2 = ACK
        RX = [88, 72, 92]; SMD = 76
        pka = lambda d, x: f'v_pk_add_f32 {v(d,2)}, {v(d,2)}, {v(x,2)}'
        rx = lambda u: f'ds_read_b128 {v(RX[u],4)}, v{MEMR+u} offset:{SXO}'
        e(f'ds_read_b128 {v(K2,4)}, v{K2R}\nds_read_b128 {v(Q2,4)}, v{QQR}')
        S(rest.pop(0), J(f'ds_read_b128 {v(K2+4,4)}, v{K2R} offset:{2*TRS}', f'ds_read_b128 {v(Q2+4,4)}, v{QQR} offset:{2*TRS}'))
        S(rest.pop(0), rx(0))
        S(rest.pop(0), rx(1))
        S(rest.pop(0), rx(2))
        self.ct('2.s43')
        e(f'v_mfma_f32_16x16x32_bf16 {v(SMD,4)}, {v(K2,4)}, {v(Q2,4)}, 0')
        S(rest.pop(0))
        e(f'v_mfma_f32_16x16x32_bf16 {v(SMD,4)}, {v(K2+4,4)}, {v(Q2+4,4)}, {v(SMD,4)}')
        while rest: S(rest.pop(0))
        self.ct('2.m2')
        for i in range(4): e(f'v_add_f32 v{SX+i}, v{SX+i}, v{RX[0]+i}')
        e(J(pka(SX, RX[1]), pka(SX + 2, RX[1] + 2), pka(SX, RX[2]), pka(SX + 2, RX[2] + 2)))
        e(f'v_add_f32_dpp v{RM}, v{SMD+2}, v{SMD} row_ror:8 row_mask:0xf bank_mask:0x3\nv_add_f32_dpp v{RM+1}, v{SMD+3}, v{SMD+1} row_ror:8 row_mask:0xf bank_mask:0x3')
        self.ct('2.sum')
        M0, M1 = 64, 65
        e(f'v_max3_f32 v{M0}, v{SX}, v{SX+1}, v{SX+2}\nv_max3_f32 v{M0}, v{M0}, v{SX+3}, v{RM}\nv_max_f32 v{M0}, v{M0}, v{RM+1}')
        S(44, rf(49, 0))
        e(f'v_max_f32_dpp v{M1}, v{M0}, v{M0} row_ror:8 row_mask:0xf bank_mask:0xf')
        e(f'v_max_f32_dpp v{M0}, v{M0}, v{M0} row_ror:8 row_mask:0xf bank_mask:0xf')
        S(45, rf(49, 1))
        e(f'v_permlane16_swap_b32 v{M0}, v{M1}\nv_max_f32 v{M1+1}, v{M0}, v{M1}\nv_max_f32 v{M0}, v{M0}, v{M1}')
        S(38, rf(48, 0))
        e(f'v_permlane32_swap_b32 v{M0}, v{M1+1}\nv_max_f32 v{M0}, v{M0}, v{M1+1}\nv_mul_f32 v{M0}, s{sSC}, v{M0}')
        self.ct('2.red')
        fma = lambda x: f'v_fma_f32 v{x}, v{x}, s{sSC}, -v{M0}'
        ex = lambda x: f'v_exp_f32 v{x}, v{x}'
        e(J(fma(SX), fma(SX + 1), fma(SX + 2), fma(SX + 3), ex(SX), ex(SX + 1), ex(SX + 2), ex(SX + 3)))
        self.ct('2.exp')
        PX, PM, LA, OE, OO_ = 92, 68, 88, 72, 76
        e(f'v_cvt_pk_bf16_f32 v{PX}, v{SX}, v{SX+1}\nv_cvt_pk_bf16_f32 v{PX+2}, v{SX}, v{SX+1}\nv_cvt_pk_bf16_f32 v{PX+1}, v{SX+2}, v{SX+3}\nv_cvt_pk_bf16_f32 v{PX+3}, v{SX+2}, v{SX+3}')
        dp = lambda x, bm: f'v_mov_b32_dpp v{x}, v{x} row_ror:8 row_mask:0xf bank_mask:{bm}'
        e(J(dp(PX, '0xc'), dp(PX + 2, '0x3'), dp(PX + 1, '0xc'), dp(PX + 3, '0x3')))
        S(46, J(rf(48, 1), fma(RM)))
        S(47, fma(RM + 1))
        self.ct('023.P')
        e(f'v_mfma_f32_16x16x32_bf16 {v(LA,4)}, {v(ONES,4)}, {v(PX,4)}, 0')
        e(ex(RM))
        e(f'v_mfma_f32_16x16x32_bf16 {v(OE,4)}, {v(VX,4)}, {v(PX,4)}, 0')
        e(ex(RM + 1))
        e(f'v_mfma_f32_16x16x32_bf16 {v(OO_,4)}, {v(VX+4,4)}, {v(PX,4)}, 0')
        e(J(f'v_cvt_pk_bf16_f32 v{PM}, v{RM}, v{RM+1}', add(ACV), add(ACV + 1), dp(PM, '0xc'), f'v_mov_b32 v{PM+1}, 0', f'v_cvt_pk_bf16_f32 v{VMK}, v{ACV}, v{ACV+1}', add(ACV + 4)))
        self.ct('3.x')
        e(f'v_mfma_f32_16x16x16_bf16 {v(LA,4)}, {v(ONES,2)}, {v(PM,2)}, {v(LA,4)}')
        e(J(add(ACV + 5), f'v_cvt_pk_bf16_f32 v{ACV+2}, v{ACV+4}, v{ACV+5}'))
        e(f'v_mfma_f32_16x16x16_bf16 {v(OE,4)}, {v(VMK,2)}, {v(PM,2)}, {v(OE,4)}')
        e(J(f'v_mov_b32 v{ACV+3}, 0', z1(WA)))
        e(f'v_mfma_f32_16x16x16_bf16 {v(OO_,4)}, {v(ACV+2,2)}, {v(PM,2)}, {v(OO_,4)}')
        e(J(z1(WA + 2), z1(WA + 4)))
        self.ct('3.m')
        e(f'v_rcp_f32 v{LA}, v{LA}')
        e(z1(WA + 6))
        if o.get('pk', 1):
            for x in (OE, OE + 2, OO_, OO_ + 2): e(f'v_pk_mul_f32 {v(x,2)}, {v(x,2)}, {v(LA,2)} op_sel_hi:[1,0]')
        else:
            for i in range(4): e(f'v_mul_f32 v{OE+i}, v{OE+i}, v{LA}')
            for i in range(4): e(f'v_mul_f32 v{OO_+i}, v{OO_+i}, v{LA}')
        for i in range(4): e(f'v_cvt_pk_bf16_f32 v{SX+i}, v{OE+i}, v{OO_+i}')
        self.ct('3.cvt')
        if o.get('o64', 0):
            e(f'ds_write_b64 v{MEMW}, {v(SX,2)} offset:1024\nds_write_b64 v{MEMW}, {v(SX+2,2)} offset:1032')
        else:
            e(f'ds_write_b128 v{MEMW}, {v(SX,4)} offset:1024')
        S(48, J(f's_mov_b32 s{sKV}, s55', z1(WA + 8), z1(WA + 10)))
        S(49, J(f's_mov_b32 s{sKVM}, s56', z1(WA + 12), z1(WA + 14)))
        self.ct('3.z')
        e.lgkm_for_writes()
        e('s_barrier')
        self.ct('034.barB')
        for u in range(3): e(f'ds_read_b128 {v(OAq+4*u,4)}, v{MEMR+u} offset:1024')
        S(50, f'v_mov_b32 v{VMK+1}, v{ACV+2}')
        S(51)
        PK = 80
        def post(b):
            t0 = WA + 4 * b
            return [f'v_add_u32 v{t0}, s{sTC}, v{t0}', f'v_and_or_b32 v{t0}, v{t0}, v{OR_}, s{sTT}',
                    f'v_cvt_pk_bf16_f32 v{PK+1+2*b}, v{t0+2}, v{t0+3}', f'v_cvt_pk_bf16_f32 v{PK+2*b}, v{t0}, v{t0+1}',
                    f'buffer_store_dwordx2 {v(PK+2*b,2)}, v{H1S}, {WSR}, s{sH1S if b < 2 else sH1S2} offen offset:{2048*(b&1)}']
        P = [post(b) for b in range(4)]
        self.ct('4.pre')
        S(52); self.ct('4.s52'); S(53); S(54, 's_nop 1')
        S(55, J('s_nop 3', *P[0][:4])); S(56, J(P[0][4], rf(61, 0))); self.ct('4.st0')
        S(57, J(rf(61, 1), rf(62, 0))); S(58, J(rf(62, 1), rf(63, 0))); S(59, J(rf(63, 1), *P[1][:4])); S(60, J(P[1][4], 's_nop 0')); self.ct('4.s60')
        S(61, 's_nop 1'); S(62, J('s_nop 0', *P[2][:4])); S(63, P[2][4]); self.ct('4.b2')
        e(J(*P[3]))
        self.ct('04.wo')
        def stagger(d0, dd, tag):
            nops(d0)
            if dd:
                for w in (1, 2, 3):
                    e(f's_cmp_lt_u32 s{sW}, {w}\ns_cbranch_scc1 L_sg{tag}')
                    nops(dd - 8 + (o.get('g3', 70) if w == 3 else 0))
            e.label(f'L_sg{tag}')
        nr = o.get('nr', 2)
        for n in (1, 3, 5)[:nr]: e(rf(n))
        stagger(o.get('d1', 40), o.get('g1', 32), 1)
        self.ct('0.d1')
        p1()
        for n in (1, 3, 5)[nr:] + (7, 2): e(rf(n))
        if y1:
            nops(y1); p1()
        for i in range(6): e(J(z1(ACK + 2 * i), 's_nop 0'))
        e.track = False
        wait_check1(2 if y1 else 0, 'L_f1')
        e.label('L_ok1')
        publish()
        e.label('L_pub1')
        e.track = True
        e.reset(dsq=e.dsq)
        self.ct('0.pub')
        e(rf(6))
        for i in range(6, 12): e(z1(ACK + 2 * i))
        e(f's_xor_b32 s{sH1S}, s{sH1S}, 0x40000\ns_xor_b32 s{sH1S2}, s{sH1S2}, 0x40000\ns_xor_b32 s{sH1L}, s{sH1L}, 0x40000\ns_xor_b32 s{sH2L}, s{sH2L}, 0x2000')
        e(f'v_readfirstlane_b32 s54, v{FLGV}\ns_cmp_lg_u32 s54, 0\ns_cbranch_scc0 L_fslow')
        e.label('L_fok')
        e(f's_mov_b32 s58, s{sT}')
        e(f's_add_u32 s{sFL}, s{sFL}, 4\ns_add_u32 s{sT}, s{sT}, 1')
        nxt()
        if self.dev:
            e.raw(f's_cmp_lg_u32 s{sT}, 3'); e.raw('s_cbranch_scc0 L_T0'); e.label('L_T0r')
        e('s_waitcnt lgkmcnt(0)')
        self.ct_acc()
        if self.dev and o.get('trace'):
            e.raw(f's_lshl_b32 s97, s98, 2'); e.raw(f's_add_u32 s97, s97, s{sW}'); e.raw('s_lshl_b32 s97, s97, 6'); e.raw(f's_add_u32 s97, s97, s{sT}'); e.raw('s_lshl_b32 s97, s97, 5'); e.raw(f's_add_u32 s97, s97, {STP+0x40000}')
            if o.get('trace') == 2:
                e.raw('s_memrealtime s[94:95]'); e.raw('s_waitcnt lgkmcnt(0)')
            for i, sr in enumerate((26, 4, 6, 14, 16, 18, 93, 94)):
                e.raw(f'v_mov_b32 v{32+i}, s{sr}')
            e.raw(f'buffer_store_dwordx4 v[32:35], v{LN0}, {WSR}, s97 offen'); e.raw(f'buffer_store_dwordx4 v[36:39], v{LN0}, {WSR}, s97 offen offset:16')
        nops(max(0, o.get('d2', 48) - self.ct_cost() - (72 if o.get('trace') else 0)))
        e(f's_cmp_lt_u32 s{sW}, 3')
        self.ct_last()
        e('s_cbranch_scc0 L_step')
        nops(o.get('d2e', 0))
        early()
        e.label('L_fslow')
        e(f's_cmp_ge_u32 s{sT}, 62\ns_cbranch_scc1 L_fok')
        flag_spin(0)
        e('s_branch L_fok')
        if self.dev:
            e.label('L_T0'); e.raw('s_memtime s[100:101]'); e.raw('s_mov_b32 s93, 0'); e.raw('s_mov_b32 s94, 0'); e.raw('s_branch L_T0r')
        e.track = False
        def spin(tag):
            if self.dev: e(f's_add_u32 s{92+tag}, s{92+tag}, 1')
            e(f's_add_u32 s{sSPIN}, s{sSPIN}, 1\ns_cmp_gt_u32 s{sSPIN}, {1 << 19}\ns_cbranch_scc1 L_END')
        e.label('L_f1')
        p1(); spin(1)
        wait_check1(2 if y1 else 0, 'L_f1')
        publish(); e('s_branch L_pub1')
        e.label('L_f2')
        p2()
        e(f'v_cmp_lt_u32 vcc, s{sSEN}, v{SM_}')
        spin(2)
        e('s_cbranch_vccnz L_x2')
        if spec:
            e('s_nop 1'); zero(ACQ, 8); e('s_nop 0\ns_branch L_w2')
        else:
            wait_check(MEMA, 2 if y2 else 0, 'L_f2')
            e.label('L_ret2')
            e(f's_cmp_lt_u32 s{sW}, 3\ns_cbranch_scc0 L_ok2\ns_branch L_ok2e')
        e.label('L_x2')
        e('s_waitcnt vmcnt(0)')
        e(f'v_cmp_eq_u32 s[76:77], s{sSEN}, v{MEMA}')
        for i in range(1, 8): e(f'v_cmp_eq_u32 vcc, s{sSEN}, v{MEMA+i}\ns_or_b64 s[76:77], s[76:77], vcc')
        if spec:
            e('s_cbranch_scc1 L_f2'); zero(ACQ, 8); e('s_waitcnt lgkmcnt(0)'); head(0, False); e('s_branch L_ok2')
        else:
            e('s_cbranch_scc0 L_ret2\ns_branch L_f2')
        e.track = True
        e.label('L_CEND')
        e.reset(*st63)
        e(J(kst(0, 56), kst(1, 56)))
        for n in rest63 + [44, 45, 46, 47, 38]: S(n)
        e(J(add(ACV), add(ACV + 1), add(ACV + 4), add(ACV + 5)))
        e(f'v_cvt_pk_bf16_f32 v{ACV}, v{ACV}, v{ACV+1}\nv_cvt_pk_bf16_f32 v{ACV+1}, v{ACV+4}, v{ACV+5}')
        e(f'buffer_store_dwordx2 {v(ACV,2)}, v{L8}, {WSR}, s56 offen offset:1024 sc1')
        e(f's_waitcnt vmcnt(0) lgkmcnt(0)\nv_mov_b32 v{SM_}, 64\ns_mov_b64 exec, 1\nbuffer_store_dword v{SM_}, off, {WSR}, s{sPROG} sc1\ns_mov_b64 exec, -1')
        if self.dev:
            e('s_memtime s[90:91]\ns_waitcnt lgkmcnt(0)\ns_sub_u32 s90, s90, s100')
            e(f's_lshl_b32 s97, s98, 8\ns_lshl_b32 s99, s{sW}, 6\ns_add_u32 s97, s97, s99\ns_add_u32 s97, s97, {STP+32}')
            e(f'v_mov_b32 v100, s90\nv_mov_b32 v101, s93\nv_mov_b32 v102, s94\nv_mov_b32 v103, s{sSPIN}\nbuffer_store_dwordx4 v[100:103], off, {WSR}, s97')
        self.dstamp(6, 100)
        self.tick_dump(11, 2, 100, 78)
        self.stamp(7, (100,))

    def build(self):
        e = self.e
        self.prologue()
        self.ln(); self.stamp(1)
        self.qkv(); self.ffn1(); self.tailphase()
        self.chain()
        e.label('L_END')
        e('s_endpgm')
        if self.o.get('drop'):
            out_ = []; on = False
            for l in e.lines:
                if l == 'L_ok2:': on = True
                if l.startswith('s_cbranch_scc1 L_CEND'): on = False
                d = self.o['drop']
                if on and ((d & 1 and l.startswith('buffer_load_dwordx4')) or (d & 2 and l.startswith('buffer_store') and 'sc1' in l and 's70' not in l) or (d & 4 and l.startswith('buffer_load_dword v20')) or (d & 8 and l.startswith('ds_read_b128') and 'v9 ' in l) or (d & 16 and l.startswith('buffer_load_dword v21'))): l = 's_nop 0'
                out_.append(l)
            e.lines = out_
        if self.o.get('pads', 0):
            gap = self.o['pads']; L = e.lines
            i0 = L.index('L_step:'); i1 = L.index('L_fslow:')
            out_ = []; dist = 1 << 20; pads = []
            for i in range(i0, i1):
                l = L[i]; out_.append(l)
                if not l.endswith(':'): dist += 4 if l.startswith('s_') else (4 if l.split()[0] in ('v_add_f32', 'v_max_f32', 'v_mul_f32', 'v_exp_f32', 'v_mov_b64', 'v_add_u32', 'v_max_u32', 'v_rcp_f32') else 8)
                ok = False
                if l.startswith('v_smfmac'):
                    k = i + 1; ns = 0
                    while not L[k].startswith('v_'):
                        ns += (int(L[k].split()[1]) + 1) if L[k].startswith('s_nop') else 1; k += 1
                    ok = ns <= 1
                elif l.startswith('v_mfma'): ok = L[i + 1].startswith('v_')
                elif l.startswith('s_nop') and int(l.split()[1]) >= 4 and dist >= gap:
                    out_[-1] = f's_nop {int(l.split()[1]) - 1}'; ok = True
                if ok and dist >= gap:
                    pads.append(len(out_)); out_.append(None); dist = 0
            n = len(pads); cut = [n * w // 4 for w in range(5)]
            res = []
            for i, l in enumerate(out_):
                if l is None:
                    k = pads.index(i)
                    res.append(f'L_pad{k}:'); res.append(f's_cbranch_execz ' + ('L_padret' if k + 1 in cut else f'L_pad{k+1}'))
                else: res.append(l)
            L[i0:i1] = res
            j = L.index('; PADCALL')
            call = ['s_mov_b64 exec, 0']
            for w in range(3): call += [f's_cmp_eq_u32 s{sW}, {w}', f's_cbranch_scc1 L_pad{cut[w]}']
            call += [f's_branch L_pad{cut[3]}', 'L_padret:', 's_mov_b64 exec, -1']
            L[j:j + 1] = call
            sys.stderr.write(f'{n} pads\n')
        body = fix_hazards(e.lines)
        hdr = open('recurrent_scan__memory_aug_recurrent_mem_tr__glu_gated_reglu__prompt.s.ref').read().split('\n')
        top = [l for l in hdr if l.startswith(';') and '@launch' not in l and not l.startswith('; Override') and not l.startswith('; grid=')]
        out = top + ['; @launch grid=(256,1,1) block=(256,1,1) lds=163840', '.amdgcn_target "amdgcn-amd-amdhsa--gfx950"', '.text', f'.globl {KNAME}', '.p2align 8', f'.type {KNAME},@function', f'{KNAME}:']
        out += body
        out += ['.section .rodata,"a"', '.p2align 6', f'.amdhsa_kernel {KNAME}', '  .amdhsa_next_free_vgpr 512', '  .amdhsa_next_free_sgpr 102', '  .amdhsa_accum_offset 256',
                '  .amdhsa_group_segment_fixed_size 0', '  .amdhsa_kernarg_size 112', '  .amdhsa_user_sgpr_count 2', '  .amdhsa_user_sgpr_kernarg_segment_ptr 1',
                '  .amdhsa_system_sgpr_workgroup_id_x 1', '  .amdhsa_float_denorm_mode_32 3', '.end_amdhsa_kernel', '']
        return '\n'.join(out)

if __name__ == '__main__':
    import json
    dev = 'dev' in sys.argv[2:]
    opts = {}
    for a_ in sys.argv[2:]:
        if '=' in a_:
            k, x = a_.split('='); opts[k] = int(x)
    open(sys.argv[1], 'w').write(Gen(dev, opts).build())
```

```python
import re

REG = re.compile(r'^(-?\|?)([vas])(\d+)\|?$')
RNG = re.compile(r'^(-?)([vas])\[(\d+):(\d+)\]$')

def regs_of(op):
    op = op.strip()
    if op.startswith('abs(') or op.startswith('-abs('):
        op = op[op.index('(')+1:-1]
    m = REG.match(op)
    if m: return [(m.group(2), int(m.group(3)))]
    m = RNG.match(op)
    if m: return [(m.group(2), i) for i in range(int(m.group(3)), int(m.group(4))+1)]
    if op == 'vcc': return [('s', 106), ('s', 107)]
    if op == 'vcc_lo': return [('s', 106)]
    if op == 'vcc_hi': return [('s', 107)]
    if op in ('exec', 'exec_lo', 'exec_hi'): return [('x', 0)]
    if op == 'm0': return [('m', 0)]
    return []

TRANS = ('v_exp_', 'v_log_', 'v_rcp_', 'v_rsq_', 'v_sqrt_', 'v_sin_', 'v_cos_')

class Ins:
    __slots__ = ('text', 'mn', 'ops', 'kind', 'wr', 'rd', 'srcab', 'srcc', 'dpp', 'data', 'states', 'passes')
    def __init__(self, text):
        self.text = text
        t = text.split(';')[0].strip()
        self.data = []; self.srcab = []; self.srcc = []; self.wr = []; self.rd = []
        self.dpp = False; self.states = 1; self.passes = 0
        if not t or t.endswith(':') or t.startswith('.'):
            self.kind = 'label' if t.endswith(':') else 'none'; self.mn = t; self.ops = []; self.states = 0
            return
        p = t.split(None, 1)
        mn = self.mn = p[0]
        rest = p[1] if len(p) > 1 else ''
        rest = re.sub(r'(op_sel(_hi)?|neg_lo|neg_hi):\[[^\]]*\]', '', rest).strip()
        ops = [o.strip() for o in rest.split(',')] if rest else []
        if ops:
            last = ops[-1].split()
            mods = last[1:]
            ops[-1] = last[0]
        else:
            mods = []
        self.ops = ops
        R = lambda i: regs_of(ops[i]) if i < len(ops) else []
        if mn.startswith('v_mfma') or mn.startswith('v_smfmac'):
            self.kind = 'mfma'
            self.passes = 8 if '32x32' in mn else 4
            self.wr = R(0)
            if mn.startswith('v_smfmac'):
                self.srcab = R(1) + R(2) + R(3); self.srcc = R(0)
            else:
                self.srcab = R(1) + R(2); self.srcc = R(3)
            self.rd = self.srcab + self.srcc
        elif mn.startswith('v_'):
            self.kind = 'valu'
            self.dpp = '_dpp' in mn or any(m.startswith(('row_', 'quad_perm', 'wave_')) for m in mods)
            if mn.startswith('v_permlane') and 'swap' in mn:
                self.wr = R(0) + R(1); self.rd = R(0) + R(1)
            elif mn.startswith('v_cmpx'):
                self.wr = R(0) + [('x', 0)]; self.rd = R(1) + R(2)
            elif mn.startswith(('v_add_co', 'v_sub_co', 'v_addc_co', 'v_subb_co', 'v_mad_u64', 'v_div_scale')):
                self.wr = R(0) + R(1); self.rd = sum((R(i) for i in range(2, len(ops))), [])
            else:
                self.wr = R(0); self.rd = sum((R(i) for i in range(1, len(ops))), [])
                if mn.startswith(('v_fmac', 'v_pk_fmac', 'v_writelane', 'v_dot2c')) or self.dpp:
                    self.rd = self.rd + R(0)
        elif mn.startswith('ds_'):
            self.kind = 'ds'
            if mn.startswith('ds_read') or 'permute' in mn or 'swizzle' in mn or '_rtn' in mn:
                self.wr = R(0); self.rd = sum((R(i) for i in range(1, len(ops))), [])
            else:
                self.rd = sum((R(i) for i in range(len(ops))), [])
        elif mn.startswith(('global_', 'buffer_', 'flat_')):
            self.kind = 'vmem'
            allr = [R(i) for i in range(len(ops))]
            if mn in ('buffer_inv', 'buffer_wbl2'):
                pass
            elif '_load' in mn and 'lds' not in mods and '_lds_' not in mn:
                self.wr = allr[0]; self.rd = sum(allr[1:], [])
            elif 'atomic' in mn and 'sc0' in mods and mn.startswith('global_'):
                self.wr = allr[0]; self.rd = sum(allr[1:], [])
            else:
                self.rd = sum(allr, [])
                if 'x3' in mn or 'x4' in mn:
                    self.data = allr[1] if mn.startswith('global_') else allr[0]
                if 'lds' in mods or '_lds_' in mn: self.rd = self.rd + [('m', 0)]
        elif mn.startswith('s_'):
            self.kind = 'salu'
            if mn == 's_nop':
                self.states = int(ops[0], 0) + 1
            elif mn.startswith(('s_cmp', 's_cbranch', 's_branch', 's_waitcnt', 's_barrier', 's_sleep', 's_endpgm', 's_setprio', 's_bitcmp')):
                self.rd = sum((R(i) for i in range(len(ops))), [])
            else:
                self.wr = R(0); self.rd = sum((R(i) for i in range(1, len(ops))), [])
                if 'saveexec' in mn: self.wr = self.wr + [('x', 0)]
        else:
            raise ValueError('unknown instruction: ' + text)

def need(p, c):
    n = 0
    inter = lambda a, b: bool(set(a) & set(b))
    vg = lambda l: [r for r in l if r[0] in 'va']
    sg = lambda l: [r for r in l if r[0] == 's']
    if p.kind == 'valu':
        if c.kind == 'mfma' and inter(vg(p.wr), c.rd): n = max(n, 2)
        if c.kind == 'mfma' and ('x', 0) in p.wr: n = max(n, 4)
        if c.kind == 'valu':
            if c.dpp and inter(vg(p.wr), c.rd): n = max(n, 2)
            if c.dpp and ('x', 0) in p.wr: n = max(n, 5)
            if c.mn.startswith('v_permlane') and inter(vg(p.wr), c.rd): n = max(n, 2)
            if c.mn.startswith('v_permlane') and ('x', 0) in p.wr: n = max(n, 4)
            if c.mn.startswith(('v_readlane', 'v_readfirstlane')) and inter(vg(p.wr), c.rd): n = max(n, 1)
            if c.mn.startswith(('v_readlane', 'v_readfirstlane', 'v_writelane')) and ('x', 0) in p.wr: n = max(n, 4)
            if p.mn.startswith(TRANS) and inter(p.wr, c.rd): n = max(n, 1)
            if inter(sg(p.wr), c.rd): n = max(n, 4 if c.mn.startswith(('v_readlane', 'v_writelane', 'v_div_fmas')) else 2)
            if c.mn.startswith('v_cndmask') and len(c.ops) == 3 and ('s', 106) in p.wr: n = max(n, 2)
        if c.kind == 'vmem' and inter(sg(p.wr), c.rd): n = max(n, 5)
        if c.kind in ('vmem', 'ds', 'mfma') and p.mn.startswith(TRANS) and inter(p.wr, c.rd): n = max(n, 1)
        if c.kind == 'salu' and inter(sg(p.wr), c.rd): n = max(n, 1)
    if p.kind == 'mfma':
        big = {4: 8, 8: 12}[p.passes]
        if c.kind == 'mfma':
            if inter(p.wr, c.srcab): n = max(n, big)
            if inter(p.wr, c.srcc) and not (p.wr == c.srcc and p.mn == c.mn): n = max(n, big - 2)
            if inter(p.wr, c.wr) and not inter(p.wr, c.srcc): n = max(n, big - 2)
        elif c.kind in ('valu', 'vmem', 'ds'):
            if inter(p.wr, c.rd) or inter(p.wr, c.wr): n = max(n, big)
            if c.kind == 'valu' and inter(p.srcc, c.wr): n = max(n, {4: 3, 8: 7}[p.passes])
    if p.kind == 'vmem' and p.data and inter(p.data, c.wr): n = max(n, 2)
    if p.kind == 'salu' and ('m', 0) in p.wr and ('m', 0) in c.rd and c.kind in ('vmem', 'ds'): n = max(n, 1)
    return n

def pad_for(hist, c):
    h = [p for p in hist if p.states]
    miss = 0; dist = 0
    for k in range(len(h) - 1, -1, -1):
        if dist >= 12: break
        p = h[k]
        n = need(p, c)
        if n > dist:
            d = dist
            if p.kind == 'mfma':
                t = 1; last = 0; lp = p.passes
                for q in h[k + 1:] + [c]:
                    if q.kind == 'mfma':
                        t = max(t, last + lp); last = t; lp = q.passes
                    if q is not c: t += q.states
                if c.kind == 'mfma' and t - 1 < n: d = None
                else: d = t - 1
                if d is None:
                    t = 1; last = 0; lp = p.passes
                    for q in h[k + 1:]:
                        if q.kind == 'mfma':
                            t = max(t, last + lp); last = t; lp = q.passes
                        t += q.states
                    d = t - 1
            if n > d: miss = max(miss, n - d)
        dist += p.states
    return miss

def fix_hazards(lines):
    out = []
    for t in lines:
        c = Ins(t)
        if c.states:
            m = pad_for(out[-40:], c)
            if m: out.append(Ins(f's_nop {m-1}'))
        out.append(c)
    lab = {i.mn[:-1]: k for k, i in enumerate(out) if i.kind == 'label'}
    bad = []
    for k, i in enumerate(out):
        if i.kind == 'salu' and i.mn.startswith(('s_cbranch', 's_branch')) and not i.ops[0].startswith('L_pad'):
            tgt = lab[i.ops[0]]
            hist = out[max(0, k-30):k+1]
            st = 0
            for c in out[tgt:tgt+30]:
                if c.states:
                    if pad_for(hist, c): bad.append((i.text, c.text))
                    st += c.states
                    hist = hist + [c]
                    if st >= 12 or c.mn in ('s_branch', 's_endpgm'): break
    if bad:
        raise RuntimeError('branch-path hazards: %r' % bad[:5])
    return [i.text for i in out]

class Emitter:
    def __init__(self):
        self.lines = []
        self.dsq = []
        self.vmq = []
        self.track = True
        self.cap = None
    def raw(self, t): self.lines.append(t)
    def __call__(self, text):
        for t in text.split('\n'):
            t = t.strip()
            if not t: continue
            if self.cap is not None:
                self.cap.append(t); continue
            i = Ins(t)
            if self.track and i.states and self.dsq:
                touched = set(i.rd) | set(i.wr)
                last = -1
                for k, d in enumerate(self.dsq):
                    if d & touched: last = k
                if last >= 0:
                    n = len(self.dsq) - 1 - last
                    self.lines.append(f's_waitcnt lgkmcnt({min(n,15)})')
                    self.dsq = self.dsq[last+1:] if n <= 15 else self.dsq[len(self.dsq)-15:]
            if self.track and i.states and self.vmq:
                touched = set(i.rd) | (set(i.wr) if i.kind != 'vmem' else set())
                last = -1
                for k, d in enumerate(self.vmq):
                    if d & touched: last = k
                if last >= 0:
                    n = len(self.vmq) - 1 - last
                    assert n <= 63
                    self.lines.append(f's_waitcnt vmcnt({n})')
                    self.vmq = self.vmq[last+1:]
            if i.mn == 's_waitcnt':
                m = re.search(r'vmcnt\((\d+)\)', t)
                if m:
                    n = int(m.group(1)); self.vmq = self.vmq[len(self.vmq)-n:] if n and n < len(self.vmq) else ([] if n == 0 else self.vmq)
                m = re.search(r'lgkmcnt\((\d+)\)', t)
                if m:
                    n = int(m.group(1)); self.dsq = self.dsq[len(self.dsq)-n:] if n and n < len(self.dsq) else ([] if n == 0 else self.dsq)
            if i.kind == 'ds': self.dsq.append(set(i.wr))
            if i.kind == 'vmem':
                self.vmq.append(set(i.wr))
                assert len(self.vmq) <= 63, 'vmcnt overflow'
            self.lines.append(t)
    def lgkm_for_writes(self):
        if self.cap is not None: return
        last = -1
        for k, d in enumerate(self.dsq):
            if not d: last = k
        if last >= 0:
            n = len(self.dsq) - 1 - last
            self(f's_waitcnt lgkmcnt({min(n,15)})')
    def reset(self, dsq=None, vmq=None):
        self.dsq = list(dsq or []); self.vmq = list(vmq or [])
    def assert_ds_idle(self):
        assert not self.dsq, self.dsq
    def label(self, name): self.lines.append(name + ':')

def v(a, n=1): return f'v{a}' if n == 1 else f'v[{a}:{a+n-1}]'
def a(x, n=1): return f'a{x}' if n == 1 else f'a[{x}:{x+n-1}]'
def s(x, n=1): return f's{x}' if n == 1 else f's[{x}:{x+n-1}]'
def R(r, n=1):
    return v(r, n) if r < 256 else a(r-256, n)


def conflicts(items, stage_addr, pinned=()):
    I = [Ins(t) for t in items]
    n = len(I)
    def cls(i):
        if i.mn == 's_barrier': return 'bar'
        if i.mn.startswith('s_cbranch'): return 'br'
        if i.mn == 's_waitcnt': return 'wait'
        if i.kind == 'ds': return 'stage' if (i.wr and stage_addr in i.rd) else ('dsr' if i.wr else 'dsw')
        return i.kind
    C = [cls(i) for i in I]
    scc_w = lambda i: i.kind == 'salu' and i.mn.startswith(('s_cmp', 's_add', 's_sub', 's_xor', 's_and', 's_or', 's_lsh', 's_bfe', 's_min', 's_max'))
    dep = [set() for _ in range(n)]
    for a in range(n):
        for b in range(a + 1, n):
            x, y = I[a], I[b]; cx, cy = C[a], C[b]; p = {cx, cy}
            k = bool(set(x.wr) & (set(y.rd) | set(y.wr))) or bool(set(x.rd) & set(y.wr))
            if cx == 'mfma' and cy == 'mfma' and x.mn == y.mn and x.mn.startswith('v_smfmac') and x.wr == y.wr and not (set(x.wr) & set(y.srcab)) and not (set(y.wr) & set(x.srcab)):
                k = False
            if 'dsw' in p and p <= {'dsw', 'dsr'}: k = True
            if 'bar' in p and p & {'dsw', 'dsr', 'br', 'wait'} or (cx == cy == 'bar'): k = True
            if 'wait' in p and p & {'vmem', 'br'} or (cx == cy == 'vmem'): k = True
            if 'br' in p and (scc_w(x) or scc_w(y) or p & {'vmem', 'salu', 'dsr', 'dsw'}) and not (x.mn == 's_nop' or y.mn == 's_nop'): k = True
            if 'br' in p and 'valu' in p and (set(x.wr) | set(y.wr)) & set(pinned): k = True
            if 'wait' in p and (set(x.wr) | set(y.wr)) & {('v', r) for r in range(32, 40)}: k = True
            if scc_w(x) and scc_w(y): k = True
            if k: dep[a].add(b); dep[b].add(a)
    return dep
```

```python
import sys, math
sys.path.insert(0, 'gen')
from asmlib import *

KNAME = 'recurrent_scan__memory_aug_recurrent_mem_tr__glu_gated_reglu__prompt_kernel'
XN   = 0x0000000
FLG  = 0x0200000
F_KVX, F_OFL, F_HFL, F_PROG = FLG, FLG + 0x40000, FLG + 0x10000, FLG + 0x14000
H1   = 0x0300000
H2   = 0x02C0000
STP  = 0x0390000
DUM  = 0x0500000
KV   = 0x1000000
KVM  = 0x3040000
OO   = 0x4100000
HH   = 0x5100000
WS_BYTES = 0x10000000
SENT = 0xFFBFFFBF
CSC = (128 ** -0.5) * math.log2(math.e)
import struct
def fbits(x): return struct.unpack('<I', struct.pack('<f', x))[0]

sX, sMEM, sWQ, sWK, sWV, sWO, sWG, sWU, sWD, sOUT, sDBG, sWS = 4, 6, 8, 10, 12, 14, 20, 22, 24, 26, 28, 30
sW, sXCC, sJ = 32, 33, 34
SRD_WS, SRD_A, SRD_B, SRD_X = 36, 40, 44, 48
sPLO, sPHI = 52, 53
sSPIN = 35
WSR = s(SRD_WS, 4)

class Gen:
    def __init__(self, dev=False, opts=None):
        self.e = Emitter(); self.dev = dev; self.o = opts or {}
        self.uid = 0
    def lab(self, p):
        self.uid += 1; return f'L_{p}_{self.uid}'
    def srd(self, d, ptr, nbytes):
        e = self.e
        e(f's_mov_b32 s{d}, s{ptr}\ns_and_b32 s{d+1}, s{ptr+1}, 0xffff\ns_mov_b32 s{d+2}, {nbytes:#x}\ns_mov_b32 s{d+3}, 0x20000')
    def stamp(self, idx, vt=(112,)):
        if not self.dev: return
        e = self.e; t = vt[0]
        sv = (list(e.dsq), list(e.vmq))
        e.raw('s_memrealtime s[96:97]')
        e.raw('s_waitcnt lgkmcnt(0)')
        e.raw(f's_lshl_b32 s97, s98, 8')
        e.raw(f's_lshl_b32 s99, s{sW}, 6')
        e.raw(f's_add_u32 s97, s97, s99')
        e.raw(f's_add_u32 s97, s97, {STP + idx*4}')
        e.raw(f'v_mov_b32 v{t}, s96')
        e.raw(f'buffer_store_dword v{t}, off, {WSR}, s97')
        e.raw('s_waitcnt vmcnt(0)')
        e.reset()
    def dstamp(self, idx, vt, inv=False):
        if not self.o.get('dbg'): return
        e = self.e
        L = self.lab('ds')
        e.raw(f's_cmp_lg_u32 s{sW}, 0'); e.raw(f's_cbranch_scc1 {L}')
        e.raw('s_memrealtime s[96:97]'); e.raw('s_waitcnt lgkmcnt(0)')
        if inv: e.raw('s_not_b32 s96, s96')
        e.raw(f'v_mov_b32 v{vt}, {4*idx}'); e.raw(f'v_mov_b32 v{vt+1}, s96'); e.raw('s_mov_b64 exec, 1')
        e.raw(f'global_atomic_umax v{vt}, v{vt+1}, {s(sDBG,2)}'); e.raw('s_mov_b64 exec, -1')
        e.label(L); e.raw('s_waitcnt lgkmcnt(0)'); e.dsq = []
    def stamp2(self, idx):
        if self.dev: self.e.raw(f's_memrealtime s[{4+2*idx}:{5+2*idx}]')
    def tick(self, k, base=76):
        if not self.dev or not self.o.get('tick'): return
        e = self.e
        e.raw('s_memtime s[90:91]'); e.raw('s_waitcnt lgkmcnt(0)'); e.dsq = []
        if k is not None:
            e.raw('s_sub_u32 s91, s90, s88'); e.raw(f's_add_u32 s{base+k}, s{base+k}, s91')
        e.raw('s_mov_b32 s88, s90')
    def tick_init(self, n, base=76):
        if not self.dev or not self.o.get('tick'): return
        for k in range(n): self.e.raw(f's_mov_b32 s{base+k}, 0')
    def tick_dump(self, n, slot, vt, base=76):
        if not self.dev or not self.o.get('tick'): return
        e = self.e
        e.raw(f's_lshl_b32 s97, s98, 8'); e.raw(f's_lshl_b32 s99, s{sW}, 6'); e.raw('s_add_u32 s97, s97, s99')
        e.raw(f's_add_u32 s97, s97, {STP + 0x10000*(slot+1)}')
        for k in range(n):
            e.raw(f'v_mov_b32 v{vt}, s{base+k}'); e.raw(f'buffer_store_dword v{vt}, off, {WSR}, s97 offset:{4*k}')
        e.raw('s_waitcnt vmcnt(0)'); e.vmq = []
    def ct(self, tag):
        if not (self.dev and self.o.get('tick')): return
        z = tag.split('.')[0]
        if z != '*' and str(self.o.get('zoom', 0)) not in z: return
        k = len(self.cts); self.cts.append(tag); assert k < 11
        self.e.raw(f's_memtime s[{4+2*k}:{5+2*k}]')
    def ct_last(self):
        if self.dev and self.o.get('tick'): self.e.raw('s_memtime s[26:27]')
    def ct_init(self):
        self.cts = []
        if self.dev and self.o.get('tick'):
            for k in range(11): self.e.raw(f's_mov_b32 s{78+k}, 0')
            self.ct_last()
    def ct_cost(self):
        return 8 * len(self.cts)
    def ct_acc(self):
        if not (self.dev and self.o.get('tick')): return
        e = self.e
        for k in range(len(self.cts)):
            p = 26 if k == 0 else 4 + 2 * (k - 1)
            e.raw(f's_sub_u32 s91, s{4+2*k}, s{p}'); e.raw(f's_add_u32 s{78+k}, s{78+k}, s91')
        sys.stderr.write('stamps: %s\n' % self.cts)
    def spin_check(self, fail='L_END', lim=1 << 17):
        e = self.e
        e(f's_add_u32 s{sSPIN}, s{sSPIN}, 1\ns_cmp_gt_u32 s{sSPIN}, {lim}\ns_cbranch_scc1 {fail}')
    def wait_counter(self, off, target, vt):
        e = self.e; L = self.lab('wc'); D = self.lab('wcd')
        e(f'v_mov_b32 v{vt}, {off}')
        e.label(L)
        e(f'global_load_dword v{vt+1}, v{vt}, {s(sDBG,2)} sc1')
        e('s_waitcnt vmcnt(0)')
        e(f'v_readfirstlane_b32 s54, v{vt+1}')
        e(f's_cmp_ge_u32 s54, {target}\ns_cbranch_scc1 {D}')
        self.spin_check()
        e(f's_sleep 2\ns_branch {L}')
        e.label(D)
    def wait_flags(self, voff, soff, vt, thr=None):
        e = self.e; L = self.lab('wf'); D = self.lab('wfd')
        e.label(L)
        e(f'buffer_load_dword v{vt}, v{voff}, {WSR}, {soff} offen sc1')
        e('s_waitcnt vmcnt(0)')
        if thr is None: e(f'v_cmp_eq_u32 vcc, 0, v{vt}')
        else: e(f'v_cmp_ge_u32 vcc, {thr}, v{vt}')
        e(f's_cbranch_vccz {D}')
        self.spin_check()
        e(f's_sleep 2\ns_branch {L}')
        e.label(D)
    def red_g(self, op, x, t):
        e = self.e
        e(f'v_mov_b32 v{t}, v{x}\nv_permlane16_swap_b32 v{x}, v{t}\n{op} v{x}, v{x}, v{t}')
        e(f'v_mov_b32 v{t}, v{x}\nv_permlane32_swap_b32 v{x}, v{t}\n{op} v{x}, v{x}, v{t}')
    def rbf(self, d, x):
        self.e(f'v_cvt_pk_bf16_f32 v{d}, v{x}, v{x}\nv_lshlrev_b32 v{d}, 16, v{d}')

    def prologue(self):
        e = self.e
        e('s_cmp_ge_u32 s2, 256\ns_cbranch_scc1 L_END')
        e('s_load_dwordx16 s[4:19], s[0:1], 0\ns_load_dwordx8 s[20:27], s[0:1], 64\ns_load_dwordx4 s[28:31], s[0:1], 96')
        e(f's_getreg_b32 s{sXCC}, hwreg(HW_REG_XCC_ID)\ns_and_b32 s{sXCC}, s{sXCC}, 7')
        e(f's_xor_b32 s{sXCC}, s{sXCC}, {self.o.get("cx", 3)}')
        e(f'v_lshrrev_b32 v1, 6, v0\nv_readfirstlane_b32 s{sW}, v1\nv_and_b32 v0, 63, v0')
        e(f's_mov_b32 s{sSPIN}, 0\ns_mov_b32 s{sPLO}, 0x05040100\ns_mov_b32 s{sPHI}, 0x07060302')
        e('s_waitcnt lgkmcnt(0)')
        self.srd(SRD_WS, sWS, WS_BYTES)
        if self.o.get('dbg'):
            e(f's_cmp_lg_u32 s{sXCC}, 0\ns_cbranch_scc1 L_nod'); self.dstamp(2, 6, True); e.label('L_nod')
        e(f's_cmp_lg_u32 s{sW}, 0\ns_cbranch_scc1 L_notick')
        e(f's_lshl_b32 s54, s{sXCC}, 2\ns_add_u32 s54, s54, 128\ns_cmp_eq_u32 s{sXCC}, 0\ns_cselect_b32 s54, 0, s54')
        e(f'v_mov_b32 v2, s54\nv_mov_b32 v3, 1\ns_mov_b64 exec, 1')
        e(f'global_atomic_add v4, v2, v3, {s(sDBG,2)} sc0\ns_mov_b64 exec, -1')
        e.label('L_notick')
        e.reset()
        nt = 0
        if self.o.get('cpf', 1):
            nt = 1
            e.raw('s_getpc_b64 s[56:57]')
            e.label('L_pc')
            e(f's_lshr_b32 s54, s2, 3\ns_lshl_b32 s54, s54, 2\ns_add_u32 s54, s54, s{sW}\ns_and_b32 s54, s54, 7\ns_lshl_b32 s54, s54, 13')
            e('v_lshlrev_b32 v6, 7, v0\nv_add_u32 v6, s54, v6')
            e.raw('v_min_u32 v6, L_END-L_pc, v6')
            e('global_load_dword v127, v6, s[56:57]')
        if self.o.get('pre', 0):
            nt = 3
            e(f's_cmp_eq_u32 s{sW}, 1\ns_cselect_b64 s[56:57], {s(sWK,2)}, {s(sWO,2)}\ns_cmp_eq_u32 s{sW}, 2\ns_cselect_b64 s[56:57], {s(sWV,2)}, s[56:57]\ns_cmp_eq_u32 s{sW}, 3\ns_cselect_b64 s[56:57], {s(sWQ,2)}, s[56:57]')
            e(f's_lshl_b32 s54, s2, 14\ns_lshr_b32 s55, s2, 3\ns_lshl_b32 s55, s55, 2\ns_add_u32 s55, s55, s{sW}\ns_lshl_b32 s55, s55, 15')
            e(f's_cmp_eq_u32 s{sXCC}, 0\ns_cselect_b64 s[56:57], {s(sWO,2)}, s[56:57]\ns_cselect_b32 s54, s55, s54')
            self.srd(SRD_A, 56, 1 << 22); self.srd(SRD_X, sX, 2048 * 1024)
            e(f'v_lshlrev_b32 v6, 7, v0\ns_add_u32 s55, s54, 8192')
            e(f'buffer_load_dword v7, v6, {s(SRD_A,4)}, s54 offen\nbuffer_load_dword v7, v6, {s(SRD_A,4)}, s55 offen')
            e(f's_lshl_b32 s54, s2, 13\ns_cmp_eq_u32 s{sXCC}, 0\ns_cselect_b32 s{SRD_X+2}, 0, s{SRD_X+2}\ns_cmp_eq_u32 s{sW}, 1\ns_cselect_b32 s{SRD_X+2}, s{SRD_X+2}, 0')
            e(f'buffer_load_dword v7, v6, {s(SRD_X,4)}, s54 offen')
        e(f's_cmp_lg_u32 s{sW}, 0\ns_cbranch_scc1 L_notick2')
        e(f's_waitcnt vmcnt({nt})\nv_mov_b32 v5, 0\ns_mov_b64 exec, 1\nds_write_b32 v5, v4\ns_waitcnt lgkmcnt(0)\ns_mov_b64 exec, -1')
        e.label('L_notick2')
        e.reset()
        e('s_barrier\nv_mov_b32 v5, 0\nds_read_b32 v4, v5\ns_waitcnt lgkmcnt(0)')
        e(f'v_readfirstlane_b32 s{sJ}, v4')
        e('s_barrier')
        e(f's_cmp_ge_u32 s{sJ}, 32\ns_cbranch_scc1 L_END')
        if self.dev:
            e(f's_lshl_b32 s98, s{sXCC}, 5\ns_add_u32 s98, s98, s{sJ}')
            self.stamp(0)
        e(f's_cmp_eq_u32 s{sXCC}, 0\ns_cbranch_scc1 L_CHAIN')
        e(f's_sub_u32 s54, s{sXCC}, 1\ns_lshl_b32 s54, s54, 5\ns_add_u32 s{sJ}, s{sJ}, s54')

    def load_pairs(self, groups, tmp, depth, vA, vB, post=None):
        e = self.e
        n = len(groups[0][1]); T = tmp + depth * 2 * n
        def issue(k):
            srd, ents = groups[k][0], groups[k][1]
            b = tmp + (k % depth) * 2 * n
            for i, (so, _, _) in enumerate(ents):
                e(so)
                e(f'buffer_load_dword v{b+2*i}, v{vA}, {s(srd,4)}, s54 offen')
                e(f'buffer_load_dword v{b+2*i+1}, v{vB}, {s(srd,4)}, s54 offen')
        def finish(k):
            ents = groups[k][1]
            b = tmp + (k % depth) * 2 * n
            for i, (_, dE, dO) in enumerate(ents):
                for d, sel, tt in ((dE, sPLO, T), (dO, sPHI, T + 1)):
                    if d < 256: e(f'v_perm_b32 v{d}, v{b+2*i+1}, v{b+2*i}, s{sel}')
                    else: e(f'v_perm_b32 v{tt}, v{b+2*i+1}, v{b+2*i}, s{sel}\nv_accvgpr_write_b32 a{d-256}, v{tt}')
            if len(groups[k]) > 2 and groups[k][2]: groups[k][2]()
        for k in range(len(groups) + depth - 1):
            if k < len(groups): issue(k)
            if k - (depth - 1) >= 0: finish(k - (depth - 1))
            if post and k == depth - 1: post()

    def touch_qkv(self):
        e = self.e
        e(f'v_lshrrev_b32 v120, 1, v0\nv_lshlrev_b32 v120, 13, v120\nv_and_b32 v121, 1, v0\nv_lshlrev_b32 v121, 7, v121')
        e(f's_lshl_b32 s55, s62, 8\ns_sub_u32 s56, s63, 3\ns_lshl_b32 s56, s56, 2\ns_add_u32 s56, s56, s{sW}\ns_lshl_b32 s56, s56, 18\ns_add_u32 s55, s55, s56\nv_add3_u32 v120, v120, v121, s55')
        for ptr in (sWK, sWV, sWQ)[:3 - self.o.get('tq', 0)]:
            self.srd(SRD_A, ptr, 1 << 22)
            e(f'buffer_load_dword v121, v120, {s(SRD_A,4)}, 0 offen')
    def touch_rest(self):
        for ptr in (sWK, sWV, sWQ)[3 - self.o.get('tq', 0):]:
            self.srd(SRD_A, ptr, 1 << 22)
            self.e(f'buffer_load_dword v121, v120, {s(SRD_A,4)}, 0 offen')
    def ln(self):
        e = self.e
        sLN = 61
        e(f's_mul_i32 s62, s{sJ}, 9363\ns_lshr_b32 s62, s62, 16\ns_mul_i32 s54, s62, 7\ns_sub_u32 s63, s{sJ}, s54')
        e(f's_cmp_lt_u32 s63, 3\ns_cbranch_scc1 L_skipln')
        e(f's_lshl_b32 s{sLN}, s62, 2\ns_add_u32 s{sLN}, s{sLN}, s63\ns_sub_u32 s{sLN}, s{sLN}, 3')
        self.srd(SRD_X, sX, 2048 * 1024)
        e(f'v_lshlrev_b32 v1, 4, v0')
        e(f's_lshl_b32 s54, s{sLN}, 14\ns_lshl_b32 s55, s{sW}, 12\ns_add_u32 s54, s54, s55')
        for r in range(4):
            e(f'buffer_load_dwordx4 {v(16+4*r,4)}, v1, {s(SRD_X,4)}, s54 offen offset:{1024*r}')
        if self.o.get('touch', 1): self.touch_qkv()
        e(f'v_lshlrev_b32 v2, 2, v0\nv_mov_b32 v3, 0')
        e(f's_lshl_b32 s55, s{sLN}, 10\ns_lshl_b32 s56, s{sW}, 8\ns_add_u32 s55, s55, s56\ns_add_u32 s55, s55, {FLG}')
        e(f'buffer_store_dword v3, v2, {WSR}, s55 offen sc1')
        e(f'v_lshlrev_b32 v2, 7, v0\ns_lshl_b32 s55, s{sLN}, 11\ns_lshl_b32 s56, s{sW}, 9\ns_add_u32 s55, s55, s56\ns_add_u32 s55, s55, {F_OFL}')
        e(f's_mov_b64 exec, 15\nbuffer_store_dword v3, v2, {WSR}, s55 offen sc1\ns_mov_b64 exec, -1')
        F = lambda r, i: 32 + 8 * r + i
        Dv = lambda r, i: 64 + 8 * r + i
        SM, VR, T = 96, 100, 104
        e(f's_mov_b32 s56, 0xffff0000\ns_mov_b32 s57, {fbits(1.0/512):#x}\ns_mov_b32 s58, {fbits(1e-5):#x}')
        for r in range(4):
            for i in range(4):
                e(f'v_lshlrev_b32 v{F(r,2*i)}, 16, v{16+4*r+i}\nv_and_b32 v{F(r,2*i+1)}, s56, v{16+4*r+i}')
        self.touch_rest()
        def red64(base):
            for sh in (1, 2, 4, 8):
                for r in range(4):
                    e(f'v_add_f32_dpp v{base+r}, v{base+r}, v{base+r} row_ror:{sh} row_mask:0xf bank_mask:0xf')
            for sw in ('16', '32'):
                for r in range(4): e(f'v_mov_b32 v{T+r}, v{base+r}')
                for r in range(4): e(f'v_permlane{sw}_swap_b32 v{base+r}, v{T+r}')
                for r in range(4): e(f'v_add_f32 v{base+r}, v{base+r}, v{T+r}')
        for r in range(4): e(f'v_add_f32 v{SM+r}, v{F(r,0)}, v{F(r,1)}')
        for i in range(2, 8):
            for r in range(4): e(f'v_add_f32 v{SM+r}, v{SM+r}, v{F(r,i)}')
        red64(SM)
        for r in range(4): e(f'v_mul_f32 v{SM+r}, s57, v{SM+r}')
        for r in range(4):
            for i in range(8): e(f'v_sub_f32 v{Dv(r,i)}, v{F(r,i)}, v{SM+r}')
        for r in range(4): e(f'v_mul_f32 v{VR+r}, v{Dv(r,0)}, v{Dv(r,0)}')
        for i in range(1, 8):
            for r in range(4): e(f'v_fmac_f32 v{VR+r}, v{Dv(r,i)}, v{Dv(r,i)}')
        red64(VR)
        for r in range(4):
            e(f'v_mul_f32 v{VR+r}, s57, v{VR+r}')
            self.rbf(VR + r, VR + r); self.rbf(SM + r, SM + r)
            e(f'v_add_f32 v{VR+r}, s58, v{VR+r}')
            self.rbf(VR + r, VR + r)
            e(f'v_sqrt_f32 v{VR+r}, v{VR+r}')
            self.rbf(VR + r, VR + r)
            e(f'v_rcp_f32 v{T+r}, v{VR+r}')
        for r in range(4):
            for i in range(8): e(f'v_sub_f32 v{F(r,i)}, v{F(r,i)}, v{SM+r}')
            for i in range(4):
                e(f'v_cvt_pk_bf16_f32 v108, v{F(r,2*i)}, v{F(r,2*i+1)}')
                e(f'v_lshlrev_b32 v{F(r,2*i)}, 16, v108\nv_and_b32 v{F(r,2*i+1)}, s56, v108')
            for i in range(8): e(f'v_mul_f32 v{Dv(r,i)}, v{F(r,i)}, v{T+r}')
            for i in range(8): e(f'v_fma_f32 v{F(r,i)}, -v{Dv(r,i)}, v{VR+r}, v{F(r,i)}')
            for i in range(8): e(f'v_fmac_f32 v{Dv(r,i)}, v{F(r,i)}, v{T+r}')
            for i in range(4): e(f'v_cvt_pk_bf16_f32 v{16+4*r+i}, v{Dv(r,2*i)}, v{Dv(r,2*i+1)}')
        e(f'v_lshlrev_b32 v2, 8, v0\ns_lshl_b32 s55, s{sW}, 6\nv_add_u32 v2, s55, v2')
        for r in range(4): e(f'ds_write_b128 v2, {v(16+4*r,4)} offset:{16*r}')
        e('s_waitcnt lgkmcnt(0)\ns_barrier')
        e(f's_lshl_b32 s55, s{sW}, 12\nv_add_u32 v2, s55, v1')
        for r in range(4): e(f'ds_read_b128 {v(16+4*r,4)}, v2 offset:{1024*r}')
        for r in range(4): e(f'buffer_store_dwordx4 {v(16+4*r,4)}, v1, {WSR}, s54 offen offset:{1024*r} sc1')
        e('s_waitcnt vmcnt(0)\ns_barrier')
        e(f's_cmp_lg_u32 s{sW}, 0\ns_cbranch_scc1 L_noln')
        e(f'v_mov_b32 v2, 192\nv_mov_b32 v3, 1\ns_mov_b64 exec, 1\nglobal_atomic_add v2, v3, {s(sDBG,2)}\ns_mov_b64 exec, -1')
        e('s_branch L_noln')
        e.label('L_skipln')
        e.label('L_noln')
        e.reset(); e('s_waitcnt vmcnt(0)')

    def row_loop(self, name, sT, step, mf, nacc_desc, epilogue, flagoff):
        e = self.e
        PF, FR = 80, 64
        sSO, sBUF, sPREV = 56, 57, 58
        def pf_issue():
            e(f's_lshl_b32 s{sSO}, s61, 15\ns_lshl_b32 s55, s{sW}, 13\ns_add_u32 s{sSO}, s{sSO}, s55')
            e(f's_add_u32 s55, s{sSO}, 4096')
            for i in range(8):
                e(f'buffer_load_dwordx4 {v(PF+4*i,4)}, v1, {WSR}, s{sSO if i < 4 else 55} offen offset:{1024*(i%4)} sc1')
        e(f'v_lshlrev_b32 v1, 4, v0\ns_lshl_b32 s55, s{sW}, 13\nv_add_u32 v2, s55, v1\nv_mov_b32 v3, v1\nv_mov_b32 v4, 1')
        e(f's_lshl_b32 s{sPREV}, s{sJ}, 2\ns_add_u32 s{sPREV}, s{sPREV}, s{sW}\ns_lshl_b32 s{sPREV}, s{sPREV}, 7\ns_add_u32 s{sPREV}, s{sPREV}, {DUM}')
        e(f's_mov_b32 s61, s{sT}')
        pf_issue()
        nst = self._nst
        e('s_mov_b64 exec, 1')
        for _ in range(nst): e(f'buffer_store_dword v4, off, {WSR}, s{sPREV}')
        e('s_mov_b64 exec, -1')
        e('s_barrier')
        self.tick_init(6); self.tick(None)
        L = f'L_{name}_loop'
        e.label(L)
        q0 = list(e.vmq)
        for i in range(8): e(f'ds_write_b128 v2, {v(PF+4*i,4)} offset:{1024*i}')
        if step == 7: e(f's_cmp_lt_u32 s{sT}, 3\ns_cselect_b32 s60, 3, 7')
        else: e(f's_mov_b32 s60, {step}')
        e(f's_add_u32 s61, s{sT}, s60\ns_min_u32 s61, s61, 63')
        e('s_waitcnt lgkmcnt(0)')
        self.tick(0)
        pf_issue()
        self.tick(1)
        e('s_barrier')
        self.tick(2)
        rd = lambda k: (e(f'ds_read_b128 {v(FR+8*(k%2),4)}, v3 offset:{1024*k}'), e(f'ds_read_b128 {v(FR+8*(k%2)+4,4)}, v3 offset:{16384+1024*k}'))
        rd(0)
        for k in range(16):
            if k < 15: rd(k + 1)
            mf(k, FR + 8 * (k % 2), FR + 8 * (k % 2) + 4)
            if k == 7:
                e('s_waitcnt vmcnt(8)')
                e(f's_mov_b64 exec, 1\nbuffer_store_dword v4, off, {WSR}, s{sPREV} sc1\ns_mov_b64 exec, -1')
        e('v_xor_b32 v2, 0x8000, v2\nv_xor_b32 v3, 0x8000, v3')
        self.tick(3)
        flagoff(sPREV)
        epilogue()
        e('s_waitcnt lgkmcnt(0)')
        self.tick(5)
        assert len(e.vmq) == len(q0), (len(e.vmq), len(q0))
        e(f's_add_u32 s{sT}, s{sT}, s60\ns_cmp_lt_u32 s{sT}, 64\ns_cbranch_scc1 {L}')
        e('s_waitcnt vmcnt(0)')
        e(f's_mov_b64 exec, 1\nbuffer_store_dword v4, off, {WSR}, s{sPREV} sc1\ns_mov_b64 exec, -1')
        e('s_barrier')
        e.reset(vmq=[set()])
        self.tick_dump(6, 0 if name == 'qkv' else 1, 112)

    def qkv(self):
        e = self.e
        sH, sSUB, sT, sQ = 62, 63, 64, 65
        e(f's_mul_i32 s{sH}, s{sJ}, 9363\ns_lshr_b32 s{sH}, s{sH}, 16\ns_mul_i32 s54, s{sH}, 7\ns_sub_u32 s{sSUB}, s{sJ}, s54')
        self.srd(SRD_A, sWK, 1 << 22); self.srd(SRD_B, sWV, 1 << 22); self.srd(SRD_X, sWQ, 1 << 22)
        W = lambda m, p, k: [256, 384, 128][m] + (k * 2 + p) * 4
        if self.o.get('two', 1):
            L = self.lab('two')
            e(f's_cmp_lt_u32 s{sSUB}, 3\ns_cbranch_scc1 {L}')
            self.srd(84, sWO, 1 << 22)
            e(f's_lshl_b32 s54, s61, 2\ns_add_u32 s54, s54, s{sW}\ns_lshl_b32 s54, s54, 13\nv_lshlrev_b32 v120, 7, v0')
            e.raw('buffer_load_dword v121, v120, s[84:87], s54 offen')
            e.label(L)
        e(f'v_lshrrev_b32 v3, 4, v0\nv_and_b32 v4, 15, v0\nv_lshlrev_b32 v1, 13, v3\nv_lshlrev_b32 v2, 4, v4')
        e(f's_lshl_b32 s54, s{sH}, 8\ns_lshl_b32 s55, s{sW}, 17\ns_add_u32 s54, s54, s55\nv_add3_u32 v1, v1, v2, s54\nv_xor_b32 v2, 64, v1')
        e(f'v_lshlrev_b32 v4, 2, v4\ns_lshl_b32 s54, s{sW}, 6\nv_add_u32 v4, s54, v4\nv_and_b32 v5, 1, v3\nv_lshlrev_b32 v5, 6, v5\nv_xor_b32 v4, v4, v5')
        e(f'v_lshlrev_b32 v3, 11, v3\nv_add_u32 v3, v3, v4\nv_add_u32 v4, 0x10000, v3\ns_lshl_b32 s56, s{sW}, 12')
        dep = self.o.get('wdep', 5)
        def w_issue(k):
            srd = (SRD_A, SRD_B, SRD_X)[k >> 3]
            e(f's_add_u32 m0, s56, {(k & 7) * 16384}')
            for n in range(4):
                e(f's_mov_b32 s54, {((k & 7) * 64 + 4 * n) * 8192 - 1024 * n}')
                e(f'buffer_load_dwordx4 v{1 + (n >> 1)}, {s(srd,4)}, s54 offen offset:{1024*n} lds')
        e('s_barrier')
        for k in range(dep): w_issue(k)
        for k in range(24):
            e(f's_waitcnt vmcnt({4 * (min(24, k + dep) - k - 1)})\ns_barrier')
            if k + dep < 24: w_issue(k + dep)
            m = k >> 3; T0 = 16 + 16 * (k & 1)
            for j in range(8):
                of = 64 * (k & 3) + 32 * (j >> 2) + 2 * (j & 3)
                e(f'ds_read2st64_b32 {v(T0+2*j,2)}, v{3 + ((k >> 2) & 1)} offset0:{of} offset1:{of+1}')
            for j in range(8):
                kk = 2 * (k & 7) + (j >> 2)
                for p, sel in ((0, sPLO), (1, sPHI)):
                    d = W(m, p, kk) + (j & 3)
                    if d < 256: e(f'v_perm_b32 v{d}, v{T0+2*j+1}, v{T0+2*j}, s{sel}')
                    else: e(f'v_perm_b32 v{48+p}, v{T0+2*j+1}, v{T0+2*j}, s{sel}\nv_accvgpr_write_b32 a{d-256}, v{48+p}')
        self.stamp(2)
        self.wait_counter(192, 128, 8)
        self.stamp(3)
        self.dstamp(8, 112)
        if self.o.get('dbg'):
            e(f's_cmp_ge_u32 s{sSUB}, 3\ns_cbranch_scc1 L_nod2'); self.dstamp(11, 112); e.label('L_nod2')
        ACC = lambda m, p, t: 16 + ((m * 2 + p) * 2 + t) * 4
        def mf(k, X0, X1):
            for m in (0, 1, 2):
                for p in (0, 1):
                    for t, X in ((0, X0), (1, X1)):
                        d = v(ACC(m, p, t), 4); c = '0' if k == 0 else d
                        if m == 1: e(f'v_mfma_f32_16x16x32_bf16 {d}, {v(X,4)}, {R(W(m,p,k),4)}, {c}')
                        else: e(f'v_mfma_f32_16x16x32_bf16 {d}, {R(W(m,p,k),4)}, {v(X,4)}, {c}')
        def flagoff(sd):
            e(f's_lshl_b32 s{sd}, s{sH}, 10\ns_lshl_b32 s55, s{sW}, 8\ns_add_u32 s{sd}, s{sd}, s55\ns_lshl_b32 s55, s{sT}, 2\ns_add_u32 s{sd}, s{sd}, s55\ns_add_u32 s{sd}, s{sd}, {F_KVX}')
        def epi():
            e(f's_lshl_b32 s54, s{sT}, 19\ns_lshl_b32 s55, s{sH}, 14\ns_add_u32 s54, s54, s55\ns_lshl_b32 s55, s{sW}, 12\ns_add_u32 s54, s54, s55\ns_add_u32 s54, s54, {KV}')
            for t in (0, 1):
                o = 112 + 4 * t
                for i in range(4): e(f'v_cvt_pk_bf16_f32 v{o+i}, v{ACC(0,0,t)+i}, v{ACC(0,1,t)+i}')
                e(f'buffer_store_dwordx4 {v(o,4)}, v1, {WSR}, s54 offen offset:{1024*t} sc1')
            for p in (0, 1):
                o = 120 + 4 * p
                for t in (0, 1):
                    for hh in (0, 1): e(f'v_cvt_pk_bf16_f32 v{o+2*t+hh}, v{ACC(1,p,t)+2*hh}, v{ACC(1,p,t)+2*hh+1}')
                e(f'buffer_store_dwordx4 {v(o,4)}, v1, {WSR}, s54 offen offset:{2048+1024*p} sc1')
            for t in (0, 1):
                o = 64 + 4 * t
                for i in range(4): e(f'v_cvt_pk_bf16_f32 v{o+i}, v{ACC(2,0,t)+i}, v{ACC(2,1,t)+i}')
                e(f'ds_write_b128 v6, {v(o,4)} offset:{4096*t}')
            e('v_add_u32 v6, 8192, v6')
        e(f'v_lshlrev_b32 v6, 4, v0\ns_lshl_b32 s55, s{sW}, 10\ns_add_u32 s55, s55, 65536\nv_add_u32 v6, s55, v6')
        e(f's_cmp_lt_u32 s{sSUB}, 3\ns_cselect_b32 s54, 0, 3\ns_add_u32 s{sSUB}, s{sSUB}, s54\ns_mov_b32 s{sT}, s{sSUB}')
        self._nst = 5
        self.row_loop('qkv', sT, 7, mf, None, epi, flagoff)
        self.stamp(4)

    def ffn1(self):
        e = self.e
        sT, sPH = 64, 65
        e(f's_cmp_ge_u32 s{sJ}, 220\ns_cbranch_scc1 L_noffn')
        e(f's_mul_i32 s{sT}, s{sJ}, 5958\ns_lshr_b32 s{sT}, s{sT}, 16\ns_mul_i32 s54, s{sT}, 11\ns_sub_u32 s54, s{sJ}, s54')
        e(f's_lshl_b32 s{sPH}, s54, 2\ns_add_u32 s{sPH}, s{sPH}, s{sW}')
        self.srd(SRD_A, sWG, 512 * 2752); self.srd(SRD_B, sWU, 512 * 2752)
        e(f'v_lshrrev_b32 v1, 4, v0\nv_mul_u32_u24 v1, {8*2752}, v1\nv_and_b32 v2, 15, v0\nv_lshlrev_b32 v2, 2, v2')
        e(f's_lshl_b32 s54, s{sPH}, 6\nv_add3_u32 v1, v1, v2, s54\nv_add_u32 v2, 2752, v1')
        W = lambda m, p, k: 256 + m * 128 + (k * 2 + p) * 4
        groups = []
        for m, srd in ((0, SRD_A), (1, SRD_B)):
            for k2 in range(8):
                ents = []
                for k in (2 * k2, 2 * k2 + 1):
                    for i in range(4):
                        ents.append((f's_mov_b32 s54, {(32*k + 2*i) * 2752}', W(m, 0, k) + i, W(m, 1, k) + i))
                groups.append((srd, ents))
        self.load_pairs(groups, 16, 3, 1, 2)
        ACC = lambda m, p, t: 16 + ((m * 2 + p) * 2 + t) * 4
        def mf(k, X0, X1):
            for m in (0, 1):
                for p in (0, 1):
                    for t, X in ((0, X0), (1, X1)):
                        d = v(ACC(m, p, t), 4); c = '0' if k == 0 else d
                        e(f'v_mfma_f32_16x16x32_bf16 {d}, {R(W(m,p,k),4)}, {v(X,4)}, {c}')
        def flagoff(sd):
            e(f's_lshl_b32 s{sd}, s{sT}, 8\ns_lshl_b32 s55, s{sPH}, 2\ns_add_u32 s{sd}, s{sd}, s55\ns_add_u32 s{sd}, s{sd}, {F_HFL}')
        def epi():
            e(f's_mul_i32 s54, s{sT}, {2*44*1024}\ns_lshl_b32 s55, s{sPH}, 10\ns_add_u32 s54, s54, s55\ns_add_u32 s54, s54, {HH}\ns_add_u32 s55, s54, {44*1024}')
            e('s_mov_b32 s59, 0xffff0000')
            for t in (0, 1):
                o = 112 + 4 * t
                for i in range(4):
                    g0, g1, u0, u1 = ACC(0, 0, t) + i, ACC(0, 1, t) + i, ACC(1, 0, t) + i, ACC(1, 1, t) + i
                    e(f'v_cvt_pk_bf16_f32 v120, v{g0}, v{g1}\nv_cvt_pk_bf16_f32 v121, v{u0}, v{u1}')
                    e(f'v_lshlrev_b32 v{g0}, 16, v120\nv_and_b32 v{g1}, s59, v120\nv_lshlrev_b32 v{u0}, 16, v121\nv_and_b32 v{u1}, s59, v121')
                    e(f'v_max_f32 v{g0}, 0, v{g0}\nv_max_f32 v{g1}, 0, v{g1}')
                    e(f'v_mul_f32 v{g0}, v{g0}, v{u0}\nv_mul_f32 v{g1}, v{g1}, v{u1}')
                    e(f'v_cvt_pk_bf16_f32 v{o+i}, v{g0}, v{g1}')
                e(f'buffer_store_dwordx4 {v(o,4)}, v1, {WSR}, s{54+t} offen sc1')
        self._nst = 3
        self.row_loop('ffn', sT, 20, mf, None, epi, flagoff)
        e.label('L_noffn')
        e.reset(); e('s_waitcnt vmcnt(0)')
        self.stamp(5)

    def tailphase(self):
        e = self.e
        sH, sSUB = 62, 63
        sA, sF, sCS, sQT, sEH, sQL, sSC = 64, 65, 66, 67, 68, 69, 70
        MK = 72
        e(f's_lshr_b32 s{sF}, s{sJ}, 5\ns_bfe_u32 s54, s{sJ}, 0x10004\ns_mul_i32 s54, s54, 7\ns_add_u32 s{sF}, s{sF}, s54\ns_and_b32 s{sCS}, s{sJ}, 15\ns_mov_b32 s{sA}, s{sSUB}')
        e(f's_lshr_b32 s{sQT}, s{sW}, 1\ns_and_b32 s{sEH}, s{sW}, 1')
        self.srd(SRD_A, sWO, 1 << 22); self.srd(SRD_B, sWD, 1376 * 1024)
        e(f'v_lshrrev_b32 v1, 4, v0\nv_lshlrev_b32 v1, 13, v1\nv_and_b32 v2, 15, v0\nv_lshlrev_b32 v2, 2, v2')
        e(f's_lshl_b32 s54, s{sCS}, 6\nv_add3_u32 v1, v1, v2, s54\nv_add_u32 v2, 1024, v1')
        e(f's_lshl_b32 s56, s{sW}, 20\ns_mul_i32 s57, s{sW}, {11*32*1024}')
        WO = lambda p, k: 256 + (k * 2 + p) * 4
        WD = lambda p, k: 168 + (k * 2 + p) * 4
        groups = []
        for k in range(11):
            groups.append((SRD_B, [(f's_add_u32 s54, s57, {(32*k + 2*i) * 1024}', WD(0, k) + i, WD(1, k) + i) for i in range(4)]))
        for k in range(32):
            groups.append((SRD_A, [(f's_add_u32 s54, s56, {(32*k + 2*i) * 1024}', WO(0, k) + i, WO(1, k) + i) for i in range(4)]))
        self.load_pairs(groups, 16, 7, 1, 2)
        self.srd(SRD_A, sOUT, 2048 * 1024); self.srd(SRD_X, sX, 2048 * 1024)
        L16, L8, ONE, QA, FO, FH, RW, RR, XO, PG = 1, 2, 3, 4, 5, 6, 7, 8, 9, 10
        e(f'v_lshlrev_b32 v{L16}, 4, v0\nv_lshlrev_b32 v{L8}, 3, v0\nv_mov_b32 v{ONE}, 1')
        e(f's_lshl_b32 s54, s{sQT}, 12\ns_add_u32 s54, s54, 65536\nv_add_u32 v{QA}, s54, v{L16}')
        e(f'v_and_b32 v11, 15, v0\nv_and_b32 v{FO}, 31, v0\nv_lshlrev_b32 v{FO}, 7, v{FO}')
        e(f'v_min_u32 v{FH}, 10, v0\nv_lshlrev_b32 v{FH}, 2, v{FH}\ns_mul_i32 s54, s{sW}, 44\nv_add_u32 v{FH}, s54, v{FH}')
        e(f's_lshl_b32 s54, s{sW}, 12\nv_add_u32 v{RW}, s54, v{L16}')
        e(f'v_lshrrev_b32 v12, 4, v0\nv_bfe_u32 v13, v0, 2, 2\nv_and_b32 v14, 3, v0')
        e(f'v_lshlrev_b32 v13, 8, v13\nv_lshlrev_b32 v15, 4, v12\nv_lshlrev_b32 v14, 2, v14\nv_add3_u32 v{RR}, v13, v15, v14')
        e(f's_lshl_b32 s54, s{sW}, 6\nv_add_u32 v{RR}, s54, v{RR}')
        e(f'v_lshlrev_b32 v12, 10, v12\nv_lshlrev_b32 v13, 2, v11\ns_lshl_b32 s54, s{sW}, 12\ns_lshl_b32 s55, s{sCS}, 6\ns_add_u32 s54, s54, s55\nv_add3_u32 v{XO}, v12, v13, s54')
        e(f'v_and_b32 v{PG}, 3, v0\nv_lshlrev_b32 v{PG}, 2, v{PG}')
        KMA = 160
        e(f'v_lshrrev_b32 v12, 2, v11\nv_lshlrev_b32 v12, 7, v12\nv_and_b32 v13, 1, v11\nv_lshlrev_b32 v13, 6, v13\nv_and_b32 v14, 48, v0\nv_add3_u32 v{KMA}, v12, v13, v14')
        e(f's_lshl_b32 s54, s{sQT}, 4\nv_add_u32 v12, s54, v11\nv_lshrrev_b32 v13, 4, v0\nv_lshlrev_b32 v13, 2, v13\nv_sub_u32 v12, v12, v13')
        for tk in (0, 1):
            for i in range(4):
                e(f'v_cmp_le_i32 {s(MK+2*(4*tk+i),2)}, {16*tk+i}, v12')
        e(f's_mov_b32 s{sSC}, {fbits(CSC):#x}\ns_mov_b32 s71, 0xffff0000')
        self.stamp(6)
        self.dstamp(9, 112)
        XR = 11; AS, AF = 16, 24
        Q, V, S0, S1, MX = 32, 48, 64, 68, 161
        RING = 72; NR = 22
        K, KM, VM, SMm, PX, PM, OA = 72, 104, 120, 128, 132, 136, 140
        def prepA():
            L = self.lab('pa')
            e(f's_cmp_ge_u32 s{sA}, 64\ns_cbranch_scc1 {L}')
            e(f's_lshl_b32 s56, s{sA}, 19\ns_lshl_b32 s57, s{sH}, 14\ns_add_u32 s56, s56, s57\ns_add_u32 s56, s56, {KV}')
            e(f's_lshl_b32 s57, s{sEH}, 13\ns_add_u32 s57, s57, s56\ns_add_u32 s58, s57, 4096')
            for k in range(4):
                for tk in (0, 1):
                    e(f'buffer_load_dwordx4 {v(K+8*k+4*tk,4)}, v{L16}, {WSR}, s56 offen offset:{1024*tk} sc1')
                if k < 3: e('s_add_u32 s56, s56, 4096')
            for u in (0, 1):
                for p in (0, 1):
                    e(f'buffer_load_dwordx4 {v(V+8*u+4*p,4)}, v{L16}, {WSR}, s{57+u} offen offset:{2048+1024*p} sc1')
            for k in range(4): e(f'ds_read_b128 {v(Q+4*k,4)}, v{QA} offset:{1024*k}')
            for k in range(4):
                for tk, S_ in ((0, S0), (1, S1)):
                    e(f'v_mfma_f32_16x16x32_bf16 {v(S_,4)}, {v(K+8*k+4*tk,4)}, {v(Q+4*k,4)}, {"0" if k == 0 else v(S_,4)}')
            e(f'v_add_u32 v{QA}, 8192, v{QA}')
            e(f'v_mov_b32 v13, {fbits(-1e9*math.log2(math.e)):#x}')
            for tk, S_ in ((0, S0), (1, S1)):
                for i in range(4):
                    e(f'v_mul_f32 v{S_+i}, s{sSC}, v{S_+i}')
                    e(f'v_cndmask_b32 v{S_+i}, v13, v{S_+i}, {s(MK+2*(4*tk+i),2)}')
            e(f'v_max3_f32 v{MX}, v{S0}, v{S0+1}, v{S0+2}\nv_max3_f32 v{MX}, v{MX}, v{S0+3}, v{S1}\nv_max3_f32 v{MX}, v{MX}, v{S1+1}, v{S1+2}\nv_max_f32 v{MX}, v{MX}, v{S1+3}')
            e.label(L); e('s_waitcnt vmcnt(0) lgkmcnt(0)')
        def prepF():
            L = self.lab('pf')
            e(f's_cmp_ge_u32 s{sF}, 128\ns_cbranch_scc1 {L}')
            e(f's_lshl_b32 s56, s{sF}, 14')
            e(f'buffer_load_dword v{XR}, v{XO}, {s(SRD_X,4)}, s56 offen')
            e(f's_lshr_b32 s57, s{sF}, 1\ns_lshl_b32 s57, s57, 8\ns_add_u32 s57, s57, {F_HFL}')
            self.wait_flags(FH, 's57', 12)
            e.reset()
            e(f's_mul_i32 s57, s{sF}, {44*1024}\ns_mul_i32 s58, s{sW}, {11*1024}\ns_add_u32 s57, s57, s58\ns_add_u32 s57, s57, {HH}')
            for k in range(11):
                if k and k % 4 == 0: e('s_add_u32 s57, s57, 4096')
                e(f'buffer_load_dwordx4 {v(RING+4*k,4)}, v{L16}, {WSR}, s57 offen offset:{1024*(k%4)} sc1')
            for k in range(11):
                for p in (0, 1):
                    d = v(AF + 4 * p, 4)
                    e(f'v_mfma_f32_16x16x32_bf16 {d}, {R(WD(p,k),4)}, {v(RING+4*k,4)}, {"0" if k == 0 else d}')
            e.label(L); e('s_waitcnt vmcnt(0) lgkmcnt(0)')
        prepA(); prepF()
        e(f's_lshl_b32 s{sQL}, s{sH}, 7\ns_add_u32 s{sQL}, s{sQL}, {F_PROG}')
        DA = 162
        e(f'v_mov_b32 v{DA}, 32768')
        e.label('L_task')
        e.reset()
        e(f's_lshr_b32 s54, s{sF}, 1\ns_min_u32 s54, s54, s{sA}\ns_cmp_ge_u32 s54, 64\ns_cbranch_scc1 L_WEND')
        e(f's_cmp_lg_u32 s{sW}, 0\ns_cbranch_scc1 L_join')
        e(f's_lshr_b32 s54, s{sF}, 1\ns_min_u32 s57, s54, 63\ns_lshl_b32 s57, s57, 12\ns_add_u32 s57, s57, {F_OFL}')
        e.label('L_poll')
        e(f'buffer_load_dword v12, v{PG}, {WSR}, s{sQL} offen sc1')
        e(f's_mov_b32 exec_hi, 0\nbuffer_load_dword v13, v{FO}, {WSR}, s57 offen sc1')
        e('s_waitcnt vmcnt(0)')
        e(f's_cmp_ge_u32 s{sA}, 64\ns_cbranch_scc1 L_noattn')
        e(f's_mov_b32 s56, 1\nv_cmp_ge_u32 vcc, s{sA}, v12\ns_cbranch_vccz L_dec')
        e(f's_cmp_le_u32 s{sA}, s54\ns_cbranch_scc1 L_idle')
        e(f's_cmp_lt_u32 s{sA}, {self.o.get("hfrom", 36)}\ns_cbranch_scc1 L_noattn')
        e(f'v_readfirstlane_b32 s55, v12\ns_add_u32 s55, s55, {self.o.get("hold", 0)}\ns_min_u32 s58, s{sA}, 61\ns_cmp_le_u32 s58, s55\ns_cbranch_scc1 L_idle')
        e.label('L_noattn')
        e(f's_mov_b32 s56, 0\ns_cmp_ge_u32 s{sF}, 128\ns_cbranch_scc1 L_dec')
        e(f's_mov_b32 s56, 2\nv_cmp_eq_u32 vcc, 0, v13\ns_cbranch_vccz L_dec')
        e.label('L_idle')
        e(f's_mov_b32 s56, 0\ns_add_u32 s{sSPIN}, s{sSPIN}, 1\ns_cmp_gt_u32 s{sSPIN}, {1 << 17}\ns_cbranch_scc1 L_dec')
        e(f's_sleep {self.o.get("slp", 2)}\nv_cmp_le_u32 vcc, {self.o.get("slpt", 60)}, v12\ns_cbranch_vccnz L_poll')
        e(f's_sleep {self.o.get("slp2", 20)}\ns_branch L_poll')
        e.label('L_dec')
        e('s_mov_b64 exec, -1')
        e(f'v_mov_b32 v12, s56\nds_write_b32 v{DA}, v12\ns_waitcnt lgkmcnt(0)')
        e.label('L_join')
        e(f's_barrier\nds_read_b32 v12, v{DA}\ns_waitcnt lgkmcnt(0)\nv_xor_b32 v{DA}, 4, v{DA}\nv_readfirstlane_b32 s56, v12')
        e('s_cmp_eq_u32 s56, 1\ns_cbranch_scc1 L_attn\ns_cmp_eq_u32 s56, 0\ns_cbranch_scc1 L_WEND')
        e.label('L_final')
        e.reset()
        self.stamp2(3)
        e(f's_lshl_b32 s57, s{sF}, 17\ns_lshl_b32 s58, s{sW}, 15\ns_add_u32 s57, s57, s58\ns_add_u32 s57, s57, {OO}')
        def old(k):
            if k and k % 4 == 0: e('s_add_u32 s57, s57, 4096')
            e(f'buffer_load_dwordx4 {v(RING+4*(k%NR),4)}, v{L16}, {WSR}, s57 offen offset:{1024*(k%4)} sc1')
        for k in range(NR): old(k)
        for k in range(32):
            for p in (0, 1):
                d = v(AS + 4 * p, 4)
                e(f'v_mfma_f32_16x16x32_bf16 {d}, {R(WO(p,k),4)}, {v(RING+4*(k%NR),4)}, {"0" if k == 0 else d}')
            if k + NR < 32: old(k + NR)
        self.stamp2(4)
        for q in range(4): e(f'ds_write_b128 v{RW}, {v(AS+4*q,4)} offset:{1024*q}')
        e('s_waitcnt lgkmcnt(0)\ns_barrier')
        self.stamp2(5)
        T = RING
        for w in range(4):
            for q in range(4): e(f'ds_read_b32 v{T+4*w+q}, v{RR} offset:{4096*w+1024*q}')
        e(f'v_xor_b32 v{RW}, 0x4000, v{RW}')
        for q in range(4): e(f'v_add_f32 v{T+q}, v{T+q}, v{T+4+q}')
        for q in range(4): e(f'v_add_f32 v{T+8+q}, v{T+8+q}, v{T+12+q}')
        e(f'v_xor_b32 v{RR}, 0x4000, v{RR}')
        for q in range(4): e(f'v_add_f32 v{T+q}, v{T+q}, v{T+8+q}')
        a0, a1, f0, f1, t0, t1, u0, u1 = range(T, T + 8)
        e(f'v_cvt_pk_bf16_f32 v{t0}, v{a0}, v{a1}\nv_cvt_pk_bf16_f32 v{t1}, v{f0}, v{f1}')
        e(f'v_lshlrev_b32 v{a0}, 16, v{t0}\nv_and_b32 v{a1}, s71, v{t0}\nv_lshlrev_b32 v{f0}, 16, v{t1}\nv_and_b32 v{f1}, s71, v{t1}')
        e(f's_mov_b32 s57, {fbits(-math.log2(math.e)):#x}\ns_lshl_b32 s56, s{sF}, 14')
        e(f'v_mul_f32 v{u0}, s57, v{f0}\nv_mul_f32 v{u1}, s57, v{f1}\nv_exp_f32 v{u0}, v{u0}\nv_exp_f32 v{u1}, v{u1}')
        e(f'v_add_f32 v{u0}, 1.0, v{u0}\nv_add_f32 v{u1}, 1.0, v{u1}\nv_rcp_f32 v{u0}, v{u0}\nv_rcp_f32 v{u1}, v{u1}')
        e(f'v_mul_f32 v{f0}, v{f0}, v{u0}\nv_mul_f32 v{f1}, v{f1}, v{u1}\nv_cvt_pk_bf16_f32 v{t1}, v{f0}, v{f1}')
        e(f'v_lshlrev_b32 v{f0}, 16, v{t1}\nv_and_b32 v{f1}, s71, v{t1}\nv_mul_f32 v{a0}, v{a0}, v{f0}\nv_mul_f32 v{a1}, v{a1}, v{f1}')
        e(f'v_cvt_pk_bf16_f32 v{t0}, v{a0}, v{a1}\nv_lshlrev_b32 v{a0}, 16, v{t0}\nv_and_b32 v{a1}, s71, v{t0}')
        e(f'v_lshlrev_b32 v{f0}, 16, v{XR}\nv_and_b32 v{f1}, s71, v{XR}\nv_add_f32 v{a0}, v{a0}, v{f0}\nv_add_f32 v{a1}, v{a1}, v{f1}')
        e(f'v_cvt_pk_bf16_f32 v{t0}, v{a0}, v{a1}')
        e(f'buffer_store_dword v{t0}, v{XO}, {s(SRD_A,4)}, s56 offen')
        e(f's_add_u32 s{sF}, s{sF}, 14')
        prepF()
        e('s_branch L_task')
        e.label('L_attn')
        e.reset()
        self.stamp2(0)
        e(f's_lshl_b32 s56, s{sA}, 18\ns_lshl_b32 s57, s{sH}, 13\ns_add_u32 s56, s56, s57\ns_add_u32 s56, s56, {KVM}')
        e(f's_add_u32 s57, s56, 4096\ns_lshl_b32 s58, s{sEH}, 12\ns_add_u32 s58, s58, s56')
        for k in range(4):
            e(f'buffer_load_dwordx4 {v(KM+4*k,4)}, v{KMA}, {WSR}, s{56+k//2} offen offset:{2048*(k%2)} sc1')
        for u in (0, 1):
            e(f'buffer_load_dwordx2 {v(VM+4*u,2)}, v{L8}, {WSR}, s58 offen offset:{2048*u+1024} sc1')
        e(f's_lshl_b32 s56, s{sA}, 1\ns_add_u32 s56, s56, s{sQT}\ns_lshl_b32 s57, s56, 17\ns_lshl_b32 s58, s{sH}, 12\ns_add_u32 s57, s57, s58')
        e(f's_lshl_b32 s58, s{sEH}, 11\ns_add_u32 s57, s57, s58\ns_add_u32 s57, s57, {OO}')
        e(f's_lshl_b32 s56, s{sA}, 12\ns_lshl_b32 s58, s{sH}, 7\ns_add_u32 s56, s56, s58\ns_add_u32 s56, s56, {F_OFL}')
        e(f'v_mov_b32 v{PM+1}, 0')
        for k in range(4):
            e(f'v_mfma_f32_16x16x32_bf16 {v(SMm,4)}, {v(KM+4*k,4)}, {v(Q+4*k,4)}, {"0" if k == 0 else v(SMm,4)}')
        for u in (0, 1): e(f'v_mov_b32 v{VM+4*u+2}, v{VM+4*u+1}\nv_mov_b32 v{VM+4*u+3}, v{VM+4*u}')
        self.stamp2(1)
        e(f'v_mul_f32 v{SMm}, s{sSC}, v{SMm}\nv_mul_f32 v{SMm+1}, s{sSC}, v{SMm+1}\nv_max3_f32 v14, v{MX}, v{SMm}, v{SMm+1}')
        self.red_g('v_max_f32', 14, 15)
        vals = [S0 + i for i in range(4)] + [S1 + i for i in range(4)] + [SMm, SMm + 1]
        for x in vals: e(f'v_sub_f32 v{x}, v{x}, v14')
        for x in vals: e(f'v_exp_f32 v{x}, v{x}')
        e(f'v_add_f32 v14, v{vals[0]}, v{vals[1]}')
        for x in vals[2:]: e(f'v_add_f32 v14, v14, v{x}')
        self.red_g('v_add_f32', 14, 15)
        e('v_rcp_f32 v14, v14')
        for x in vals: e(f'v_mul_f32 v{x}, v{x}, v14')
        for tk, S_ in ((0, S0), (1, S1)):
            for hh in (0, 1): e(f'v_cvt_pk_bf16_f32 v{PX+2*tk+hh}, v{S_+2*hh}, v{S_+2*hh+1}')
        e(f'v_cvt_pk_bf16_f32 v{PM}, v{SMm}, v{SMm+1}')
        for u in (0, 1):
            for p in (0, 1):
                e(f'v_mfma_f32_16x16x32_bf16 {v(OA + 8 * u + 4 * p, 4)}, {v(V+8*u+4*p,4)}, {v(PX,4)}, 0')
        for u in (0, 1):
            for p in (0, 1):
                d = v(OA + 8 * u + 4 * p, 4)
                e(f'v_mfma_f32_16x16x16_bf16 {d}, {v(VM+4*u+2*p,2)}, {v(PM,2)}, {d}')
        for u in (0, 1):
            for i in range(4): e(f'v_cvt_pk_bf16_f32 v{KM+4*u+i}, v{OA+8*u+i}, v{OA+8*u+4+i}')
            e(f'buffer_store_dwordx4 {v(KM+4*u,4)}, v{L16}, {WSR}, s57 offen offset:{1024*u} sc1')
        self.stamp2(6)
        e('s_waitcnt vmcnt(0)')
        self.stamp2(2)
        e(f's_barrier\ns_cmp_lg_u32 s{sW}, 0\ns_cbranch_scc1 L_nofl')
        e(f's_mov_b64 exec, 1\nbuffer_store_dword v{ONE}, off, {WSR}, s56 sc1\ns_mov_b64 exec, -1')
        e.label('L_nofl'); e.reset()
        e(f's_cmp_lt_u32 s{sA}, 3\ns_cselect_b32 s54, 3, 7\ns_add_u32 s{sA}, s{sA}, s54')
        prepA()
        e('s_branch L_task')
        e.label('L_WEND')
        e.reset()
        self.dstamp(7, 112)
        self.stamp(7)
        if self.dev:
            for idx in range(7):
                e.raw(f'v_mov_b32 v112, s{4+2*idx}'); e.raw(f'buffer_store_dword v112, off, {WSR}, s97 offset:{4*(idx+1)}')
        e('s_branch L_END')

    def chain(self):
        e = self.e; o = self.o
        e.label('L_CHAIN'); e.reset()
        self.dstamp(3, 6)
        sH = sJ
        LW, LMEM, LTR, LZ = 0, 131072, 139264, 144384
        SXO = 14336
        TRS = 1280
        L16, L8, IDX, H1S, H2S, MEMW, MEMR, WST, TRW, KTR, Q0R, Q1R, QQR, K2R, LN0, OW, OR_, PFA, PFL, FLGV, VMK = \
            0, 1, 2, 3, 4, 5, 6, 9, 10, 11, 12, 13, 14, 15, 16, 17, 18, 19, 20, 21, 22
        SEL, ONES, MEMA, ACK, ACQ, ACV, KX, VX, SX, SM_, ST = 24, 28, 32, 64, 72, 80, 88, 96, 104, 108, 112
        seq = []
        for m in 'qkv':
            for sl in (0, 1):
                for p in (0, 1): seq.append((m, sl, p))
        for m in 'qkv':
            for sl in range(2, 8):
                for p in (0, 1): seq.append((m, sl, p))
        for b in range(4): seq.append(('o', 0, b))
        for b in range(4):
            for sl in (1, 2, 3): seq.append(('o', sl, b))
        bA, bB, bC, bD = ST, ST + 8, KX, VX
        bE, bF, bG = MEMA + 8, MEMA + 16, MEMA + 24
        staged = {1: bC, 3: bD, 5: bA, 7: bB, 2: bE, 4: bF, 6: bG, 30: bA, 33: bB, 39: bA, 38: bB, 48: bB, 49: bA, 61: bD, 62: bA, 63: bB}
        slot = {n: i for i, n in enumerate(sorted(staged))}
        pool = list(range(256, 512, 8)) + list(range(128, 256, 8))
        home = {}; pos = {key: n for n, key in enumerate(seq)}
        gorder = [(m, sl) for m in o.get('mo', 'kvq') for sl in (0, 2, 4, 6, 1, 3, 5, 7)]
        for key in [(m, sl, p) for m, sl in gorder for p in (0, 1)] + [k_ for k_ in seq if k_[0] == 'o']:
            home[key] = None if pos[key] in staged else pool.pop(0)
        assert not pool
        LN = 111
        G, C = 110, 109
        e(f'v_mov_b32 v{LN}, v0\nv_lshrrev_b32 v{G}, 4, v0\nv_and_b32 v{C}, 15, v0')
        e(f'v_lshlrev_b32 v{L8}, 3, v{LN}\nv_lshlrev_b32 v{L16}, 4, v{LN}')
        e(f's_lshl_b32 s54, s{sW}, 15\nv_add_u32 v{WST}, s54, v{L16}')
        sH1S, sH1S2, sH1L, sH2S, sH2L, sKV, sKVM, sT, sSEN, sSC, sPROG, sFL = 60, 61, 62, 63, 64, 65, 66, 67, 68, 69, 70, 71
        e(f's_mov_b32 s{sSEN}, {SENT:#x}\ns_mov_b32 s{sSC}, {fbits(CSC):#x}\ns_mov_b32 s58, 0')
        e(f's_lshl_b32 s54, s{sH}, 2\ns_add_u32 s54, s54, s{sW}\ns_lshl_b32 s{sH1L}, s54, 11\ns_add_u32 s{sH1L}, s{sH1L}, {H1}')
        e(f's_mov_b32 s{sH1S}, {H1}\ns_mov_b32 s{sH1S2}, {H1+4096}')
        for i in range(4): e(f'v_mov_b32 v{SX+i}, s{sSEN}')
        e(f's_xor_b32 s55, s{sH1L}, 0x40000')
        for sb in (sH1L, 55):
            for m in (0, 1): e(f'buffer_store_dwordx4 {v(SX,4)}, v{L16}, {WSR}, s{sb} offen offset:{1024*m}')
        e(f's_lshr_b32 s54, s{sH}, 3\ns_bfe_u32 s55, s{sH}, 0x20001\ns_and_b32 s56, s{sH}, 1')
        e(f's_lshr_b32 s59, s55, 1\ns_and_b32 s55, s55, 1')
        e(f's_lshl_b32 s57, s{sW}, 1\ns_add_u32 s57, s57, s56\ns_lshl_b32 s57, s57, 10\ns_lshl_b32 s58, s54, 8\ns_add_u32 s57, s57, s58\ns_lshl_b32 s58, s55, 7\ns_add_u32 s57, s57, s58\ns_lshl_b32 s58, s59, 5\ns_add_u32 s57, s57, s58')
        e(f'v_lshrrev_b32 v100, 1, v{G}\nv_lshlrev_b32 v100, 6, v100\nv_and_b32 v102, 1, v{G}\nv_lshlrev_b32 v102, 4, v102\nv_add_u32 v100, v100, v102')
        NR_, RS = o.get('rep', 1), 0x2000 + o.get('skew', 0)
        e(f'v_and_b32 v103, 3, v{C}\nv_lshlrev_b32 v101, 2, v103\nv_add3_u32 v{H2S}, v100, v101, s57')
        e(f'v_lshrrev_b32 v101, 2, v{C}\nv_mul_u32_u24 v101, {RS}, v101\nv_add_u32 v{H2S}, v{H2S}, v101')
        e(f's_mov_b32 s{sH2S}, {H2}\ns_lshl_b32 s{sH2L}, s{sW}, 11\ns_add_u32 s{sH2L}, s{sH2L}, {H2}\ns_and_b32 s58, s{sH}, {NR_-1}\ns_mul_i32 s58, s58, {RS}\ns_add_u32 s{sH2L}, s{sH2L}, s58')
        self.srd(SRD_A, sMEM, 8192)
        e(f's_lshl_b32 s57, s55, 12\ns_lshl_b32 s58, s54, 8\ns_add_u32 s57, s57, s58\ns_lshl_b32 s58, s56, 7\ns_add_u32 s57, s57, s58\ns_lshl_b32 s58, s{sW}, 2\ns_add_u32 s57, s57, s58\ns_lshl_b32 s58, s59, 1\ns_add_u32 s57, s57, s58')
        e(f'v_lshlrev_b32 v100, 10, v{G}\nv_lshlrev_b32 v101, 5, v103\nv_add_u32 v100, v100, v101')
        mk = ((1 << (4 * NR_)) - 1) * 0x10001
        e(f's_mov_b32 s72, {mk:#x}\ns_mov_b32 s73, {mk:#x}\ns_mov_b32 s74, 0x00ff00ff\ns_mov_b32 s75, 0x00ff00ff')
        e(f's_mov_b64 exec, s[72:73]')
        e(f'buffer_load_ushort v20, v100, {s(SRD_A,4)}, s57 offen\nbuffer_load_ushort v21, v100, {s(SRD_A,4)}, s57 offen offset:16')
        e(f's_xor_b32 s55, s{sH2S}, 0x10000')
        e(f'buffer_store_dword v{SX}, v{H2S}, {WSR}, s55 offen')
        e(f's_mov_b64 exec, -1')
        def pub0():
            e(f'v_lshl_or_b32 v20, v21, 16, v20\nv_mov_b32 v21, -1\nv_cmp_eq_u32 vcc, s{sSEN}, v20\nv_cndmask_b32 v20, v20, v21, vcc')
            e(f's_mov_b64 exec, s[72:73]\nbuffer_store_dword v20, v{H2S}, {WSR}, s{sH2S} offen\ns_mov_b64 exec, -1')
        self.srd(SRD_A, sWO, 1 << 22)
        e(f'v_lshlrev_b32 v100, 12, v{G}\nv_lshlrev_b32 v101, 4, v{C}')
        e(f's_lshl_b32 s54, s{sH}, 17\ns_lshl_b32 s55, s{sW}, 8\ns_add_u32 s54, s54, s55\nv_add3_u32 v100, v100, v101, s54')
        TB = 24
        def stage_write(key, regs):
            sl = slot[pos[key]]
            e(f'ds_write_b128 v{WST}, {v(regs,4)} offset:{sl*2048}\nds_write_b128 v{WST}, {v(regs+4,4)} offset:{sl*2048+1024}')
        def arrive():
            e('s_barrier')
            L = self.lab('arr')
            e(f's_cmp_lg_u32 s{sW}, 0\ns_cbranch_scc1 {L}')
            e.raw(f'v_mov_b32 v102, 4'); e.raw('v_mov_b32 v103, 1'); e.raw('s_mov_b64 exec, 1')
            e.raw(f'global_atomic_add v102, v103, {s(sDBG,2)}'); e.raw('s_mov_b64 exec, -1')
            e.label(L)
        for u in range(4):
            e(f's_lshl_b32 s54, s{sW}, 3\ns_add_u32 s54, s54, {2*u}\ns_lshr_b32 s{56+u}, 0x93d2e1e4, s54\ns_and_b32 s{56+u}, s{56+u}, 3\ns_lshl_b32 s{80+u}, s{56+u}, 14\ns_lshl_b32 s{56+u}, s{56+u}, 15')
        SRD_K = 84
        self.srd(SRD_K, sWK, 1 << 22); self.srd(SRD_B, sWQ, 1 << 22); self.srd(SRD_X, sWV, 1 << 22)
        PV_, BW, BR = 101, 104, 105
        e(f's_lshr_b32 s54, s{sW}, 1\ns_lshl_b32 s54, s54, 20\ns_and_b32 s55, s{sW}, 1\ns_lshl_b32 s89, s55, 18\ns_add_u32 s54, s54, s89\ns_lshl_b32 s89, s{sH}, 8\ns_add_u32 s54, s54, s89')
        e(f'v_lshlrev_b32 v102, 13, v{G}\nv_lshlrev_b32 v103, 4, v{C}\nv_add3_u32 v{PV_}, v102, v103, s54')
        e(f's_lshl_b32 s55, s55, 6\nv_xor_b32 v102, s55, v{L16}\ns_lshl_b32 s54, s{sW}, 12\ns_add_u32 s54, s54, {LMEM}\nv_add_u32 v{BW}, s54, v102')
        e(f'v_lshlrev_b32 v102, 2, v{C}\ns_lshl_b32 s54, s{sW}, 6\nv_add_u32 v102, s54, v102\nv_and_b32 v103, 1, v{G}\nv_lshlrev_b32 v103, 6, v103\nv_xor_b32 v102, v102, v103')
        e(f'v_lshlrev_b32 v103, 12, v{G}\nv_add_u32 v102, v102, v103')
        for u in range(4): e(f's_lshr_b32 s54, s{80+u}, 5\ns_add_u32 s54, s54, {LMEM}\nv_add_u32 v{BR+u}, s54, v102')
        RB, TT = 2, 102
        rbk = list(range(176, 192))
        def put(d, Y, X, sel):
            if d < 256: e(f'v_perm_b32 v{d}, v{Y}, v{X}, s{sel}')
            else: e(f'v_perm_b32 v{TT + (d & 1)}, v{Y}, v{X}, s{sel}\nv_accvgpr_write_b32 a{d-256}, v{TT + (d & 1)}')
        def wo_issue(sl, t0):
            for rp in range(4):
                row = 16 * (rp >> 1) + 2 * (rp & 1)
                e(f's_add_u32 s54, s{56+sl}, {row*1024}')
                e(f'buffer_load_dwordx4 {v(t0+8*rp,4)}, v100, {s(SRD_A,4)}, s54 offen')
                e(f'buffer_load_dwordx4 {v(t0+8*rp+4,4)}, v100, {s(SRD_A,4)}, s54 offen offset:1024')
        def wo_finish(sl, t0):
            for bb in range(4):
                key = ('o', sl, bb); d = home[key]; dd = ST + 8 * (bb & 1) if d is None else d
                for rho in range(8):
                    t_ = t0 + 8 * (rho >> 1)
                    put(dd + rho, t_ + 4 + bb, t_ + bb, sPHI if rho & 1 else sPLO)
                if d is None: stage_write(key, dd)
            e('s_waitcnt lgkmcnt(0)')
        corder = [(m, x, j) for m in o.get('mo', 'kvq') for x in (0, 1) for j in range(4)]
        def pj_issue(k, t0):
            m, x, j = corder[k]; srd = {'k': SRD_K, 'q': SRD_B, 'v': SRD_X}[m]
            for i in range(4):
                row = 256 * (j >> 1) + 16 * (j & 1) + 64 * x + 4 * i
                e(f's_mov_b32 s54, {row*8192}')
                e(f'buffer_load_dwordx4 {R(t0+4*i,4)}, v{PV_}, {s(srd,4)}, s54 offen')
        def pj_finish(k, t0):
            m, x, j = corder[k]; bo = (k & 1) * 16384
            for i in range(4): e(f'ds_write_b128 v{BW}, {R(t0+4*i,4)} offset:{bo + 1024*i}')
            e('s_waitcnt lgkmcnt(0)\ns_barrier')
            for u in range(4):
                for hf in (0, 1):
                    e(f'ds_read2st64_b32 {v(rbk[4*u+2*hf],2)}, v{BR+u} offset0:{bo//256 + hf} offset1:{bo//256 + hf + 8}')
            for u in range(4):
                for p in (0, 1):
                    key = (m, 2 * u + x, p); d = home[key]; t_ = ST + 4 * u + 2 * p
                    for hf in (0, 1):
                        put(d + 2 * j + hf if d is not None else t_ + hf, rbk[4*u+2*hf] + 1, rbk[4*u+2*hf], sPHI if p else sPLO)
                    if d is None:
                        e(f'ds_write_b64 v{WST}, {v(t_,2)} offset:{slot[pos[key]]*2048 + 1024*(j>>1) + 8*(j&1)}')
        first_user = {}
        for k, (m, x, j) in enumerate(corder):
            for u in range(4):
                for p in (0, 1):
                    h_ = home[(m, 2 * u + x, p)]
                    if h_ is not None: first_user.setdefault(h_ & ~15, k)
        free = list(range(496, 255, -16))
        land = {}; nxt_g = [0]
        def pump(cap):
            while nxt_g[0] < 24 and len(e.vmq) + 4 <= cap:
                k = nxt_g[0]
                c_ = [b_ for b_ in free if first_user.get(b_, 99) >= k]
                if not c_: break
                b_ = min(c_, key=lambda x: first_user.get(x, 99)); free.remove(b_); land[k] = b_
                pj_issue(k, b_); nxt_g[0] += 1
        cap = o.get('cap', 12)
        e('s_movk_i32 s88, 0x80')
        e(f's_lshl_b32 s54, s{sH}, 10\ns_lshl_b32 s55, s{sW}, 8\ns_add_u32 s{sFL}, s54, s55\ns_add_u32 s{sFL}, s{sFL}, {F_KVX}')
        free[:] = [192, 208, 224, 240, 32, 48, 64, 80]
        for b_ in (32, 48, 64, 80): first_user[b_] = 16
        def chk_issue():
            e(f'v_mov_b32 v98, 0\nglobal_load_dword v96, v98, {s(sDBG,2)} offset:4 sc1\nglobal_load_dword v97, v98, {s(sDBG,2)} offset:192 sc1')
        def chk_done():
            e(f'v_cmp_gt_u32 vcc, 32, v96\nv_cmp_gt_u32 s[76:77], s88, v97')
            e('s_or_b64 vcc, vcc, s[76:77]\ns_cbranch_vccz L_cok')
            q_ = (list(e.dsq), list(e.vmq))
            self.wait_counter(4, 32, 96); self.wait_counter(192, 128, 96)
            e.label('L_cok'); e.reset(*q_)
        def consts():
            e(f'v_bfe_u32 v113, v{C}, 1, 1\nv_mov_b32 v114, 0x4444\nv_mov_b32 v115, 0xeeee\nv_cmp_eq_u32 vcc, 1, v113\nv_cndmask_b32 v{IDX}, v114, v115, vcc')
            e(f'v_cmp_lt_u32 vcc, 7, v{C}\nv_cndmask_b32 v114, v114, v115, vcc\nv_lshl_or_b32 v{IDX}, v114, 16, v{IDX}')
            e(f'v_lshlrev_b32 v114, 1, v{G}\nv_lshrrev_b32 v115, 3, v{C}\nv_add_u32 v114, v114, v115\nv_lshlrev_b32 v114, 13, v114')
            e(f'v_and_b32 v116, 7, v{C}\nv_lshlrev_b32 v117, 3, v116\ns_lshl_b32 s54, s{sW}, 16\ns_lshl_b32 s55, s{sH}, 6\ns_add_u32 s54, s54, s55\nv_add3_u32 v{H1S}, v114, v117, s54')
            e(f's_lshl_b32 s54, s{sW}, 11\ns_add_u32 s54, s54, {LMEM}\nv_add_u32 v{MEMW}, s54, v{L16}')
            for u in (1, 2, 3):
                e(f's_lshr_b32 s54, s{80+u}, 3\ns_add_u32 s54, s54, {LMEM}\nv_add_u32 v{MEMR+u-1}, s54, v{L16}')
            e(f's_mul_i32 s90, s{sW}, {TRS}\ns_add_u32 s90, s90, {LTR}')
            e(f'v_lshrrev_b32 v114, 2, v{C}\nv_mul_u32_u24 v114, 144, v114\nv_lshlrev_b32 v117, 5, v{G}\nv_and_b32 v118, 3, v{C}\nv_lshlrev_b32 v118, 2, v118')
            e(f'v_add3_u32 v114, v114, v117, v118\nv_add_u32 v{TRW}, s90, v114')
            e(f'v_lshrrev_b32 v114, 2, v{C}\nv_lshlrev_b32 v114, 1, v114\nv_and_b32 v117, 1, v{C}\nv_add_u32 v119, v114, v117')
            e(f'v_mul_u32_u24 v120, 144, v{G}\nv_lshlrev_b32 v114, 7, v{G}\nv_lshlrev_b32 v117, 2, v{C}\nv_add_u32 v{KTR}, v114, v117')
            e(f'v_lshlrev_b32 v114, 4, v116\ns_add_u32 s91, s90, 640\nv_add3_u32 v{QQR}, v120, v114, s91')
            e(f'v_mov_b32 v114, {LZ}\nv_cmp_eq_u32 vcc, 0, v115\nv_cndmask_b32 v{Q0R}, v114, v{QQR}, vcc\nv_cndmask_b32 v{Q1R}, v{QQR}, v114, vcc')
            e(f'v_mul_u32_u24 v114, {TRS}, v115\nv_lshlrev_b32 v117, 4, v116\nv_add3_u32 v114, v114, v117, v120\nv_add_u32 v{QQR}, {LTR+640}, v114')
            e(f'v_mul_u32_u24 v114, {TRS}, v113\nv_lshlrev_b32 v117, 4, v119\nv_add3_u32 v114, v114, v117, v120\nv_add_u32 v{K2R}, {LTR}, v114')
            e(f'v_lshlrev_b32 v114, 3, v{G}\nv_add_u32 v114, v114, v116')
            e(f'v_lshlrev_b32 v{PFA}, 7, v{LN}\nv_mov_b32 v114, {WS_BYTES:#x}\nv_cmp_lt_u32 vcc, 31, v{LN}\nv_cndmask_b32 v{PFA}, v{PFA}, v114, vcc')
            e(f'v_mov_b32 v114, 0x3f80\nv_mov_b32 v117, 0x3f800000\nv_mov_b32 v118, 0')
            for i in range(4):
                c0 = 4 * (2 * (i & 1)) + (i >> 1); c1 = c0 + 4
                e(f'v_cmp_eq_u32 vcc, {c0}, v{C}\nv_cndmask_b32 v{SEL+i}, v118, v114, vcc\nv_cmp_eq_u32 vcc, {c1}, v{C}\nv_cndmask_b32 v{SEL+i}, v{SEL+i}, v117, vcc')
            for i in range(4): e(f'v_mov_b32 v{ONES+i}, 0x3f803f80')
            e(f's_lshl_b32 s54, s{sH}, 14\ns_lshl_b32 s55, s{sW}, 12\ns_add_u32 s{sKV}, s54, s55\ns_add_u32 s{sKV}, s{sKV}, {KV}')
            e(f's_lshl_b32 s54, s{sH}, 13\ns_lshl_b32 s55, s{sW}, 11\ns_add_u32 s{sKVM}, s54, s55\ns_add_u32 s{sKVM}, s{sKVM}, {KVM - 0x40000}')
            e(f's_lshl_b32 s54, s{sH}, 7\ns_lshl_b32 s55, s{sW}, 2\ns_add_u32 s{sPROG}, s54, s55\ns_add_u32 s{sPROG}, s{sPROG}, {F_PROG}')
            e(f's_mov_b32 s{sT}, 0')
        pump(o.get('cap0', 20) + 7)
        consts()
        pub0()
        for k in range(24):
            pj_finish(k, land[k]); free.append(land[k]); pump(o.get('cap0', 20) if k < o.get('capn', 4) else cap)
            if k == 10: arrive()
            if k == o.get('padk', 14): e.raw('; PADCALL')
            if o.get('wst') and k in (7, 15, 23): self.stamp2({7: 4, 15: 5, 23: 6}[k])
            if k == 21: wo_issue(0, 32)
            if k == 23: chk_issue(); wo_issue(1, 64)
        wo_finish(0, 32); wo_issue(2, 32)
        wo_finish(1, 64); wo_issue(3, 64); chk_done()
        wo_finish(2, 32)
        e(f'buffer_load_dwordx2 v[22:23], off, {WSR}, s{sFL} sc1')
        wo_finish(3, 64)
        e('s_waitcnt lgkmcnt(0)\ns_barrier')
        self.dstamp(4, 100)
        self.stamp(2, (100,))
        if self.dev and o.get('wst'):
            for idx in (4, 5, 6):
                e.raw(f'v_mov_b32 v100, s{4+2*idx}'); e.raw(f'buffer_store_dword v100, off, {WSR}, s97 offset:{4*(idx-2)}')
            e.raw('s_waitcnt vmcnt(0)')
        HB_ = home[seq[0]]; HO = 22528
        rfH = lambda m: f'ds_read_b128 {R(HB_+4*m,4)}, v{MEMW} offset:{HO+1024*m}'
        for m in (0, 1): e(f'ds_write_b128 v{MEMW}, {R(HB_+4*m,4)} offset:{HO+1024*m}')
        for i in range(4): e(f'v_mov_b32 v{SX+i}, 0')
        e(f'v_mov_b32 v101, {LZ}\nds_write_b128 v101, {v(SX,4)}')
        FLA = L8
        e('s_waitcnt lgkmcnt(0)')
        def flag_spin(off):
            L = self.lab('fs'); D = self.lab('fsd')
            e.label(L)
            e.raw(f'buffer_load_dword v{FLGV}, off, {WSR}, s{sFL} offset:{off} sc1'); e.raw('s_waitcnt vmcnt(0)')
            e.raw(f'v_cmp_eq_u32 vcc, 0, v{FLGV}'); e.raw(f's_cbranch_vccz {D}')
            self.spin_check()
            e.raw('s_sleep 1'); e.raw(f's_branch {L}')
            e.label(D)
        self.dstamp(10, 100)
        e('s_waitcnt vmcnt(0)\nv_min_u32 v22, v22, v23\nv_cmp_eq_u32 vcc, 0, v22\ns_cbranch_vccz L_f01')
        flag_spin(0); flag_spin(4)
        e.label('L_f01')
        e(f's_add_u32 s{sFL}, s{sFL}, 8')
        e('s_barrier')
        self.dstamp(5, 100)
        self.stamp(3, (100,))
        def rf(n, half=None):
            r = staged[n]; sl = slot[n]
            t = [f'ds_read_b128 {v(r,4)}, v{WST} offset:{sl*2048}', f'ds_read_b128 {v(r+4,4)}, v{WST} offset:{sl*2048+1024}']
            return '\n'.join(t) if half is None else t[half]
        OAq = 64; WA = MEMA
        def S(n, fill=None):
            m, sl, p = seq[n]
            if m == 'o': d, A = WA + 4 * p, (SX, 72, 64, 68)[sl]
            else: d, A = {'k': ACK, 'q': ACQ, 'v': ACV}[m] + 4 * p, MEMA + 4 * sl
            hm = home[seq[n]]
            B = R(hm, 8) if hm is not None else v(staged[n], 8)
            e(f'v_smfmac_f32_16x16x64_bf16 {v(d,4)}, {v(A,4)}, {B}, v{IDX}' + (' abid:1' if m == 'o' else ''))
            if fill: e(fill)
            if n in o.get('at', ()): self.ct(f'*.n{n}')
        def zero(r0, n):
            for r in range(r0, r0 + n, 2): e(f'v_mov_b64 {v(r,2)}, 0')
        def nops(cyc):
            n = cyc // 4
            while n > 0:
                k = min(n, 16); e(f's_nop {k-1}'); n -= k
        for n in (1, 3, 5, 7, 2, 6): e(rf(n))
        zero(ACK, 24)
        sTC, sTT, sTM = 74, 75, 57
        e(f's_mov_b32 s{sTC}, 0x10000\ns_mov_b32 s{sTT}, 0\ns_mov_b32 s{sTM}, 0\nv_mov_b32 v{OW}, s{sSEN}\nv_mov_b32 v{OR_}, 0xfffe0000')
        e(f'v_mov_b32 v{FLGV}, 0\nv_mov_b32 v{LN0}, {WS_BYTES:#x}\nv_mov_b32 v{SM_}, v{H2S}\nv_mov_b32 v{H2S}, {WS_BYTES:#x}\nv_mov_b64 {v(VMK,2)}, 0')
        e(f's_mov_b64 exec, 1\nv_mov_b32 v{LN0}, 0\ns_mov_b64 exec, s[72:73]\nv_mov_b32 v{H2S}, v{SM_}\ns_mov_b64 exec, -1')
        e('s_mov_b32 s58, 0')
        if self.dev: e('s_mov_b32 s93, 0\ns_mov_b32 s94, 0\ns_memtime s[100:101]\ns_waitcnt lgkmcnt(0)')
        self.ct_init()
        e('s_waitcnt lgkmcnt(0)')
        add = lambda x: f'v_add_f32 v{x}, v{x}, v{x+2}'
        z1 = lambda r0: f'v_mov_b64 {v(r0,2)}, 0'
        J = lambda *t: '\n'.join(t)
        def nxt():
            e(f's_xor_b32 s{sH2S}, s{sH2S}, 0x10000')
            e(f's_bfe_u32 s{sTM}, s{sT}, 0x10001\ns_lshl_b32 s{sTT}, 0x8000, s{sTM}\ns_lshl_b32 s{sTC}, 0xffff0000, s{sTM}\nv_mov_b32 v{OR_}, s{sTC}')
            e(f's_add_u32 s55, s{sKV}, 0x80000\ns_add_u32 s56, s{sKVM}, 0x40000')
        nxt()
        y1, y2 = o.get('y1', 120), o.get('y2', 112)
        P1, RD = MEMA + 16, MEMA + 24
        p2 = lambda: [e(f'buffer_load_dwordx4 {v(MEMA+4*m,4)}, v{L16}, {WSR}, s{sH2L} offen offset:{1024*m} sc1') for m in (0, 1)]
        p1 = lambda: [e(f'buffer_load_dwordx4 {v(P1+4*m,4)}, v{L16}, {WSR}, s{sH1L} offen offset:{1024*m} sc1') for m in (0, 1)]
        red1 = f'v_mfma_f32_16x16x32_bf16 {v(RD,4)}, {v(SEL,4)}, {v(P1,4)}, 0'
        red2 = f'v_mfma_f32_16x16x32_bf16 {v(RD,4)}, {v(SEL,4)}, {v(P1+4,4)}, {v(RD,4)}'
        def wait_check(r, x, fail, m1='', m2=''):
            e(f's_waitcnt vmcnt({x+1})')
            e(f'v_max3_u32 v{SM_}, v{r}, v{r+1}, v{r+2}\nv_max_u32 v{SM_}, v{SM_}, v{r+3}')
            e(m1)
            e(f's_waitcnt vmcnt({x})')
            e(f'v_max3_u32 v{SM_}, v{SM_}, v{r+4}, v{r+5}\nv_max3_u32 v{SM_}, v{SM_}, v{r+6}, v{r+7}')
            e(m2)
            e(f'v_cmp_le_u32 vcc, s{sSEN}, v{SM_}\ns_cbranch_vccnz {fail}')
        def wait_check1(x, fail):
            r = P1
            e(f's_waitcnt vmcnt({x+1})')
            e(f'v_bitop3_b32 v{SM_}, v{r}, v{r+2}, s{sTM} bitop3:0x7e')
            e(red1)
            e(f's_waitcnt vmcnt({x})')
            e(f'v_bitop3_b32 v{SM_+1}, v{r+4}, v{r+6}, s{sTM} bitop3:0x7e')
            e(red2)
            e(f'v_bitop3_b32 v{SM_}, v{SM_}, v{SM_+1}, 1 bitop3:0xa8')
            e(f'v_cmp_ne_u32 vcc, 0, v{SM_}\ns_cbranch_vccnz {fail}')
        def publish():
            for sh in (8, 4):
                e(f'v_add_f32_dpp v{RD}, v{RD}, v{RD} row_ror:{sh} row_mask:0xf bank_mask:0xf\nv_add_f32_dpp v{RD+1}, v{RD+1}, v{RD+1} row_ror:{sh} row_mask:0xf bank_mask:0xf')
            e(f'v_cvt_pk_bf16_f32 v{PFL}, v{RD}, v{RD+1}')
            if o.get('xm', 0): e('s_mov_b64 exec, s[72:73]')
            e(f'buffer_store_dword v{PFL}, v{H2S}, {WSR}, s{sH2S} offen')
            if o.get('xm', 0): e('s_mov_b64 exec, -1')
        e.raw('.p2align 6')
        for _ in range(o.get('al', 0)): e.raw('s_nop 0')
        mw = lambda i: f'ds_write_b64 v{MEMW}, {v(MEMA+2*i,2)} offset:{1024*(i>>1)+8*(i&1)}'
        mr = lambda u, m: f'ds_read_b128 {v(MEMA+8+8*u+4*m,4)}, v{MEMR+u} offset:{1024*m}'
        kvl = lambda i: f'buffer_load_dwordx4 {v(KX+4*i,4)}, v{L16}, {WSR}, s{sKV} offen offset:{1024*i} sc1'
        RM = 108; KP = 110
        kst = lambda i, sr: f'buffer_store_dword v{KP+i}, v{KTR}, {WSR}, s{sr} offen offset:{64*i} sc1'
        arm2 = f'buffer_store_dword v{OW}, v{H2S}, {WSR}, s{sH2S} offen'
        spec = 0
        def poll2(tag):
            e.label(f'L_step{tag}')
            e.reset(); e.track = False
            p2()
            if y2:
                nops(y2); p2()
            if y1: e(f's_waitcnt vmcnt({4 if y2 else 2})')
            e(rf(4))
            dsq0 = list(e.dsq)
            wait_check(MEMA, 2 if y2 else 0, 'L_f2')
            e.label(f'L_ok2{tag}')
            e.track = True
            e.reset(dsq=dsq0, vmq=[set(), set()] if y2 else [])
        def early():
            cts = list(self.cts); self.cts = []
            poll2('e')
            self.ct('01.got2'); self.cts = cts
            e(mw(0)); S(0, mw(1)); S(1, mw(2)); S(2, mw(3)); S(3, J(arm2, kvl(0))); S(4, kvl(1)); S(5, kvl(2)); S(6, kvl(3))
            if o.get('eb', 7) == 8: S(7)
            e.lgkm_for_writes()
            e('s_barrier')
            e(J(mr(0, 0), mr(0, 1), mr(1, 0)))
            if o.get('eb', 7) == 7: S(7)
            e('s_branch L_join2')
        e(f's_cmp_lt_u32 s{sW}, 3\ns_cbranch_scc1 L_stepe')
        poll2('')
        self.ct('01.got2')
        nb = o.get('nb', 4)
        fl = {n: [] for n in range(64)}
        e(mw(0)); fl[0].append(mw(1)); fl[1].append(mw(2)); fl[2].append(mw(3))
        fl[nb].append(mr(0, 1)); fl[min(7, nb + 2)].append(mr(1, 0))
        fl[3] += [arm2, kvl(0)]; fl[4].append(kvl(1)); fl[5].append(kvl(2)); fl[6].append(kvl(3))
        for n in range(8):
            if n == nb: e(J('s_barrier', mr(0, 0)))
            S(n, J(*fl[n]))
        e.label('L_join2')
        cap_on = not o.get('tick')
        if cap_on: e.cap = []
        self.ct('1.join')
        pf = f'buffer_load_dword v{PFL}, v{PFA}, {WSR}, s55 offen sc1'
        pfn = o.get('pfn', 30)
        for n, t_ in ((12, mr(1, 1)), (14, mr(2, 0)), (16, mr(2, 1)),
                      (13, kst(0, sKVM)), (15, kst(1, sKVM)), (17, f'buffer_store_dwordx2 {v(VMK,2)}, v{L8}, {WSR}, s{sKVM} offen offset:1024 sc1'),
                      (21, f'buffer_store_dword v{SX}, v{LN0}, {WSR}, s{sPROG} offen sc1'), (23, f'buffer_load_dword v{FLGV}, off, {WSR}, s{sFL} sc1'),
                      (pfn, pf),
                      (18, rf(30, 0)), (20, rf(30, 1)), (22, rf(33, 0)), (23, 's_nop 0'), (24, rf(33, 1)), (24, 's_nop 0'),
                      (25, add(ACQ)), (25, add(ACQ + 1)), (26, add(ACQ + 4)), (26, add(ACQ + 5)),
                      (14, f'v_mov_b32 v{RM}, 0xff800000'), (16, f'v_mov_b32 v{RM+1}, 0xff800000'), (19, f'v_mov_b32 v{SX}, s58')):
            fl[n].append(t_)
        for n in range(12, 27):
            S(n, J(*fl[n]))
            if n == 13:
                e.lgkm_for_writes()
                e('s_barrier')
            if n in (13, 18, 25): self.ct(f'1.s{n}')
        S(27, f'v_cvt_pk_bf16_f32 v{ACQ+2}, v{ACQ}, v{ACQ+4}\nv_cvt_pk_bf16_f32 v{ACQ+3}, v{ACQ+1}, v{ACQ+5}')
        QB0, QB1 = ACQ, ACQ + 4
        S(28, J(f'ds_write2_b32 v{TRW}, v{ACQ+2}, v{ACQ+3} offset0:160 offset1:164', f'ds_read_b128 {v(QB0,4)}, v{Q0R}'))
        S(29, f'ds_read_b128 {v(QB1,4)}, v{Q1R}')
        S(30, J(*fl[30], 's_waitcnt vmcnt(6)'))
        self.ct('1.s30')
        eq = o.get('eq', 1)
        Q2 = HB_ if eq else MEMA
        q2r = lambda m: f'ds_read_b128 {R(Q2+4*m,4)}, v{QQR} offset:{2*TRS*m}'
        if eq:
            S(31, rf(39, 0))
            S(32, rf(39, 1))
            e.lgkm_for_writes()
            e('s_barrier')
            S(33, q2r(0))
            S(34, J(q2r(1), 's_nop 0'))
            S(35, 's_nop 1')
        else:
            S(31, rf(39, 0))
            S(32, rf(39, 1))
            S(33, rf(38, 0))
            S(34, J(rf(38, 1), 's_nop 0'))
            S(35, 's_nop 1')
        self.ct('015.kend')
        e(f'v_mfma_f32_16x16x32_bf16 {v(SX,4)}, {v(KX,4)}, {v(QB0,4)}, 0')
        e(J(add(ACK), add(ACK + 1)))
        e(f'v_mfma_f32_16x16x32_bf16 {v(SX,4)}, {v(KX+4,4)}, {v(QB1,4)}, {v(SX,4)}')
        e(J(add(ACK + 4), add(ACK + 5)))
        e(f'v_cvt_pk_bf16_f32 v{KP}, v{ACK}, v{ACK+4}\nv_cvt_pk_bf16_f32 v{KP+1}, v{ACK+1}, v{ACK+5}')
        self.ct('5.kp')
        S(8, J(f'ds_write2_b32 v{TRW}, v{KP}, v{KP+1} offset0:0 offset1:4', f'ds_write_b128 v{MEMW}, {v(SX,4)} offset:{SXO}'))
        self.ct('5.w')
        a2 = o.get('al2', 0)
        S(9, J(f's_cmp_eq_u32 s{sT}, 63', *['s_nop 0'] * (a2 >= 5)))
        S(10, J(*['s_nop 0'] * min(2, a2)))
        S(11, J(*['s_nop 0'] * max(0, min(2, a2 - 2))))
        vs = list(o.get('vs', (1, 3, 0, 2, 0, 1, 1, 1, 1, 2)))
        assert sum(vs) == 12
        rest = [36, 37, 39, 40, 41, 42, 43, 44, 45, 38, 46, 47]
        pend = [rf(38, 0), rf(38, 1)] if eq else []
        late = {39: [rf(49, 0), rf(49, 1)], 38: [rf(48, 0), rf(48, 1)]}
        def V(k, fills=(), stage=True, minpad=False):
            fills = list(fills); cnt = vs[k]
            for i in range(cnt):
                n = rest.pop(0)
                if n == 38:
                    while pend and 'offset:%d' % (slot[38] * 2048) in pend[0] or pend and 'offset:%d' % (slot[38] * 2048 + 1024) in pend[0]: e(pend.pop(0))
                pend.extend(late.get(n, []))
                f_ = [fills.pop(0)] if fills else ([pend.pop(0)] if stage and pend else [])
                S(n, J(*f_))
            for f_ in fills: e(f_)
        V(0, stage=False)
        self.ct('5.s40')
        e.lgkm_for_writes()
        e('s_barrier')
        e('s_cbranch_scc1 L_CEND')
        st63 = (list(e.dsq), list(e.vmq)); rest63 = list(rest)
        self.ct('0125.barS')
        K2 = ACK
        RX = [88, 72, 92]; SMD = 76
        pka = lambda d, x: f'v_pk_add_f32 {v(d,2)}, {v(d,2)}, {v(x,2)}'
        rx = lambda u: f'ds_read_b128 {v(RX[u],4)}, v{MEMR+u} offset:{SXO}'
        k2r = lambda m: f'ds_read_b128 {v(K2+4*m,4)}, v{K2R} offset:{2*TRS*m}'
        if eq:
            e(J(k2r(0), k2r(1)))
            V(1, [J(rx(0), rx(1)), rx(2)], stage=False)
        else:
            e(J(k2r(0), q2r(0)))
            V(1, [J(k2r(1), q2r(1)), rx(0), rx(1), rx(2)], stage=False)
        self.ct('2.s43')
        e(f'v_mfma_f32_16x16x32_bf16 {v(SMD,4)}, {v(K2,4)}, {R(Q2,4)}, 0')
        if pend: e(pend.pop(0))
        V(2)
        e(f'v_mfma_f32_16x16x32_bf16 {v(SMD,4)}, {v(K2+4,4)}, {R(Q2+4,4)}, {v(SMD,4)}')
        if pend: e(pend.pop(0))
        V(3)
        self.ct('2.m2')
        for i in range(4): e(f'v_add_f32 v{SX+i}, v{SX+i}, v{RX[0]+i}')
        e(J(pka(SX, RX[1]), pka(SX + 2, RX[1] + 2), pka(SX, RX[2]), pka(SX + 2, RX[2] + 2)))
        V(4)
        e(f'v_add_f32_dpp v{RM}, v{SMD+2}, v{SMD} row_ror:8 row_mask:0xf bank_mask:0x3\nv_add_f32_dpp v{RM+1}, v{SMD+3}, v{SMD+1} row_ror:8 row_mask:0xf bank_mask:0x3')
        self.ct('2.sum')
        M0, M1 = 64, 65
        e(f'v_max3_f32 v{M0}, v{SX}, v{SX+1}, v{SX+2}\nv_max3_f32 v{M0}, v{M0}, v{SX+3}, v{RM}\nv_max_f32 v{M0}, v{M0}, v{RM+1}')
        V(5)
        e(f'v_max_f32_dpp v{M1}, v{M0}, v{M0} row_ror:8 row_mask:0xf bank_mask:0xf')
        e(f'v_max_f32_dpp v{M0}, v{M0}, v{M0} row_ror:8 row_mask:0xf bank_mask:0xf')
        V(6)
        e(f'v_permlane16_swap_b32 v{M0}, v{M1}\nv_max_f32 v{M1+1}, v{M0}, v{M1}\nv_max_f32 v{M0}, v{M0}, v{M1}')
        V(7)
        e(f'v_permlane32_swap_b32 v{M0}, v{M1+1}\nv_max_f32 v{M0}, v{M0}, v{M1+1}\nv_mul_f32 v{M0}, s{sSC}, v{M0}')
        self.ct('2.red')
        fma = lambda x: f'v_fma_f32 v{x}, v{x}, s{sSC}, -v{M0}'
        ex = lambda x: f'v_exp_f32 v{x}, v{x}'
        e(J(fma(SX), fma(SX + 1), fma(SX + 2), fma(SX + 3), ex(SX), ex(SX + 1), ex(SX + 2), ex(SX + 3)))
        self.ct('2.exp')
        V(8)
        PX, PM, LA, OE, OO_ = 92, 68, 88, 72, 76
        dp = lambda x, bm: f'v_mov_b32_dpp v{x}, v{x} row_ror:8 row_mask:0xf bank_mask:{bm}'
        e(f'v_cvt_pk_bf16_f32 v{PX}, v{SX}, v{SX+1}\nv_cvt_pk_bf16_f32 v{PX+1}, v{SX+2}, v{SX+3}')
        e(fma(RM))
        e(f'v_mov_b32_dpp v{PX+2}, v{PX} row_ror:8 row_mask:0xf bank_mask:0xf\nv_mov_b32_dpp v{PX+3}, v{PX+1} row_ror:8 row_mask:0xf bank_mask:0xf')
        f9 = [fma(RM + 1), f'v_mov_b32 v{PM+1}, 0']
        for i in range(vs[9]):
            n = rest.pop(0); pend.extend(late.get(n, []))
            S(n, J(*(pend[:1] + f9[:1]))); pend = pend[1:]; f9 = f9[1:]
        e(J(*f9))
        assert not rest
        self.ct('023.P')
        e(f'v_mfma_f32_16x16x32_bf16 {v(LA,4)}, {v(ONES,4)}, {v(PX,4)}, 0')
        if pend: e(pend.pop(0))
        e(ex(RM))
        e(f'v_mfma_f32_16x16x32_bf16 {v(OE,4)}, {v(VX,4)}, {v(PX,4)}, 0')
        while pend: e(pend.pop(0))
        e(ex(RM + 1))
        e(f'v_mfma_f32_16x16x32_bf16 {v(OO_,4)}, {v(VX+4,4)}, {v(PX,4)}, 0')
        e(J(f'v_cvt_pk_bf16_f32 v{PM}, v{RM}, v{RM+1}', add(ACV), add(ACV + 1), f'v_cvt_pk_bf16_f32 v{VMK}, v{ACV}, v{ACV+1}', add(ACV + 4)))
        self.ct('3.x')
        e(f'v_mfma_f32_16x16x16_bf16 {v(LA,4)}, {v(ONES,2)}, {v(PM,2)}, {v(LA,4)}')
        e(J(add(ACV + 5), f'v_cvt_pk_bf16_f32 v{ACV+2}, v{ACV+4}, v{ACV+5}'))
        e(f'v_mfma_f32_16x16x16_bf16 {v(OE,4)}, {v(VMK,2)}, {v(PM,2)}, {v(OE,4)}')
        e(J(f'v_mov_b32 v{ACV+3}, 0', z1(WA)))
        e(f'v_mfma_f32_16x16x16_bf16 {v(OO_,4)}, {v(ACV+2,2)}, {v(PM,2)}, {v(OO_,4)}')
        e(J(z1(WA + 2), z1(WA + 4)))
        self.ct('3.m')
        e(f'v_rcp_f32 v{LA}, v{LA}')
        e(z1(WA + 6))
        if o.get('pk', 1):
            for x in (OE, OE + 2, OO_, OO_ + 2): e(f'v_pk_mul_f32 {v(x,2)}, {v(x,2)}, {v(LA,2)} op_sel_hi:[1,0]')
        else:
            for i in range(4): e(f'v_mul_f32 v{OE+i}, v{OE+i}, v{LA}')
            for i in range(4): e(f'v_mul_f32 v{OO_+i}, v{OO_+i}, v{LA}')
        for i in range(4): e(f'v_cvt_pk_bf16_f32 v{SX+i}, v{OE+i}, v{OO_+i}')
        self.ct('3.cvt')
        if o.get('o64', 0):
            e(f'ds_write_b64 v{MEMW}, {v(SX,2)} offset:1024\nds_write_b64 v{MEMW}, {v(SX+2,2)} offset:1032')
        else:
            e(f'ds_write_b128 v{MEMW}, {v(SX,4)} offset:1024')
        OAD = [70, 67, 71]
        e(J(*[dp(SX + i, '0xc') for i in range(4)]))
        e(J(*[f'v_and_b32 v{OAD[u]}, 0xffffff7f, v{MEMR+u}' for u in range(3)]))
        S(48, J(f's_mov_b32 s{sKV}, s55', f's_mov_b32 s{sKVM}, s56'))
        self.ct('3.z')
        e.lgkm_for_writes()
        e('s_barrier')
        self.ct('034.barB')
        for u in range(3): e(f'ds_read_b128 {v((72, 64, 68)[u],4)}, v{OAD[u]} offset:1024')
        S(49, J(z1(WA + 8), z1(WA + 10)))
        e(J(z1(WA + 12), z1(WA + 14)))
        S(50, f'v_mov_b32 v{VMK+1}, v{ACV+2}')
        S(51)
        PK = 80
        def post(b):
            t0 = WA + 4 * b
            return ['', f'v_and_or_b32 v{t0}, v{t0}, v{OR_}, s{sTT}',
                    f'v_cvt_pk_bf16_f32 v{PK+1+2*b}, v{t0+2}, v{t0+3}', f'v_cvt_pk_bf16_f32 v{PK+2*b}, v{t0}, v{t0+1}',
                    f'buffer_store_dwordx2 {v(PK+2*b,2)}, v{H1S}, {WSR}, s{sH1S if b < 2 else sH1S2} offen offset:{2048*(b&1)}']
        P = [post(b) for b in range(4)]
        self.ct('4.pre')
        S(52); self.ct('4.s52'); S(53); S(54, 's_nop 1')
        S(55, J('s_nop 3', *P[0][:4])); S(56, J(P[0][4], rf(61, 0))); self.ct('4.st0')
        S(57, J(rf(61, 1), rf(62, 0))); S(58, J(rf(62, 1), rf(63, 0))); S(59, J(rf(63, 1), *P[1][:4])); S(60, J(P[1][4], 's_nop 0')); self.ct('4.s60')
        S(61, 's_nop 1'); S(62, J('s_nop 0', *P[2][:4])); S(63, P[2][4]); self.ct('4.b2')
        e(J(*P[3]))
        exit_items = None
        if cap_on:
            items = e.cap; e.cap = None
            self.items = items
            perm = o.get('perm') or list(range(len(items)))
            seqi = [items[i] for i in perm]
            for k_, t_ in enumerate(seqi):
                if t_ == 's_barrier': e.lgkm_for_writes()
                e(t_)
                if t_.startswith('s_cbranch_scc1 L_CEND'):
                    st63 = (list(e.dsq), list(e.vmq))
                    rem = seqi[k_ + 1:]; keep = set()
                    for j, u in enumerate(rem):
                        iu = Ins(u)
                        if iu.mn.startswith('v_smfmac') and ('v', iu.wr[0][1]) in [('v', ACV), ('v', ACV + 4)] and 'abid' not in u:
                            keep.add(j); needr = set(iu.srcab)
                            for j2 in range(j - 1, -1, -1):
                                i2 = Ins(rem[j2])
                                if set(i2.wr) & needr:
                                    assert i2.kind == 'ds', rem[j2]
                                    keep.add(j2); needr -= set(i2.wr)
                    exit_items = [rem[j] for j in sorted(keep)]
        self.ct('04.wo')
        def stagger(d0, dd, tag):
            nops(d0)
            if dd:
                for w in (1, 2, 3):
                    e(f's_cmp_lt_u32 s{sW}, {w}\ns_cbranch_scc1 L_sg{tag}')
                    nops(dd - 8 + (o.get('g3', 70) if w == 3 else 0))
            e.label(f'L_sg{tag}')
        nr = o.get('nr', 1)
        for n in (1, 3, 5)[:nr]: e(rf(n))
        stagger(o.get('d1', 48), o.get('g1', 40), 1)
        self.ct('0.d1')
        p1()
        for n in (1, 3, 5)[nr:] + (7, 2): e(rf(n))
        if y1:
            nops(y1); p1()
        for i in range(6): e(J(z1(ACK + 2 * i), 's_nop 0'))
        e.track = False
        wait_check1(2 if y1 else 0, 'L_f1')
        e.label('L_ok1')
        publish()
        e.label('L_pub1')
        e.track = True
        e.reset(dsq=e.dsq)
        self.ct('0.pub')
        e(rf(6))
        if eq: e(J(rfH(0), rfH(1)))
        for i in range(6, 12): e(z1(ACK + 2 * i))
        e(f's_xor_b32 s{sH1S}, s{sH1S}, 0x40000\ns_xor_b32 s{sH1S2}, s{sH1S2}, 0x40000\ns_xor_b32 s{sH1L}, s{sH1L}, 0x40000\ns_xor_b32 s{sH2L}, s{sH2L}, 0x10000')
        e(f'v_readfirstlane_b32 s54, v{FLGV}\ns_cmp_lg_u32 s54, 0\ns_cbranch_scc0 L_fslow')
        e.label('L_fok')
        e(f's_mov_b32 s58, s{sT}')
        e(f's_add_u32 s{sFL}, s{sFL}, 4\ns_add_u32 s{sT}, s{sT}, 1')
        nxt()
        if self.dev:
            e.raw(f's_cmp_lg_u32 s{sT}, 3'); e.raw('s_cbranch_scc0 L_T0'); e.label('L_T0r')
        else:
            e.raw('s_nop 0'); e.raw('s_nop 0')
        e('s_waitcnt lgkmcnt(0)')
        self.ct_acc()
        if self.dev and o.get('trace'):
            e.raw(f's_lshl_b32 s97, s98, 2'); e.raw(f's_add_u32 s97, s97, s{sW}'); e.raw('s_lshl_b32 s97, s97, 6'); e.raw(f's_add_u32 s97, s97, s{sT}'); e.raw('s_lshl_b32 s97, s97, 5'); e.raw(f's_add_u32 s97, s97, {STP+0x40000}')
            if o.get('trace') == 2:
                e.raw('s_memrealtime s[94:95]'); e.raw('s_waitcnt lgkmcnt(0)')
            for i, sr in enumerate((26, 4, 6, 14, 16, 18, 93, 94)):
                e.raw(f'v_mov_b32 v{32+i}, s{sr}')
            e.raw(f'buffer_store_dwordx4 v[32:35], v{LN0}, {WSR}, s97 offen'); e.raw(f'buffer_store_dwordx4 v[36:39], v{LN0}, {WSR}, s97 offen offset:16')
        nops(max(0, o.get('d2', 16) - self.ct_cost() - (72 if o.get('trace') else 0)))
        e(f's_cmp_lt_u32 s{sW}, 3')
        self.ct_last()
        e('s_cbranch_scc0 L_step')
        nops(o.get('d2e', 8))
        early()
        e.label('L_fslow')
        e(f's_cmp_ge_u32 s{sT}, 62\ns_cbranch_scc1 L_fok')
        flag_spin(0)
        e('s_branch L_fok')
        if self.dev:
            e.label('L_T0'); e.raw('s_memtime s[100:101]'); e.raw('s_mov_b32 s93, 0'); e.raw('s_mov_b32 s94, 0'); e.raw('s_branch L_T0r')
        e.track = False
        def spin(tag):
            if self.dev: e(f's_add_u32 s{92+tag}, s{92+tag}, 1')
            e(f's_add_u32 s{sSPIN}, s{sSPIN}, 1\ns_cmp_gt_u32 s{sSPIN}, {1 << 19}\ns_cbranch_scc1 L_END')
        e.label('L_f1')
        p1(); spin(1)
        wait_check1(2 if y1 else 0, 'L_f1')
        publish(); e('s_branch L_pub1')
        e.label('L_f2')
        p2()
        e(f'v_cmp_lt_u32 vcc, s{sSEN}, v{SM_}')
        spin(2)
        e('s_cbranch_vccnz L_x2')
        if spec:
            e('s_nop 1'); zero(ACQ, 8); e('s_nop 0\ns_branch L_w2')
        else:
            wait_check(MEMA, 2 if y2 else 0, 'L_f2')
            e.label('L_ret2')
            e(f's_cmp_lt_u32 s{sW}, 3\ns_cbranch_scc0 L_ok2\ns_branch L_ok2e')
        e.label('L_x2')
        e('s_waitcnt vmcnt(0)')
        e(f'v_cmp_eq_u32 s[76:77], s{sSEN}, v{MEMA}')
        for i in range(1, 8): e(f'v_cmp_eq_u32 vcc, s{sSEN}, v{MEMA+i}\ns_or_b64 s[76:77], s[76:77], vcc')
        if spec:
            e('s_cbranch_scc1 L_f2'); zero(ACQ, 8); e('s_waitcnt lgkmcnt(0)'); head(0, False); e('s_branch L_ok2')
        else:
            e('s_cbranch_scc0 L_ret2\ns_branch L_f2')
        e.track = True
        e.label('L_CEND')
        e.reset(*st63)
        e(J(kst(0, 56), kst(1, 56)))
        if exit_items is not None: e(J(*exit_items))
        else:
            if eq: e(rf(38))
            for n in rest63: S(n)
        e(J(add(ACV), add(ACV + 1), add(ACV + 4), add(ACV + 5)))
        e(f'v_cvt_pk_bf16_f32 v{ACV}, v{ACV}, v{ACV+1}\nv_cvt_pk_bf16_f32 v{ACV+1}, v{ACV+4}, v{ACV+5}')
        e(f'buffer_store_dwordx2 {v(ACV,2)}, v{L8}, {WSR}, s56 offen offset:1024 sc1')
        e(f's_waitcnt vmcnt(0) lgkmcnt(0)\nv_mov_b32 v{SM_}, 64\ns_mov_b64 exec, 1\nbuffer_store_dword v{SM_}, off, {WSR}, s{sPROG} sc1\ns_mov_b64 exec, -1')
        if self.dev:
            e('s_memtime s[90:91]\ns_waitcnt lgkmcnt(0)\ns_sub_u32 s90, s90, s100')
            e(f's_lshl_b32 s97, s98, 8\ns_lshl_b32 s99, s{sW}, 6\ns_add_u32 s97, s97, s99\ns_add_u32 s97, s97, {STP+32}')
            e(f'v_mov_b32 v100, s90\nv_mov_b32 v101, s93\nv_mov_b32 v102, s94\nv_mov_b32 v103, s{sSPIN}\nbuffer_store_dwordx4 v[100:103], off, {WSR}, s97')
        self.dstamp(6, 100)
        self.tick_dump(11, 2, 100, 78)
        self.stamp(7, (100,))

    def build(self):
        e = self.e
        self.prologue()
        self.ln(); self.stamp(1)
        self.qkv(); self.ffn1(); self.tailphase()
        self.chain()
        e.label('L_END')
        e('s_endpgm')
        if self.o.get('drop'):
            out_ = []; on = False
            for l in e.lines:
                if l == 'L_ok2:': on = True
                if l.startswith('s_cbranch_scc1 L_CEND'): on = False
                d = self.o['drop']
                if on and ((d & 1 and l.startswith('buffer_load_dwordx4')) or (d & 2 and l.startswith('buffer_store') and 'sc1' in l and 's70' not in l) or (d & 4 and l.startswith('buffer_load_dword v20')) or (d & 8 and l.startswith('ds_read_b128') and 'v9 ' in l) or (d & 16 and l.startswith('buffer_load_dword v21'))): l = 's_nop 0'
                out_.append(l)
            e.lines = out_
        if self.o.get('pads', 0):
            gap = self.o['pads']; L = e.lines
            i0 = L.index('L_step:'); i1 = L.index('L_fslow:')
            out_ = []; dist = 1 << 20; pads = []
            for i in range(i0, i1):
                l = L[i]; out_.append(l)
                if not l.endswith(':'): dist += 4 if l.startswith('s_') else (4 if l.split()[0] in ('v_add_f32', 'v_max_f32', 'v_mul_f32', 'v_exp_f32', 'v_mov_b64', 'v_add_u32', 'v_max_u32', 'v_rcp_f32') else 8)
                ok = False
                if l.startswith('v_smfmac'):
                    k = i + 1; ns = 0
                    while not L[k].startswith('v_'):
                        ns += (int(L[k].split()[1]) + 1) if L[k].startswith('s_nop') else 1; k += 1
                    ok = ns <= 1
                elif l.startswith('v_mfma'): ok = L[i + 1].startswith('v_')
                elif l.startswith('s_nop') and int(l.split()[1]) >= 4 and dist >= gap:
                    out_[-1] = f's_nop {int(l.split()[1]) - 1}'; ok = True
                if ok and dist >= gap:
                    pads.append(len(out_)); out_.append(None); dist = 0
            n = len(pads); cut = [n * w // 4 for w in range(5)]
            res = []
            for i, l in enumerate(out_):
                if l is None:
                    k = pads.index(i)
                    res.append(f'L_pad{k}:'); res.append(f's_cbranch_execz ' + ('L_padret' if k + 1 in cut else f'L_pad{k+1}'))
                else: res.append(l)
            L[i0:i1] = res
            j = L.index('; PADCALL')
            call = ['s_mov_b64 exec, 0']
            for w in range(3): call += [f's_cmp_eq_u32 s{sW}, {w}', f's_cbranch_scc1 L_pad{cut[w]}']
            call += [f's_branch L_pad{cut[3]}', 'L_padret:', 's_mov_b64 exec, -1']
            L[j:j + 1] = call
            sys.stderr.write(f'{n} pads\n')
        body = fix_hazards(e.lines)
        hdr = open('recurrent_scan__memory_aug_recurrent_mem_tr__glu_gated_reglu__prompt.s.ref').read().split('\n')
        top = [l for l in hdr if l.startswith(';') and '@launch' not in l and not l.startswith('; Override') and not l.startswith('; grid=')]
        out = top + ['; @launch grid=(256,1,1) block=(256,1,1) lds=163840', '.amdgcn_target "amdgcn-amd-amdhsa--gfx950"', '.text', f'.globl {KNAME}', '.p2align 8', f'.type {KNAME},@function', f'{KNAME}:']
        out += body
        out += ['.section .rodata,"a"', '.p2align 6', f'.amdhsa_kernel {KNAME}', '  .amdhsa_next_free_vgpr 512', '  .amdhsa_next_free_sgpr 102', '  .amdhsa_accum_offset 256',
                '  .amdhsa_group_segment_fixed_size 0', '  .amdhsa_kernarg_size 112', '  .amdhsa_user_sgpr_count 2', '  .amdhsa_user_sgpr_kernarg_segment_ptr 1',
                '  .amdhsa_system_sgpr_workgroup_id_x 1', '  .amdhsa_float_denorm_mode_32 3', '.end_amdhsa_kernel', '']
        return '\n'.join(out)

if __name__ == '__main__':
    import json
    dev = 'dev' in sys.argv[2:]
    opts = {}
    for a_ in sys.argv[2:]:
        if '=' in a_:
            k, x = a_.split('='); opts[k] = int(x)
    for a_ in sys.argv[2:]:
        if a_.endswith('.json'): opts = dict(json.load(open(a_)), **opts)
    open(sys.argv[1], 'w').write(Gen(dev, opts).build())
```
